```python
import torch

def _softmax(x, axis=-1):
    return torch.softmax(x, dim=axis)
def _gelu(x):
    return torch.nn.functional.gelu(x, approximate="tanh")
def _silu(x):
    return torch.nn.functional.silu(x)
def _sigmoid(x):
    return torch.sigmoid(x)
def _layernorm(x, axis=-1, eps=1e-5):
    m = x.mean(dim=axis, keepdim=True)
    v = x.var(dim=axis, keepdim=True, unbiased=False)
    return (x - m) / torch.sqrt(v + eps)
def _scatter_add(tgt, idx, src, axis=0):
    return tgt.clone().index_add_(axis, idx, src)
def _segment_sum(src, seg, n):
    out = torch.zeros((n,) + src.shape[1:], dtype=src.dtype)
    return out.index_add_(0, seg, src)
def _pad(x, pw):
    flat = tuple(v for pair in reversed(pw) for v in pair)
    return torch.nn.functional.pad(x, flat)

kernel_name = 'sequential_preLN__ssm_conv_h3__glu_gated_swiglu__prompt'

def setup_inputs():

    _w = (lambda a: (lambda t: t.to(torch.bfloat16) if t.is_floating_point() else t)(torch.as_tensor(a)))
    def _A_setup():
        B, S, D = 1, 2048, 640
        ks = 4
        return {
            "q": _w((lambda *s: torch.randn(*s, dtype=torch.bfloat16) * 0.05)(B, S, D)),
            "k": _w((lambda *s: torch.randn(*s, dtype=torch.bfloat16) * 0.2)(B, S, D)),
            "v": _w((lambda *s: torch.randn(*s, dtype=torch.bfloat16) * 0.2)(B, S, D)),
            "shift_k": _w((lambda *s: torch.randn(*s, dtype=torch.bfloat16) * 0.2)(D, ks) * 0.5),
            "ssm_k": _w((lambda *s: torch.randn(*s, dtype=torch.bfloat16) * 0.4)(D, S) * (1.0 / S ** 0.5)),
            "ssm_D": _w((lambda *s: torch.randn(*s, dtype=torch.bfloat16) * 0.2)(D)),
        }
    _A_in = _A_setup()

    def _B_setup():
        B, S, D, F = 1, 2048, 640, 1536
        return {
            "x": _w((lambda *s: torch.randn(*s, dtype=torch.bfloat16) * 0.05)(B, S, D)),
            "w1": _w((lambda *s: torch.randn(*s, dtype=torch.bfloat16) * 0.2)(D, F) * (2.0 / D) ** 0.5),
            "w3": _w((lambda *s: torch.randn(*s, dtype=torch.bfloat16) * 0.2)(D, F) * (2.0 / D) ** 0.5),
            "w2": _w((lambda *s: torch.randn(*s, dtype=torch.bfloat16) * 0.2)(F, D) * (2.0 / F) ** 0.5),
        }
    _B_in = _B_setup()

    return {
        "A_q": _A_in["q"],
        "A_k": _A_in["k"],
        "A_v": _A_in["v"],
        "A_shift_k": _A_in["shift_k"],
        "A_ssm_k": _A_in["ssm_k"],
        "A_ssm_D": _A_in["ssm_D"],
        "B_x": _B_in["x"],
        "B_w1": _B_in["w1"],
        "B_w3": _B_in["w3"],
        "B_w2": _B_in["w2"],
    }

def reference(A_q, A_k, A_v, A_shift_k, A_ssm_k, A_ssm_D, B_x, B_w1, B_w3, B_w2):
    def _A_ref(q, k, v, shift_k, ssm_k, ssm_D):
        B, S, D = q.shape
        ks = shift_k.shape[-1]
        k_pad = _pad(k, ((0, 0), (ks - 1, 0), (0, 0)))
        k_shift = torch.zeros_like(k)
        for t in range(ks):
            k_shift = k_shift + k_pad[:, t:t + S, :] * shift_k[:, ks - 1 - t][None, None, :]
        kv = k_shift * v
        L = 2 * S
        kv_pad = _pad(kv, ((0, 0), (0, S), (0, 0)))
        kf_pad = _pad(ssm_k, ((0, 0), (0, S)))
        kv_f = (lambda x, axes=(-2,-1): torch.fft.rfft2(x.float(), dim=axes))(kv_pad[:, None, :, :], axes=(1, 2))
        kf_f = (lambda x, axes=(-2,-1): torch.fft.rfft2(x.float(), dim=axes))(kf_pad[:, None, :], axes=(1, 2))
        kf_f = (lambda x, *d: x.permute(*d))(kf_f, 1, 2, 0)
        y_f = kv_f * kf_f[None, :, :, :]
        y = (lambda x, s, axes=(-2,-1): torch.fft.irfft2(x, s=s, dim=axes).to(torch.bfloat16))(y_f, (1, L), axes=(1, 2))[:, 0, :S, :]
        y = y + kv * ssm_D[None, None, :]
        return q * y

    def _B_ref(x, w1, w3, w2):
        gate = torch.einsum("bsd,df->bsf", x, w1)
        up = torch.einsum("bsd,df->bsf", x, w3)
        h = _silu(gate) * up
        out = torch.einsum("bsf,fd->bsd", h, w2)
        return out

    x = A_q
    h = x + _A_ref(_layernorm(x, axis=-1), A_k, A_v, A_shift_k, A_ssm_k, A_ssm_D)
    h2 = h + _B_ref(_layernorm(h, axis=-1), B_w1, B_w3, B_w2)
    return h2
```

```python
import re

def v(i, n=1): return f"v{i}" if n == 1 else f"v[{i}:{i+n-1}]"
def a(i, n=1): return f"a{i}" if n == 1 else f"a[{i}:{i+n-1}]"
def s(i, n=1): return f"s{i}" if n == 1 else f"s[{i}:{i+n-1}]"

_REG = re.compile(r"^-?(?:abs\()?\|?([vas])(?:(\d+)|\[(\d+):(\d+)\])\|?\)?$")
TRANS = re.compile(r"^v_(exp|log|rcp|rsq|sqrt|sin|cos)_")

def regs_of(tok):
    tok = tok.strip()
    if tok in ("vcc", "vcc_lo", "vcc_hi"): return {("vcc", 0)}
    if tok in ("exec", "exec_lo", "exec_hi"): return {("exec", 0)}
    if tok == "m0": return {("m0", 0)}
    m = _REG.match(tok)
    if not m: return set()
    k = m.group(1)
    if m.group(2) is not None: return {(k, int(m.group(2)))}
    return {(k, i) for i in range(int(m.group(3)), int(m.group(4)) + 1)}

class Ins:
    def __init__(self, text):
        self.text = text
        t = text.split(";")[0].strip()
        self.label = None; self.mn = ""; self.defs = set(); self.uses = set(); self.ops = []
        self.kind = "other"; self.states = 1; self.target = None
        if not t or t.startswith("."):
            self.kind = "dir"; self.states = 0; return
        if t.endswith(":"):
            self.label = t[:-1]; self.kind = "label"; self.states = 0; return
        p = t.split(None, 1); self.mn = mn = p[0]
        rest = p[1] if len(p) > 1 else ""
        ops = []; depth = 0; cur = ""
        for ch in rest + ",":
            if ch in "[(": depth += 1
            elif ch in "])": depth -= 1
            if ch == "," and depth == 0:
                w = cur.split()
                if w: ops.append(w[0])
                cur = ""
            else: cur += ch
        self.ops = ops
        R = [regs_of(o) for o in ops]
        allr = lambda xs: set().union(*xs) if xs else set()
        self.islds = bool(re.search(r"\blds\b", rest)) or "_lds_" in mn
        self.dpp = ("_dpp" in mn) or ("row_" in rest) or ("quad_perm" in rest)
        if mn == "s_nop":
            self.states = int(rest.strip(), 0) + 1; self.kind = "salu"
        elif mn.startswith("v_mfma"):
            self.kind = "mfma"; self.defs = R[0]; self.uses = allr(R[1:]); self.srcc = R[3]; self.srcab = R[1] | R[2]
            self.passes = 8 if "32x32" in mn else 4
        elif mn.startswith("v_"):
            self.kind = "valu"
            if mn.startswith("v_cmp"):
                self.defs = R[0]; self.uses = allr(R[1:])
            elif mn.startswith("v_permlane") and "swap" in mn:
                self.defs = R[0] | R[1]; self.uses = R[0] | R[1]
            elif re.match(r"v_(add|sub|subrev)_co_|v_(addc|subb)_co_", mn):
                self.defs = R[0] | R[1]; self.uses = allr(R[2:])
            else:
                self.defs = R[0]; self.uses = allr(R[1:])
                if re.match(r"v_(fmac|dot2c|mac|pk_fmac)", mn) or self.dpp: self.uses |= R[0]
                if mn.startswith("v_cndmask") and len(ops) == 3: self.uses |= {("vcc", 0)}
            self.trans = bool(TRANS.match(mn)); self.dot = mn.startswith("v_dot")
        elif mn.startswith("ds_"):
            self.kind = "ds"
            if re.match(r"ds_(read|bpermute|permute|swizzle)", mn): self.defs = R[0]; self.uses = allr(R[1:])
            else: self.uses = allr(R)
        elif re.match(r"(buffer|global|flat)_", mn):
            self.kind = "vmem"
            if "load" in mn and not self.islds: self.defs = R[0]; self.uses = allr(R[1:])
            elif "atomic" in mn and re.search(r"\bsc0\b", rest): self.defs = R[0]; self.uses = allr(R)
            else: self.uses = allr(R)
            if self.islds: self.uses |= {("m0", 0)}
            self.wide_store = ("store" in mn) and ("x3" in mn or "x4" in mn)
            if self.wide_store: self.sdata = R[0] if mn.startswith("buffer") else R[1]
        elif mn.startswith("s_"):
            self.kind = "salu"
            if mn.startswith(("s_branch", "s_cbranch")): self.kind = "branch"; self.target = ops[0]
            elif mn.startswith(("s_cmp", "s_waitcnt", "s_barrier", "s_sleep", "s_endpgm", "s_setprio", "s_bitcmp")): self.uses = allr(R)
            elif mn.startswith(("s_load", "s_memtime", "s_memrealtime")): self.kind = "smem"; self.defs = R[0]; self.uses = allr(R[1:])
            else:
                self.defs = R[0] if R else set(); self.uses = allr(R[1:])
                if mn.startswith(("s_addk", "s_mulk")): self.uses |= R[0]
                if "saveexec" in mn: self.defs |= {("exec", 0)}

def need(p, c):
    n = 0
    vec = lambda S: {r for r in S if r[0] in "va" and r[0] != "vcc"}
    sca = lambda S: {r for r in S if r[0] in ("s", "vcc")}
    if p.kind == "valu":
        raw = vec(p.defs) & c.uses
        if raw:
            if c.kind == "mfma": n = max(n, 2)
            if c.kind == "valu":
                if c.mn.startswith("v_permlane") or c.dpp: n = max(n, 2)
                if c.mn.startswith(("v_readlane", "v_readfirstlane")): n = max(n, 1)
                if p.trans: n = max(n, 1)
        if p.dot and (vec(p.defs) & (c.uses | c.defs)):
            same_c = c.mn == p.mn and len(c.ops) >= 3 and not (vec(p.defs) & (regs_of(c.ops[1]) | regs_of(c.ops[2])))
            if not same_c: n = max(n, 3)
        sw = sca(p.defs) & c.uses
        if sw:
            if c.kind == "valu": n = max(n, 4 if c.mn.startswith(("v_readlane", "v_writelane")) else 2)
            if c.kind == "vmem": n = max(n, 5)
            if c.kind in ("salu", "smem"): n = max(n, 1)
        if ("exec", 0) in p.defs: n = max(n, 5)
    if p.kind == "mfma":
        big = {4: 8, 8: 12}[p.passes]
        if c.kind == "mfma":
            if p.defs & c.srcab: n = max(n, big)
            if (p.defs & c.srcc) and not (p.defs == c.srcc and p.passes == c.passes): n = max(n, big - 2)
            if (p.defs & c.defs) and not (p.defs & c.srcc): n = max(n, big)
        elif p.defs & (c.uses | c.defs): n = max(n, big)
        if c.kind == "valu" and (p.srcc & c.defs): n = max(n, {4: 3, 8: 7}[p.passes])
    if p.kind == "salu" and ("m0", 0) in p.defs and c.kind == "vmem" and c.islds: n = max(n, 1)
    if p.kind == "vmem" and getattr(p, "wide_store", False) and (p.sdata & c.defs): n = max(n, 2)
    return n

class Asm:
    def __init__(self):
        self.L = []
        self.vmq = []; self.lgq = []
        self.uid = 0
    def __call__(self, text):
        for line in text.split("\n"):
            line = line.strip()
            if line: self.L.append(Ins(line))
    def label(self, name): self(name + ":")
    def newlabel(self, p="L"):
        self.uid += 1; return f"{p}_{self.uid}"
    def vm(self, text, tag=None): self(text); self.vmq.append(tag)
    def lg(self, text, tag=None): self(text); self.lgq.append(tag)
    def _cnt(self, q, tags):
        if not isinstance(tags, list): tags = [tags]
        idx = max([i for i, t in enumerate(q) if t in tags], default=-1)
        return None if idx < 0 else len(q) - 1 - idx
    def wait_vm(self, tags):
        n = self._cnt(self.vmq, tags)
        if n is None: return
        n = min(n, 62); self(f"s_waitcnt vmcnt({n})"); self.vmq = self.vmq[len(self.vmq) - n:] if n else []
    def wait_lg(self, tags):
        n = self._cnt(self.lgq, tags)
        if n is None: return
        n = min(n, 14); self(f"s_waitcnt lgkmcnt({n})"); self.lgq = self.lgq[len(self.lgq) - n:] if n else []
    def wait_vm0(self): self("s_waitcnt vmcnt(0)"); self.vmq = []
    def wait_lg0(self): self("s_waitcnt lgkmcnt(0)"); self.lgq = []
    def pad(self):
        L = self.L
        srcs = {}
        for ins in L:
            if ins.kind == "branch": srcs.setdefault(ins.target, []).append(ins)
        out = []; pos = {}
        orig = {id(x): i for i, x in enumerate(L)}
        def back(lst, i, dist, c, seen):
            req = 0
            while i >= 0 and dist < 12:
                p = lst[i]
                if p.kind == "label":
                    for b in srcs.get(p.label, []):
                        key = (id(b), dist)
                        if key in seen: continue
                        seen.add(key)
                        if id(b) in pos: req = max(req, back(out, pos[id(b)] - 1, dist + 1, c, seen))
                        else: req = max(req, back(L, orig[id(b)] - 1, dist + 1, c, seen))
                elif p.mn in ("s_branch", "s_endpgm"):
                    return req
                elif p.kind != "dir":
                    req = max(req, need(p, c) - dist)
                dist += p.states; i -= 1
            return req
        nn = 0
        for c in L:
            if c.kind not in ("label", "dir"):
                r = back(out, len(out) - 1, 0, c, set())
                if r > 0:
                    out.append(Ins(f"s_nop {r-1}")); nn += 1
            pos[id(c)] = len(out); out.append(c)
        self.L = out
        return nn
    def text(self):
        return "\n".join((x.text if x.kind in ("label",) else "  " + x.text) for x in self.L) + "\n"
```

```python
import sys, os
sys.path.insert(0, os.path.dirname(os.path.abspath(__file__)))
from asmlib import *

KNAME = "sequential_preLN__ssm_conv_h3__glu_gated_swiglu__prompt_kernel"
WS_SYNC = 0x0
WS_F3   = 0x8000
WS_PROF = 0x20000
WS_STAT = 0x40000
WS_KVT  = 0x100000
WS_XT   = 0x400000
WS_W13  = 0x800000
WS_W2   = 0xC00000
WS_HC   = 0xE00000
WS_HH   = 0x1100000
WS_SIZE = 0x2000000
NSH = 16
L_TOEP = 0; CSTR = 4160
L_U = 49920; L_UD = L_U + 1440
L_XI = L_U + 13728
L_ST = L_XI + 12288
L_PART = L_ST + 16384
L_P0K = 92320; L_P0V = L_P0K + 15360; L_P0X = L_P0V + 10240
L_RP = 128160
LDS_BYTES = 163840
sID, sW = 2, 3
sDBG, sDP = 4, 6
rK, rV, rX, rWS, rSS, rSH, rW1, rW3, rW2, rOUT = 8, 12, 16, 20, 24, 28, 32, 36, 40, 44
sXG, sM, sSB, sC0, sE, sR, sC = 48, 49, 50, 51, 52, 53, 54
sT = 56
sX = 64
sDV = 70
sCNT = 73
sHS, sHL, sHO = 70, 71, 72
sSTAMP = 76

class Gen:
    def __init__(self, stop=99, prof=False):
        self.k = Asm(); self.stop = stop; self.prof = prof; self.nst = 0
    def stamp(self):
        if self.prof:
            k = self.k
            k(f"s_memrealtime s[100:101]"); k.wait_lg0(); k(f"s_mov_b32 {s(sSTAMP + self.nst)}, s100"); self.nst += 1
    def arrive(self, idx):
        k = self.k; L = k.newlabel("arr")
        k(f"s_cmp_lg_u32 {s(sW)}, 0"); k(f"s_cbranch_scc1 {L}")
        k(f"s_and_b32 {s(sT)}, {s(sID)}, {NSH-1}"); k(f"s_lshl_b32 {s(sT)}, {s(sT)}, 8")
        k(f"s_add_u32 {s(sT)}, {s(sT)}, {WS_SYNC + idx*NSH*256}")
        k(f"v_mov_b32 v2, {s(sT)}"); k("v_mov_b32 v3, 1")
        k("s_mov_b64 exec, 1")
        k(f"global_atomic_add v2, v3, {s(rWS,2)} sc1")
        k("s_mov_b64 exec, -1")
        k.label(L)
    def poll(self, idx):
        k = self.k; L = k.newlabel("pol"); Lp = k.newlabel("polp"); Ld = k.newlabel("pold")
        k(f"s_cmp_lg_u32 {s(sW)}, 0"); k(f"s_cbranch_scc1 {L}")
        k(f"v_lshlrev_b32 v2, 8, v1"); k(f"v_add_u32 v2, {WS_SYNC + idx*NSH*256}, v2")
        k(f"s_mov_b64 exec, {(1<<NSH)-1}")
        k(f"s_mov_b32 {s(sCNT)}, 0x40000")
        k.label(Lp)
        k(f"global_load_dword v3, v2, {s(rWS,2)} sc1"); k("s_waitcnt vmcnt(0)")
        k(f"v_cmp_ne_u32 vcc, {256//NSH}, v3"); k(f"s_cbranch_vccz {Ld}")
        k("s_sleep 1"); k(f"s_sub_u32 {s(sCNT)}, {s(sCNT)}, 1"); k(f"s_cmp_lg_u32 {s(sCNT)}, 0"); k(f"s_cbranch_scc1 {Lp}")
        k.label(Ld); k("s_mov_b64 exec, -1")
        k.label(L); k("s_barrier")

    def prologue(self):
        k = self.k
        k(f"s_cmp_ge_u32 {s(sID)}, 256"); k("s_cbranch_scc1 L_END")
        for r, off in ((rK, 8), (rV, 16), (rX, 0), (rWS, 96), (rSH, 24), (rSS, 32), (sDP, 40), (rW1, 56), (rW3, 64), (rW2, 72), (rOUT, 80), (sDBG, 88)):
            k(f"s_load_dwordx2 {s(r,2)}, s[0:1], {off}")
        if self.prof: k(f"s_memrealtime {s(sSTAMP,2)}"); k("s_memtime s[98:99]"); self.nst = 1
        k("v_and_b32 v1, 63, v0"); k("v_lshrrev_b32 v2, 6, v0"); k(f"v_readfirstlane_b32 {s(sW)}, v2")
        for r, n in ((rK, 2621440), (rV, 2621440), (rX, 2621440), (rWS, WS_SIZE), (rSH, 5120), (rSS, 2621440), (rW1, 1966080), (rW3, 1966080), (rW2, 1966080), (rOUT, 2621440)):
            k(f"s_mov_b32 {s(r+2)}, {n}"); k(f"s_mov_b32 {s(r+3)}, 0x20000")
        k(f"s_and_b32 {s(sXG)}, {s(sID)}, 7"); k(f"s_lshr_b32 {s(sM)}, {s(sID)}, 3")
        k(f"s_lshl_b32 {s(sSB)}, {s(sXG)}, 5"); k(f"s_add_u32 {s(sSB)}, {s(sSB)}, {s(sM)}")
        k(f"s_and_b32 {s(sE)}, {s(sM)}, 1"); k(f"s_lshr_b32 {s(sT)}, {s(sM)}, 1"); k(f"s_mul_i32 {s(sT)}, {s(sT)}, 5")
        k(f"s_mul_i32 {s(sC0)}, {s(sXG)}, 80"); k(f"s_add_u32 {s(sC0)}, {s(sC0)}, {s(sT)}")
        k(f"s_lshl_b32 {s(sT)}, {s(sE)}, 1"); k(f"s_add_u32 {s(sC0)}, {s(sC0)}, {s(sT)}")
        k(f"s_lshr_b32 {s(sR)}, {s(sXG)}, 2"); k(f"s_lshl_b32 {s(sR)}, {s(sR)}, 3"); k(f"s_lshr_b32 {s(sT)}, {s(sM)}, 2"); k(f"s_add_u32 {s(sR)}, {s(sR)}, {s(sT)}")
        k(f"s_and_b32 {s(sC)}, {s(sXG)}, 3"); k(f"s_lshl_b32 {s(sC)}, {s(sC)}, 2"); k(f"s_and_b32 {s(sT)}, {s(sM)}, 3"); k(f"s_add_u32 {s(sC)}, {s(sC)}, {s(sT)}")

    def phase0(self):
        k = self.k
        VO, KO = 4, 8
        vT16 = 12
        SH = 14
        SS = 20
        k(f"v_lshlrev_b32 v{vT16}, 4, v0")
        k("v_lshrrev_b32 v2, 4, v0"); k("v_mul_u32_u24 v2, 52, v2")
        k(f"s_mul_i32 {s(sT)}, {s(sSB)}, 10240")
        for i in range(4):
            if i: k(f"v_add_u32 v2, 832, v2"); k(f"s_add_u32 {s(sT)}, {s(sT)}, 4096")
            k("v_lshrrev_b32 v3, 2, v2"); k("v_and_b32 v3, 0xc0, v3")
            k(f"v_xad_u32 v{VO+i}, v{vT16}, v3, {s(sT)}")
            k(f"v_subrev_u32 v{KO+i}, 5120, v{VO+i}")
        k(f"s_lshl_b32 {s(sT+1)}, {s(sW)}, 10")
        k.wait_lg0()
        Lz = k.newlabel("z")
        k(f"s_cmp_lg_u32 {s(sID)}, 0"); k(f"s_cbranch_scc1 {Lz}")
        for i in range(4): k(f"v_mov_b32 v{40+i}, 0")
        k("v_lshlrev_b32 v2, 7, v0"); k(f"v_add_u32 v2, {WS_F3}, v2")
        k(f"buffer_store_dwordx4 v[40:43], v2, {s(rWS,4)}, 0 offen sc1")
        k("v_lshlrev_b32 v2, 8, v1")
        k(f"buffer_store_dword v40, v2, {s(rWS,4)}, 0 offen sc1")
        k.label(Lz)
        NT = "nt"
        def dma(srd, vo, lbase, i):
            k(f"s_add_u32 m0, {s(sT+1)}, {lbase + 4096*i}")
            k.vm(f"buffer_load_dwordx4 v{vo+i}, {s(srd,4)}, 0 offen {NT} lds", "p0")
        L1 = k.newlabel("c"); L2 = k.newlabel("c")
        k(f"s_cmp_eq_u32 {s(sW)}, 3"); k(f"s_cbranch_scc1 {L1}")
        dma(rK, KO, L_P0K, 3)
        k(f"s_cmp_eq_u32 {s(sW)}, 2"); k(f"s_cbranch_scc1 {L1}")
        dma(rV, VO, L_P0V, 2); dma(rX, VO, L_P0X, 2)
        k.label(L1)
        for i in range(3): dma(rK, KO, L_P0K, i)
        for i in range(2): dma(rV, VO, L_P0V, i)
        for i in range(2): dma(rX, VO, L_P0X, i)
        k("v_lshlrev_b32 v2, 3, v0"); k(f"s_movk_i32 {s(sT+2)}, 0x1000")
        k.vm(f"buffer_load_dwordx2 {v(SH,2)}, v2, {s(rSH,4)}, 0 offen", "p0")
        k.vm(f"buffer_load_dwordx2 {v(SH+2,2)}, v2, {s(rSH,4)}, 0 offen offset:2048", "p0")
        k.vm(f"buffer_load_dwordx2 {v(SH+4,2)}, v2, {s(rSH,4)}, {s(sT+2)} offen", "p0")
        k(f"v_cmp_eq_u32 {s(sX+2,2)}, 0, v0")
        k(f"v_subrev_u32 v2, 8, v{vT16}"); k("v_mov_b32 v3, 0x7ffffff0"); k(f"v_cndmask_b32 v2, v2, v3, {s(sX+2,2)}")
        k(f"s_lshl_b32 {s(sT+2)}, {s(sC0)}, 12")
        for j in range(3):
            k.vm(f"buffer_load_dwordx4 {v(SS+6*j+2,4)}, v{vT16}, {s(rSS,4)}, {s(sT+2)} offen {NT}", "ss")
            k.vm(f"buffer_load_dwordx2 {v(SS+6*j,2)}, v2, {s(rSS,4)}, {s(sT+2)} offen {NT}", "ss")
            if j < 2: k(f"s_add_u32 {s(sT+2)}, {s(sT+2)}, 4096")
        k(f"s_lshr_b32 {s(sT+2)}, {s(sC0)}, 1"); k(f"s_lshl_b32 {s(sT+2)}, {s(sT+2)}, 2")
        k(f"s_load_dwordx2 {s(sDV,2)}, {s(sDP,2)}, {s(sT+2)}")
        Lw2 = k.newlabel("w2"); Lj = k.newlabel("j")
        k(f"s_cmp_ge_u32 {s(sID)}, 160"); k(f"s_cbranch_scc1 {Lw2}")
        k(f"s_lshl_b32 {s(sT+2)}, {s(sM)}, 5"); k(f"s_lshl_b32 {s(sT+3)}, {s(sW)}, 3"); k(f"s_add_u32 {s(sT+2)}, {s(sT+2)}, {s(sT+3)}")
        k(f"s_mul_i32 {s(sT+2)}, {s(sT+2)}, 3072"); k(f"s_mul_i32 {s(sT+3)}, {s(sXG)}, 384"); k(f"s_add_u32 {s(sT+2)}, {s(sT+2)}, {s(sT+3)}")
        k(f"s_mul_i32 {s(sT+3)}, {s(sW)}, 3072")
        for i in range(3):
            k(f"v_add_u32 v2, {64*i}, v1"); k("v_mul_u32_u24 v3, 2731, v2"); k("v_lshrrev_b32 v3, 16, v3")
            k(f"v_mul_u32_u24 v3, {3072 - 24*16}, v3"); k("v_lshl_add_u32 v2, v2, 4, v3")
            for mat, srd in ((0, rW1), (1, rW3)):
                k(f"s_add_u32 m0, {s(sT+3)}, {L_RP + mat*12288 + 1024*i}")
                k(f"buffer_load_dwordx4 v2, {s(srd,4)}, {s(sT+2)} offen {NT} lds")
        k(f"s_branch {Lj}")
        k.label(Lw2)
        k(f"s_sub_u32 {s(sT+4)}, {s(sID)}, 160"); k(f"s_lshr_b32 {s(sT+2)}, {s(sT+4)}, 1"); k(f"s_lshl_b32 {s(sT+2)}, {s(sT+2)}, 5")
        k(f"s_lshl_b32 {s(sT+3)}, {s(sW)}, 3"); k(f"s_add_u32 {s(sT+2)}, {s(sT+2)}, {s(sT+3)}"); k(f"s_mul_i32 {s(sT+2)}, {s(sT+2)}, 1280")
        k(f"s_and_b32 {s(sT+3)}, {s(sT+4)}, 1"); k(f"s_mul_i32 {s(sT+3)}, {s(sT+3)}, 640"); k(f"s_add_u32 {s(sT+2)}, {s(sT+2)}, {s(sT+3)}")
        k(f"s_mul_i32 {s(sT+3)}, {s(sW)}, 5120")
        for i in range(5):
            k(f"v_add_u32 v2, {64*i}, v1"); k("v_mul_u32_u24 v3, 1639, v2"); k("v_lshrrev_b32 v3, 16, v3")
            k(f"v_mul_u32_u24 v3, {1280 - 40*16}, v3"); k("v_lshl_add_u32 v2, v2, 4, v3")
            k(f"s_add_u32 m0, {s(sT+3)}, {L_RP + 1024*i}")
            k(f"buffer_load_dwordx4 v2, {s(rW2,4)}, {s(sT+2)} offen {NT} lds")
        k(f"buffer_load_dword v255, v1, {s(rSH,4)}, 0 offen")
        k.label(Lj)
        k.vmq += ["rp"] * 6
        k(f"s_getpc_b64 {s(sT+2,2)}"); k.label("L_PC")
        k(f"s_lshl_b32 {s(sT+4)}, {s(sW)}, 5"); k(f"s_add_u32 {s(sT+4)}, {s(sT+4)}, {s(sM)}"); k(f"s_lshl_b32 {s(sT+4)}, {s(sT+4)}, 8")
        k(f"v_lshlrev_b32 v2, 2, v1"); k(f"v_add_u32 v2, {s(sT+4)}, v2"); k("v_min_u32 v2, L_END-L_PC, v2")
        k.vm(f"global_load_dword v254, v2, {s(sT+2,2)}", "rp")
        for i in range(4): k(f"v_mov_b32 v{40+i}, 0")
        k(f"v_cmp_gt_u32 vcc, 90, v0"); k(f"s_and_saveexec_b64 {s(sX,2)}, vcc")
        k(f"ds_write_b128 v{vT16}, v[40:43] offset:{L_U}")
        k(f"s_mov_b64 exec, {s(sX,2)}")
        k("v_lshrrev_b32 v2, 1, v0"); k(f"v_mul_u32_u24 v2, {CSTR}, v2"); k("v_and_b32 v3, 1, v0"); k("v_lshl_add_u32 v2, v3, 4, v2")
        k(f"v_cmp_gt_u32 vcc, 24, v0"); k(f"s_and_saveexec_b64 {s(sX,2)}, vcc")
        k(f"ds_write_b128 v2, v[40:43] offset:{L_TOEP + 4096}")
        k(f"s_mov_b64 exec, {s(sX,2)}")
        vTR = 13
        k("v_bfe_u32 v2, v1, 2, 2")
        k("v_lshrrev_b32 v3, 4, v1"); k("v_lshlrev_b32 v3, 1, v3")
        k("v_bfe_u32 v38, v1, 1, 1"); k("v_add_u32 v3, v3, v38")
        k("v_bfe_u32 v38, v0, 6, 1"); k("v_lshl_add_u32 v3, v38, 3, v3")
        k("v_lshlrev_b32 v38, 2, v2"); k("v_xor_b32 v3, v3, v38"); k("v_lshlrev_b32 v3, 4, v3")
        k("v_mul_u32_u24 v2, 1280, v2"); k("v_add_u32 v3, v3, v2")
        k("v_and_b32 v2, 1, v1"); k("v_lshl_add_u32 v3, v2, 3, v3")
        k("v_lshrrev_b32 v2, 7, v0"); k("v_lshl_add_u32 v3, v2, 8, v3")
        k(f"v_add_u32 v{vTR}, {L_P0K}, v3")
        k(f"s_mul_i32 {s(sT+2)}, {s(sSB)}, 10240"); k(f"s_add_u32 {s(sT+3)}, {s(sT+2)}, {WS_XT}"); k(f"s_add_u32 {s(sT+2)}, {s(sT+2)}, {WS_KVT}")
        k.wait_vm("p0"); k("s_barrier")
        Lz = k.newlabel("z")
        k(f"s_or_b32 {s(sT+4)}, {s(sID)}, {s(sW)}"); k(f"s_cmp_lg_u32 {s(sT+4)}, 0"); k(f"s_cbranch_scc1 {Lz}")
        k("v_mov_b32 v2, 0"); k("v_mov_b32 v3, 1"); k("s_mov_b64 exec, 1")
        k(f"global_store_dword v2, v3, {s(sDBG,2)} sc1"); k("s_mov_b64 exec, -1")
        k.label(Lz)
        self.stamp()
        def task(i):
            P = 40; Vv = 46; Xx = 52; Q = 56; W10, W32 = 61, 62; KS = 64; O = 72
            for b in range(3): k.lg(f"ds_read_b64_tr_b16 {v(P+2*b,2)}, v{vTR} offset:{b*5120 + 512*i}", "k")
            for b in range(2): k.lg(f"ds_read_b64_tr_b16 {v(Vv+2*b,2)}, v{vTR} offset:{L_P0V-L_P0K + b*5120 + 512*i}", "v")
            for b in range(2): k.lg(f"ds_read_b64_tr_b16 {v(Xx+2*b,2)}, v{vTR} offset:{L_P0X-L_P0K + b*5120 + 512*i}", "x")
            k(f"v_alignbit_b32 v{W10}, v{SH+2*i}, v{SH+2*i}, 16"); k(f"v_alignbit_b32 v{W32}, v{SH+2*i+1}, v{SH+2*i+1}, 16")
            k.wait_lg("k")
            for j in range(5): k(f"v_alignbit_b32 v{Q+j}, v{P+j+1}, v{P+j}, 16")
            for j in range(4):
                k(f"v_dot2_f32_bf16 v{KS+2*j+1}, v{P+j+1}, v{W32}, 0"); k(f"v_dot2_f32_bf16 v{KS+2*j}, v{Q+j}, v{W32}, 0")
            for j in range(4):
                k(f"v_dot2_f32_bf16 v{KS+2*j+1}, v{P+j+2}, v{W10}, v{KS+2*j+1}"); k(f"v_dot2_f32_bf16 v{KS+2*j}, v{Q+j+1}, v{W10}, v{KS+2*j}")
            k.wait_lg("x")
            k(f"buffer_store_dwordx4 {v(Xx,4)}, v{vT16}, {s(rWS,4)}, {s(sT+3)} offen sc1")
            for j in range(4):
                k(f"v_lshlrev_b32 v{Q+j}, 16, v{Vv+j}"); k(f"v_and_b32 v{Vv+j}, 0xffff0000, v{Vv+j}")
            for j in range(4):
                k(f"v_mul_f32 v{KS+2*j}, v{KS+2*j}, v{Q+j}"); k(f"v_mul_f32 v{KS+2*j+1}, v{KS+2*j+1}, v{Vv+j}")
            for j in range(4): k(f"v_cvt_pk_bf16_f32 v{O+j}, v{KS+2*j}, v{KS+2*j+1}")
            k(f"buffer_store_dwordx4 {v(O,4)}, v{vT16}, {s(rWS,4)}, {s(sT+2)} offen sc1")
            if i < 2: k(f"s_add_u32 {s(sT+2)}, {s(sT+2)}, 4096"); k(f"s_add_u32 {s(sT+3)}, {s(sT+3)}, 4096")
        k.wait_lg0()
        task(0); task(1)
        Ls = k.newlabel("st"); Lj = k.newlabel("j")
        k(f"s_cmp_ge_u32 {s(sW)}, 2"); k(f"s_cbranch_scc1 {Ls}")
        task(2)
        k(f"s_branch {Lj}")
        k.label(Ls)
        k("v_lshrrev_b32 v2, 4, v1"); k("v_mul_u32_u24 v3, 1280, v2"); k("v_and_b32 v38, 15, v1"); k("v_lshl_add_u32 v3, v38, 4, v3")
        k(f"s_sub_u32 {s(sT+4)}, {s(sW)}, 2"); k(f"s_mul_i32 {s(sT+5)}, {s(sT+4)}, 5120"); k(f"s_add_u32 {s(sT+5)}, {s(sT+5)}, {L_P0X}")
        k(f"v_add_u32 v3, {s(sT+5)}, v3")
        for j in range(5): k(f"ds_read_b128 {v(40+4*j,4)}, v3 offset:{256*j}")
        k(f"s_mov_b32 {s(sT+5)}, 0x3f803f80")
        k("s_waitcnt lgkmcnt(0)")
        for j in range(20):
            k(f"v_dot2_f32_bf16 v60, v{40+j}, {s(sT+5)}, {'0' if j==0 else 'v60'}"); k(f"v_dot2_f32_bf16 v61, v{40+j}, v{40+j}, {'0' if j==0 else 'v61'}")
        for r in (8, 4, 2, 1):
            k(f"v_add_f32_dpp v60, v60, v60 row_ror:{r} row_mask:0xf bank_mask:0xf"); k(f"v_add_f32_dpp v61, v61, v61 row_ror:{r} row_mask:0xf bank_mask:0xf")
        k(f"v_mul_f32 v60, {1.0/640!r}, v60"); k(f"v_mul_f32 v61, {1.0/640!r}, v61")
        k("v_fma_f32 v61, -v60, v60, v61"); k("v_max_f32 v61, 0, v61"); k(f"v_add_f32 v61, {1e-5!r}, v61"); k("v_rsq_f32 v61, v61")
        k("v_mul_f32 v60, v60, v61"); k("v_sub_f32 v60, 0, v60")
        k("v_cmp_eq_u32 vcc, 0, v38"); k("v_cndmask_b32 v60, v60, v61, vcc")
        k("v_lshlrev_b32 v2, 2, v2"); k("v_lshl_add_u32 v2, v38, 5, v2")
        k(f"s_lshl_b32 {s(sT+5)}, {s(sSB)}, 6"); k(f"s_lshl_b32 {s(sT+4)}, {s(sT+4)}, 4"); k(f"s_add_u32 {s(sT+5)}, {s(sT+5)}, {s(sT+4)}"); k(f"s_add_u32 {s(sT+5)}, {s(sT+5)}, {WS_STAT}")
        k("v_cmp_gt_u32 vcc, 2, v38"); k(f"s_and_saveexec_b64 {s(sX,2)}, vcc")
        k(f"buffer_store_dword v60, v2, {s(rWS,4)}, {s(sT+5)} offen sc1")
        k(f"s_mov_b64 exec, {s(sX,2)}")
        k.label(Lj)
        self.stamp()
        k("s_waitcnt vmcnt(11)")
        k(f"s_and_b32 {s(sT+2)}, {s(sC0)}, 1"); k(f"s_lshl_b32 {s(sT+2)}, {s(sT+2)}, 4"); k(f"s_lshr_b64 {s(sDV,2)}, {s(sDV,2)}, {s(sT+2)}")
        k(f"s_lshl_b32 {s(sDV+2)}, {s(sDV+1)}, 16"); k(f"s_and_b32 {s(sDV+1)}, {s(sDV)}, 0xffff0000"); k(f"s_lshl_b32 {s(sDV)}, {s(sDV)}, 16")
        k(f"s_mov_b32 {s(sT+2)}, 0xffff")
        k(f"v_sub_u32 v2, {255*16}, v{vT16}")
        for j in range(3):
            D = SS + 6*j
            k(f"v_lshlrev_b32 v3, 16, v{D+2}"); k(f"v_add_f32 v3, {s(sDV+j)}, v3"); k("v_cvt_pk_bf16_f32 v3, v3, v3")
            k(f"v_bfi_b32 v3, {s(sT+2)}, v3, v{D+2}"); k(f"v_cndmask_b32 v{D+2}, v{D+2}, v3, {s(sX+2,2)}")
            O = 40 + 16*(j % 2)
            for c in range(4):
                for t in range(4):
                    hi = 5 - t - (c >> 1)
                    if c % 2 == 0: k(f"v_alignbit_b32 v{O+4*c+t}, v{D+hi}, v{D+hi}, 16")
                    else: k(f"v_bfi_b32 v{O+4*c+t}, {s(sT+2)}, v{D+hi}, v{D+hi-1}")
                k(f"ds_write_b128 v2, {v(O+4*c,4)} offset:{L_TOEP + (4*j+c)*CSTR}")
        k.wait_vm0()
        Li = k.newlabel("i"); Lp = k.newlabel("ip")
        k(f"s_cmp_lg_u32 {s(sW)}, 0"); k(f"s_cbranch_scc1 {Li}")
        k("v_mov_b32 v2, 0"); k(f"s_mov_b32 {s(sCNT)}, 0x40000")
        k.label(Lp)
        k(f"global_load_dword v3, v2, {s(sDBG,2)} sc1"); k("s_waitcnt vmcnt(0)")
        k("v_cmp_eq_u32 vcc, 0, v3"); k(f"s_cbranch_vccz {Li}")
        k("s_sleep 1"); k(f"s_sub_u32 {s(sCNT)}, {s(sCNT)}, 1"); k(f"s_cmp_lg_u32 {s(sCNT)}, 0"); k(f"s_cbranch_scc1 {Lp}")
        k.label(Li)
        k("s_barrier")
        self.arrive(0)
        self.stamp()
        Lw2 = k.newlabel("w2"); Lj = k.newlabel("j")
        k("v_lshlrev_b32 v39, 4, v1")
        k("v_bfe_u32 v2, v1, 2, 2"); k("v_lshrrev_b32 v3, 4, v1"); k("v_and_b32 v38, 3, v1")
        k(f"s_cmp_ge_u32 {s(sID)}, 160"); k(f"s_cbranch_scc1 {Lw2}")
        k("v_lshl_add_u32 v2, v3, 2, v2"); k("v_mul_u32_u24 v2, 384, v2")
        k(f"s_mul_i32 {s(sT+2)}, {s(sW)}, 48"); k(f"s_add_u32 {s(sT+2)}, {s(sT+2)}, {L_RP}"); k(f"v_add_u32 v2, {s(sT+2)}, v2")
        k("v_lshl_add_u32 v4, v38, 3, v2")
        k("v_and_b32 v3, 1, v38"); k("v_mul_u32_u24 v3, 12288, v3"); k("v_lshrrev_b32 v38, 1, v38"); k("v_lshl_add_u32 v3, v38, 3, v3")
        k("v_add3_u32 v5, v2, v3, 32")
        k(f"s_lshl_b32 {s(sT+2)}, {s(sXG)}, 3"); k(f"s_add_u32 {s(sT+2)}, {s(sT+2)}, {s(sW)}"); k(f"s_mul_i32 {s(sT+2)}, {s(sT+2)}, 20"); k(f"s_add_u32 {s(sT+2)}, {s(sT+2)}, {s(sM)}")
        k(f"s_mul_i32 {s(sT+2)}, {s(sT+2)}, 3072"); k(f"s_add_u32 {s(sT+2)}, {s(sT+2)}, {WS_W13}"); k(f"s_add_u32 {s(sT+3)}, {s(sT+2)}, {80*3072}")
        for ci in range(2):
            for t in range(3):
                O = 40 + 4*(3*ci + t)
                for h in range(2):
                    off = 192*ci + 16*384*h + (12288 if t == 1 else 0)
                    k(f"ds_read_b64_tr_b16 {v(O+2*h,2)}, v{5 if t==2 else 4} offset:{off}")
        k("s_waitcnt lgkmcnt(0)")
        for ci in range(2):
            for t in range(3):
                k(f"buffer_store_dwordx4 {v(40+4*(3*ci+t),4)}, v39, {s(rWS,4)}, {s(sT+2+ci)} offen offset:{1024*t} sc1")
        k(f"s_branch {Lj}")
        k.label(Lw2)
        k("v_lshl_add_u32 v2, v3, 3, v2"); k("v_mul_u32_u24 v2, 640, v2"); k("v_lshl_add_u32 v2, v38, 3, v2")
        k(f"s_mul_i32 {s(sT+2)}, {s(sW)}, 160"); k(f"s_add_u32 {s(sT+2)}, {s(sT+2)}, {L_RP}"); k(f"v_add_u32 v4, {s(sT+2)}, v2")
        k(f"s_sub_u32 {s(sT+4)}, {s(sID)}, 160"); k(f"s_and_b32 {s(sT+2)}, {s(sT+4)}, 1"); k(f"s_lshl_b32 {s(sT+2)}, {s(sT+2)}, 2"); k(f"s_add_u32 {s(sT+2)}, {s(sT+2)}, {s(sW)}")
        k(f"s_mul_i32 {s(sT+2)}, {s(sT+2)}, 48"); k(f"s_lshr_b32 {s(sT+4)}, {s(sT+4)}, 1"); k(f"s_add_u32 {s(sT+2)}, {s(sT+2)}, {s(sT+4)}")
        k(f"s_mul_i32 {s(sT+2)}, {s(sT+2)}, 5120"); k(f"s_add_u32 {s(sT+2)}, {s(sT+2)}, {WS_W2}"); k(f"s_add_u32 {s(sT+3)}, {s(sT+2)}, 4096")
        for t in range(5):
            for h in range(2): k(f"ds_read_b64_tr_b16 {v(40+4*t+2*h,2)}, v4 offset:{32*t + 4*640*h}")
        k("s_waitcnt lgkmcnt(0)")
        for t in range(5):
            k(f"buffer_store_dwordx4 {v(40+4*t,4)}, v39, {s(rWS,4)}, {s(sT+2+(t>>2))} offen offset:{1024*(t&3)} sc1")
        k.label(Lj)
        k("s_waitcnt vmcnt(0)"); k("s_barrier")
        self.arrive(1)
        self.stamp()

    def conv_stream(self, ops, FR, nslots):
        k = self.k
        first = {}; last = {}
        for i, (_, _, A_, B_) in enumerate(ops):
            for key in (A_, B_):
                first.setdefault(key, i); last[key] = i
        order = sorted(first, key=lambda x: first[x])
        free = list(range(nslots)); slot = {}; nxt = 0
        def issue(budget):
            nonlocal nxt
            while nxt < len(order) and free and budget > 0:
                key = order[nxt]; sl = free.pop(0); slot[key] = sl; r = FR + 4*sl
                if key[0] == "A":
                    k.lg(f"ds_read_b64 {v(r,2)}, v{key[1]} offset:{key[2]}", None); k.lg(f"ds_read_b64 {v(r+2,2)}, v{key[1]} offset:{key[2]+8}", key); budget -= 2
                else:
                    k.lg(f"ds_read_b128 {v(r,4)}, v{key[1]} offset:{key[2]}", key); budget -= 1
                nxt += 1
        issue(12)
        for i, (acc, fst, A_, B_) in enumerate(ops):
            while A_ not in slot or B_ not in slot: issue(2)
            k.wait_lg([A_, B_])
            k(f"v_mfma_f32_16x16x32_bf16 {v(acc,4)}, {v(FR+4*slot[A_],4)}, {v(FR+4*slot[B_],4)}, {'0' if fst else v(acc,4)}")
            for key in {A_, B_}:
                if last[key] == i: free.append(slot[key])
            issue(2)

    def conv_ops(self, tiles, nr, vA, vB, acc):
        ops = []
        for dr in range(nr):
            for m in range(max(tiles) + 1):
                for ti, T in reversed(list(enumerate(tiles))):
                    if T >= m:
                        ops.append((acc + 4*ti, dr == 0 and m == 0, ("A", vA, 64*(56 - 8*m + nr - 1 - dr)), ("B", vB, 192*(8*(T-m) + nr - 1 - dr))))
        return ops

    def phase1(self):
        k = self.k
        vAF, vBF, vAH, vBH = 4, 5, 6, 7
        vL16 = 39
        ACF, ACH, FR = 40, 56, 64
        for i in range(3):
            k(f"v_add_u32 v2, {64*i}, v1"); k("v_mul_u32_u24 v3, 21846, v2"); k("v_lshrrev_b32 v3, 16, v3")
            k(f"v_mul_u32_u24 v3, {10240-48}, v3"); k(f"v_lshl_add_u32 v{8+i}, v2, 4, v3")
        k(f"s_mul_i32 {s(sT+2)}, {s(sW)}, {64*10240}"); k(f"s_lshl_b32 {s(sT+3)}, {s(sC0)}, 4"); k(f"s_add_u32 {s(sT+2)}, {s(sT+2)}, {s(sT+3)}")
        k(f"s_add_u32 {s(sT+3)}, {s(sT+2)}, {WS_XT}"); k(f"s_add_u32 {s(sT+2)}, {s(sT+2)}, {WS_KVT}")
        k(f"s_mul_i32 {s(sT+4)}, {s(sW)}, 3072"); k(f"s_lshl_b32 {s(sT+5)}, {s(sW)}, 12"); k(f"s_add_u32 {s(sT+6)}, {s(sT+5)}, {WS_STAT}")
        k("v_and_b32 v2, 15, v1"); k("v_lshrrev_b32 v3, 4, v1")
        k("v_lshl_add_u32 v11, v2, 1, v3"); k("v_mul_u32_u24 v11, 48, v11")
        k("v_sub_u32 v12, 15, v2"); k("v_lshl_add_u32 v12, v3, 3, v12")
        k("v_and_b32 v13, 3, v12"); k(f"v_mul_u32_u24 v13, {CSTR}, v13"); k("v_and_b32 v12, 0xfc, v12"); k("v_lshl_add_u32 v12, v12, 1, v13")
        sCF, sCH = 74, 75
        k(f"s_lshr_b32 {s(sCF)}, {s(sW)}, 1"); k(f"s_add_u32 {s(sCF)}, {s(sCF)}, {s(sE)}")
        k(f"s_lshl_b32 {s(sCH)}, {s(sE)}, 1"); k(f"s_sub_u32 {s(sCH)}, 2, {s(sCH)}")
        k(f"s_and_b32 {s(sT)}, {s(sW)}, 1"); k(f"s_lshl_b32 {s(sT)}, {s(sT)}, 2"); k(f"s_sub_u32 {s(sT)}, 4, {s(sT)}")
        k(f"s_mul_i32 {s(sT+1)}, {s(sCF)}, {4*CSTR}"); k(f"s_lshl_b32 {s(sT+7)}, {s(sT)}, 6"); k(f"s_add_u32 {s(sT+1)}, {s(sT+1)}, {s(sT+7)}"); k(f"v_add_u32 v{vAF}, {s(sT+1)}, v12")
        k(f"s_lshl_b32 {s(sT+1)}, {s(sCF)}, 4"); k(f"s_mul_i32 {s(sT+7)}, {s(sT)}, 192"); k(f"s_add_u32 {s(sT+1)}, {s(sT+1)}, {s(sT+7)}"); k(f"s_add_u32 {s(sT+1)}, {s(sT+1)}, {L_U}"); k(f"v_add_u32 v{vBF}, {s(sT+1)}, v11")
        k(f"s_lshl_b32 {s(sT)}, {s(sW)}, 1"); k(f"s_sub_u32 {s(sT)}, 6, {s(sT)}")
        k(f"s_mul_i32 {s(sT+1)}, {s(sCH)}, {4*CSTR}"); k(f"s_lshl_b32 {s(sT+7)}, {s(sT)}, 6"); k(f"s_add_u32 {s(sT+1)}, {s(sT+1)}, {s(sT+7)}"); k(f"v_add_u32 v{vAH}, {s(sT+1)}, v12")
        k(f"s_lshl_b32 {s(sT+1)}, {s(sCH)}, 4"); k(f"s_mul_i32 {s(sT+7)}, {s(sT)}, 192"); k(f"s_add_u32 {s(sT+1)}, {s(sT+1)}, {s(sT+7)}"); k(f"s_add_u32 {s(sT+1)}, {s(sT+1)}, {L_U}"); k(f"v_add_u32 v{vBH}, {s(sT+1)}, v11")
        vOF = 14
        k("v_and_b32 v13, 1, v3"); k("v_lshlrev_b32 v13, 5, v13"); k("v_lshl_add_u32 v13, v2, 1, v13"); k("v_lshrrev_b32 v15, 1, v3"); k("v_add_u32 v13, v13, v15")
        k(f"s_and_b32 {s(sT)}, {s(sW)}, 1"); k(f"s_lshl_b32 {s(sT)}, {s(sT)}, 6"); k(f"v_add_u32 v{vOF}, {s(sT)}, v13")
        vXF, vSF, vGF = 15, 16, 17
        k(f"s_lshl_b32 {s(sT)}, {s(sCF)}, 4"); k(f"s_add_u32 {s(sT)}, {s(sT)}, {L_XI}"); k(f"v_mul_u32_u24 v{vXF}, 48, v{vOF}"); k(f"v_add_u32 v{vXF}, {s(sT)}, v{vXF}")
        k(f"v_lshlrev_b32 v{vSF}, 6, v{vOF}"); k(f"v_add_u32 v{vSF}, {L_ST}, v{vSF}")
        sHF, sHH = 68, 69
        k(f"s_add_u32 {s(sT)}, {s(sC0)}, {s(sCF)}"); k(f"s_lshr_b32 {s(sT+1)}, {s(sT)}, 1"); k(f"s_and_b32 {s(sT+1)}, {s(sT+1)}, 2")
        k(f"s_lshl_b32 {s(sHF)}, {s(sT)}, 6"); k(f"s_add_u32 {s(sHF)}, {s(sHF)}, {WS_HC}")
        k(f"v_lshrrev_b32 v13, 2, v{vOF}"); k(f"v_mul_u32_u24 v13, 40960, v13"); k(f"v_and_b32 v{vGF}, 3, v{vOF}"); k(f"v_xor_b32 v{vGF}, {s(sT+1)}, v{vGF}"); k(f"v_lshl_add_u32 v{vGF}, v{vGF}, 4, v13")
        vPH, vXH, vSH, vGH = 18, 19, 20, 21
        k("v_and_b32 v2, 127, v0")
        k("v_lshrrev_b32 v3, 3, v2"); k("v_bfe_u32 v13, v2, 1, 2"); k("v_lshl_add_u32 v3, v13, 4, v3"); k("v_lshlrev_b32 v3, 4, v3"); k("v_and_b32 v13, 1, v2"); k("v_lshl_add_u32 v3, v13, 3, v3")
        k(f"s_lshr_b32 {s(sT)}, {s(sW)}, 1"); k(f"s_lshl_b32 {s(sT+1)}, {s(sT)}, 10"); k(f"s_add_u32 {s(sT+1)}, {s(sT+1)}, {L_PART + 8192}"); k(f"v_add_u32 v{vPH}, {s(sT+1)}, v3")
        k(f"s_mul_i32 {s(sT+1)}, {s(sT)}, 3"); k(f"s_add_u32 {s(sT)}, {s(sT)}, 1"); k(f"s_cmp_eq_u32 {s(sE)}, 0"); k(f"s_cselect_b32 {s(sT)}, {s(sT+1)}, {s(sT)}"); k(f"s_lshl_b32 {s(sT)}, {s(sT)}, 5")
        k("v_lshrrev_b32 v3, 2, v2"); k(f"v_add_u32 v3, {s(sT)}, v3")
        k("v_and_b32 v2, 3, v2")
        k(f"s_lshl_b32 {s(sT)}, {s(sCH)}, 4"); k(f"s_add_u32 {s(sT)}, {s(sT)}, {L_XI}"); k(f"v_mul_u32_u24 v13, 48, v3"); k("v_lshl_add_u32 v13, v2, 2, v13"); k(f"v_add_u32 v{vXH}, {s(sT)}, v13")
        k(f"v_lshlrev_b32 v13, 6, v3"); k("v_lshl_add_u32 v13, v2, 3, v13"); k(f"v_add_u32 v{vSH}, {L_ST}, v13")
        k(f"s_add_u32 {s(sT)}, {s(sC0)}, {s(sCH)}"); k(f"s_lshr_b32 {s(sT+1)}, {s(sT)}, 1"); k(f"s_and_b32 {s(sT+1)}, {s(sT+1)}, 2")
        k(f"s_lshl_b32 {s(sHH)}, {s(sT)}, 6"); k(f"s_add_u32 {s(sHH)}, {s(sHH)}, {WS_HC}")
        k(f"v_lshrrev_b32 v13, 2, v3"); k(f"v_mul_u32_u24 v13, 40960, v13"); k("v_lshl_add_u32 v13, v2, 2, v13"); k(f"v_and_b32 v3, 3, v3"); k(f"v_xor_b32 v3, {s(sT+1)}, v3"); k(f"v_lshl_add_u32 v{vGH}, v3, 4, v13")
        vPW, vPR = 22, 23
        k(f"s_lshl_b32 {s(sT)}, {s(sW)}, 11"); k(f"s_add_u32 {s(sT+1)}, {s(sT)}, {L_PART}"); k(f"v_add_u32 v{vPW}, {s(sT+1)}, v{vL16}")
        k(f"s_xor_b32 {s(sT)}, {s(sT)}, 2048"); k(f"s_add_u32 {s(sT+1)}, {s(sT)}, {L_PART}"); k(f"v_add_u32 v{vPR}, {s(sT+1)}, v{vL16}")
        self.poll(0)
        self.stamp()
        k.vmq = []
        for i in range(3):
            k(f"s_add_u32 m0, {s(sT+4)}, {L_UD + 1024*i}"); k.vm(f"buffer_load_dwordx4 v{8+i}, {s(rWS,4)}, {s(sT+2)} offen sc1 lds", "u")
        for i in range(3):
            k(f"s_add_u32 m0, {s(sT+4)}, {L_XI + 1024*i}"); k.vm(f"buffer_load_dwordx4 v{8+i}, {s(rWS,4)}, {s(sT+3)} offen sc1 lds", "x")
        k(f"s_add_u32 m0, {s(sT+5)}, {L_ST}")
        for i in range(4): k.vm(f"buffer_load_dwordx4 v{vL16}, {s(rWS,4)}, {s(sT+6)} offen offset:{1024*i} sc1 lds", "x")
        k.wait_vm("u"); k.wait_lg0(); k("s_barrier")
        self.stamp()
        for ps in range(2):
            PO = 16384*ps
            full = self.conv_ops([4*ps+t for t in range(4)], 4, vAF, vBF, ACF)
            Le = k.newlabel("e"); Lj = k.newlabel("j")
            k(f"s_cmp_lg_u32 {s(sE)}, 0"); k(f"s_cbranch_scc1 {Le}")
            self.conv_stream(self.conv_ops([4*ps, 4*ps+3], 2, vAH, vBH, ACH) + full, FR, 16)
            k(f"s_branch {Lj}"); k.label(Le); k.lgq = []
            self.conv_stream(self.conv_ops([4*ps+1, 4*ps+2], 2, vAH, vBH, ACH) + full, FR, 16)
            k.label(Lj); k.lgq = []
            k(f"ds_write_b128 v{vPW}, {v(ACH,4)} offset:{PO+8192}"); k(f"ds_write_b128 v{vPW}, {v(ACH+4,4)} offset:{PO+8192+1024}")
            Lo = k.newlabel("o"); Lj = k.newlabel("j")
            k(f"s_bitcmp1_b32 {s(sW)}, 0"); k(f"s_cbranch_scc1 {Lo}")
            k(f"ds_write_b128 v{vPW}, {v(ACF+8,4)} offset:{PO}"); k(f"ds_write_b128 v{vPW}, {v(ACF+12,4)} offset:{PO+1024}")
            k(f"s_branch {Lj}"); k.label(Lo)
            k(f"ds_write_b128 v{vPW}, {v(ACF,4)} offset:{PO}"); k(f"ds_write_b128 v{vPW}, {v(ACF+4,4)} offset:{PO+1024}")
            k("s_waitcnt lgkmcnt(0)")
            for i in range(8): k(f"v_mov_b32 v{ACF+i}, v{ACF+8+i}")
            k.label(Lj)
            if ps == 0: k.wait_vm0()
            k("s_waitcnt lgkmcnt(0)"); k("s_barrier")
            E = 64
            PB = 128*ps
            k.lg(f"ds_read_b128 {v(E,4)}, v{vPR} offset:{PO}", "p"); k.lg(f"ds_read_b128 {v(E+4,4)}, v{vPR} offset:{PO+1024}", "p")
            k.lg(f"ds_read_b128 {v(E+8,4)}, v{vXF} offset:{48*PB}", "x")
            for i in range(4): k.lg(f"ds_read_b128 {v(E+12+4*i,4)}, v{vSF} offset:{64*PB+16*i}", "s")
            H = 100
            for w_ in range(4): k.lg(f"ds_read_b64 {v(H+2*w_,2)}, v{vPH} offset:{PO+2048*w_}", "hp")
            k.lg(f"ds_read_b32 v{H+8}, v{vXH} offset:{48*PB}", "hp"); k.lg(f"ds_read_b64 {v(H+10,2)}, v{vSH} offset:{64*PB}", "hp"); k.lg(f"ds_read_b64 {v(H+12,2)}, v{vSH} offset:{64*PB+32}", "hp")
            k.wait_lg("p")
            for i in range(8): k(f"v_add_f32 v{ACF+i}, v{ACF+i}, v{E+i}")
            for i in range(4): k(f"v_permlane16_swap_b32 v{ACF+i}, v{ACF+4+i}")
            k.wait_lg("s")
            X = E + 28
            for i in range(4):
                k(f"v_lshlrev_b32 v{X+2*i}, 16, v{E+8+i}"); k(f"v_and_b32 v{X+2*i+1}, 0xffff0000, v{E+8+i}")
            for i in range(8): k(f"v_fma_f32 v{E+12+i}, v{X+i}, v{E+12+i}, v{E+20+i}")
            for i in range(8): k(f"v_fmac_f32 v{X+i}, v{E+12+i}, v{ACF+i}")
            for i in range(4): k(f"v_cvt_pk_bf16_f32 v{E+i}, v{X+2*i}, v{X+2*i+1}")
            k(f"buffer_store_dwordx4 {v(E,4)}, v{vGF}, {s(rWS,4)}, {s(sHF)} offen sc1")
            k.wait_lg("hp")
            for r in range(2):
                k(f"v_add_f32 v{H+r}, v{H+r}, v{H+2+r}"); k(f"v_add_f32 v{H+4+r}, v{H+4+r}, v{H+6+r}")
            k(f"v_lshlrev_b32 v{H+2}, 16, v{H+8}"); k(f"v_and_b32 v{H+3}, 0xffff0000, v{H+8}")
            for r in range(2):
                k(f"v_add_f32 v{H+r}, v{H+r}, v{H+4+r}"); k(f"v_fma_f32 v{H+10+r}, v{H+2+r}, v{H+10+r}, v{H+12+r}")
            for r in range(2): k(f"v_fmac_f32 v{H+2+r}, v{H+10+r}, v{H+r}")
            k(f"v_cvt_pk_bf16_f32 v{H+8}, v{H+2}, v{H+3}")
            k(f"buffer_store_dword v{H+8}, v{vGH}, {s(rWS,4)}, {s(sHH)} offen sc1")
            if ps == 0:
                k(f"s_add_u32 {s(sHF)}, {s(sHF)}, {32*40960}"); k(f"s_add_u32 {s(sHH)}, {s(sHH)}, {32*40960}")
            self.stamp()
        k("s_waitcnt vmcnt(0)"); k("s_barrier")
        self.arrive(2)
        self.stamp()

    def interleave(self, mf, fill, per=2):
        k = self.k; fi = 0; credit = 0
        if mf and mf[0].get("wait"): k.wait_lg(mf[0]["wait"])
        for i, m in enumerate(mf):
            k(m["text"])
            if i + 1 < len(mf) and mf[i+1].get("wait"): k.wait_lg(mf[i+1]["wait"])
            for x in m.get("scal", []): x() if callable(x) else k(x)
            credit = min(credit, 0) + per
            for x in m.get("post", []):
                x(); credit -= 1
            while fi < len(fill) and credit > 0 and fill[fi][2] <= i:
                c, fn, _ = fill[fi]; fn(); credit -= c; fi += 1
        while fi < len(fill): fill[fi][1](); fi += 1

    def g1_epilogue(self, AC, first_idx=2):
        k = self.k; P = []
        C1, C3, CG, CU = 24, 28, 32, 36
        ST = {"m": 40, 0: 43, 1: 46}; OUT = 148
        def add(t, c=1): P.append((c, (lambda t=t: k(t)), first_idx))
        def swi(G, U, cg, cu, st):
            nm, nl, ve = st, st+1, st+2
            for r in range(4): add(f"v_fmac_f32 v{G+r}, v{nm}, v{cg+r}")
            for r in range(4): add(f"v_fmac_f32 v{U+r}, v{nm}, v{cu+r}")
            for r in range(4): add(f"v_mul_f32 v{U+r}, v{G+r}, v{U+r}")
            for r in range(4): add(f"v_mul_f32 v{G+r}, v{G+r}, v{nl}")
            for r in range(4): add(f"v_exp_f32 v{G+r}, v{G+r}", 2)
            for r in range(4): add(f"v_fma_f32 v{G+r}, v{G+r}, v{ve}, v{ve}")
            for r in range(4): add(f"v_rcp_f32 v{G+r}, v{G+r}", 2)
            for r in range(4): add(f"v_mul_f32 v{U+r}, v{U+r}, v{G+r}")
        for a_ in range(2):
            swi(AC+12*a_, AC+12*a_+4, C1, C3, ST[a_])
            add(f"v_cvt_pk_bf16_f32 v{OUT+2*a_}, v{AC+12*a_+4}, v{AC+12*a_+5}"); add(f"v_cvt_pk_bf16_f32 v{OUT+2*a_+1}, v{AC+12*a_+6}, v{AC+12*a_+7}")
        for r in range(4): add(f"v_permlane16_swap_b32 v{AC+8+r}, v{AC+20+r}")
        add(f"v_permlane16_swap_b32 v{OUT}, v{OUT+2}"); add(f"v_permlane16_swap_b32 v{OUT+1}, v{OUT+3}")
        P.append((1, lambda: k.vm(f"buffer_store_dwordx4 {v(OUT,4)}, v13, {s(rWS,4)}, {s(sHO)} offen sc1", "hh"), first_idx))
        swi(AC+8, AC+20, CG, CU, ST["m"])
        add(f"v_cvt_pk_bf16_f32 v{OUT+4}, v{AC+20}, v{AC+21}"); add(f"v_cvt_pk_bf16_f32 v{OUT+5}, v{AC+22}, v{AC+23}")
        P.append((1, lambda: k.vm(f"buffer_store_dwordx2 {v(OUT+4,2)}, v14, {s(rWS,4)}, {s(sHO)} offen sc1", "hh"), first_idx))
        return P

    def g1_stats(self, idx):
        k = self.k; P = []
        def add(t, c=1): P.append((c, (lambda t=t: k(t)), idx))
        T = 50
        P.append((1, lambda: k.lg(f"ds_read2st64_b32 {v(T,2)}, v18 offset0:0 offset1:2", "st"), idx))
        P.append((1, lambda: k.lg(f"ds_read2st64_b32 {v(T+2,2)}, v18 offset0:4 offset1:6", "st"), idx))
        P.append((1, lambda: k.lg(f"ds_read2st64_b32 {v(T+4,2)}, v17 offset0:0 offset1:8", "st"), idx))
        P.append((1, lambda: k.lg(f"ds_read2st64_b32 {v(T+6,2)}, v17 offset0:16 offset1:24", "st"), idx))
        return P
    def g1_stats2(self, idx):
        k = self.k; P = []
        def add(t, c=1): P.append((c, (lambda t=t: k(t)), idx))
        T = 50
        P.append((0, lambda: k.wait_lg("st"), idx))
        for i in range(4): add(f"v_add_f32 v{T+2*i}, v{T+2*i}, v{T+2*i+1}")
        add(f"v_add_f32 v{T}, v{T}, v{T+2}"); add(f"v_add_f32 v{T+4}, v{T+4}, v{T+6}")
        add(f"v_mul_f32 v40, {-1.0/640!r}, v{T}")
        add(f"v_mul_f32 v42, {1.0/640!r}, v{T+4}")
        add(f"v_fma_f32 v42, -v40, v40, v42"); add("v_max_f32 v42, 0, v42"); add(f"v_add_f32 v42, {1e-5!r}, v42")
        add("v_rsq_f32 v41, v42", 2); add("v_mov_b32 v43, v40"); add(f"v_mul_f32 v41, {-1.4426950408889634!r}, v41")
        add("v_mov_b32 v46, v40"); add("v_mov_b32 v45, v42"); add("v_mov_b32 v48, v42"); add("v_mov_b32 v44, v41"); add("v_mov_b32 v47, v41")
        add("v_permlane16_swap_b32 v43, v46"); add("v_permlane16_swap_b32 v45, v48"); add("v_permlane16_swap_b32 v44, v47")
        return P

    def phase2(self):
        k = self.k
        HB = 4; ONES = 20; SA = 60; AC0 = 76; HF = 124
        L_GR = 81920; L_SM = L_GR + 8192
        self.poll(1)
        k("v_lshlrev_b32 v12, 4, v1")
        k(f"s_lshl_b32 {s(sT)}, {s(sC)}, 2"); k(f"s_add_u32 {s(sT)}, {s(sT)}, {s(sW)}"); k(f"s_mul_i32 {s(sT)}, {s(sT)}, {20*3072}"); k(f"s_add_u32 {s(sT)}, {s(sT)}, {WS_W13}")
        k.vmq = []
        for q in range(4):
            k(f"s_add_u32 {s(sT+1)}, {s(sW)}, {q}"); k(f"s_and_b32 {s(sT+1)}, {s(sT+1)}, 3"); k(f"s_mul_i32 {s(sT+1)}, {s(sT+1)}, {5*3072}"); k(f"s_add_u32 {s(sT+1)}, {s(sT+1)}, {s(sT)}")
            for jj in range(5):
                for t in range(3):
                    k.vm(f"buffer_load_dwordx4 {a(12*(5*q+jj)+4*t,4)}, v12, {s(rWS,4)}, {s(sT+1)} offen offset:{1024*t} sc1", ("w", 5*q+jj))
                if jj < 4: k(f"s_add_u32 {s(sT+1)}, {s(sT+1)}, 3072")
        k("v_lshrrev_b32 v2, 4, v1"); k("v_and_b32 v3, 15, v1")
        k("v_lshrrev_b32 v49, 2, v1"); k("v_lshlrev_b32 v49, 6, v49")
        k("v_and_b32 v50, 3, v1"); k("v_lshl_add_u32 v49, v50, 3, v49")
        k("v_and_b32 v50, 1, v2"); k("v_lshl_add_u32 v49, v50, 5, v49")
        for q in range(4):
            k(f"s_add_u32 {s(sT+1)}, {s(sW)}, {q}"); k(f"s_and_b32 {s(sT+1)}, {s(sT+1)}, 3"); k(f"s_mul_i32 {s(sT+1)}, {s(sT+1)}, 10240")
            k(f"v_add_u32 v{HB+2*q}, {s(sT+1)}, v49"); k(f"v_xor_b32 v{HB+2*q+1}, 32, v{HB+2*q}")
        k("v_mul_u32_u24 v51, 49152, v50"); k("v_lshl_add_u32 v51, v3, 4, v51"); k("v_lshrrev_b32 v52, 1, v2")
        k("v_lshl_add_u32 v13, v52, 8, v51"); k("v_lshl_add_u32 v14, v52, 3, v51"); k("v_add_u32 v14, 512, v14")
        k(f"s_lshl_b32 {s(sT+1)}, {s(sW)}, 11"); k(f"s_add_u32 {s(sT+1)}, {s(sT+1)}, {L_GR}"); k(f"v_add_u32 v15, {s(sT+1)}, v12")
        k(f"s_lshl_b32 {s(sT+1)}, {s(sW)}, 9"); k(f"s_add_u32 {s(sT+1)}, {s(sT+1)}, {L_SM}"); k("v_lshlrev_b32 v16, 2, v1"); k(f"v_add_u32 v16, {s(sT+1)}, v16")
        k("v_lshrrev_b32 v51, 2, v3"); k("v_lshl_add_u32 v51, v51, 4, v3"); k("v_lshlrev_b32 v51, 4, v51"); k("v_and_b32 v52, 3, v3"); k("v_lshl_add_u32 v51, v52, 2, v51")
        k("v_lshl_add_u32 v51, v50, 10, v51"); k(f"v_add_u32 v17, {L_GR}, v51")
        k("v_lshlrev_b32 v51, 2, v3"); k("v_lshl_add_u32 v51, v50, 8, v51"); k(f"v_add_u32 v18, {L_SM}, v51")
        for i in range(4): k(f"v_mov_b32 v{ONES+i}, 0x3f803f80")
        for j in range(20):
            k.wait_vm(("w", j))
            for t in range(3): k(f"v_mfma_f32_16x16x32_bf16 {v(24+4*t,4)}, {a(12*j+4*t,4)}, {v(ONES,4)}, {'0' if j==0 else v(24+4*t,4)}")
        for r in range(4): k(f"v_mov_b32 v{36+r}, v{32+r}")
        for r in range(4): k(f"v_permlane16_swap_b32 v{32+r}, v{36+r}")
        k(f"s_mul_i32 {s(sHS)}, {s(sR)}, {2*40960}"); k(f"s_mul_i32 {s(sHL)}, {s(sW)}, 10240"); k(f"s_add_u32 {s(sHS)}, {s(sHS)}, {s(sHL)}"); k(f"s_add_u32 {s(sHS)}, {s(sHS)}, {WS_HC}")
        k(f"s_mul_i32 {s(sHO)}, {s(sR)}, {2*98304}"); k(f"s_lshl_b32 {s(sT)}, {s(sC)}, 2"); k(f"s_add_u32 {s(sT)}, {s(sT)}, {s(sW)}"); k(f"s_mul_i32 {s(sT)}, {s(sT)}, 768")
        k(f"s_add_u32 {s(sHO)}, {s(sHO)}, {s(sT)}"); k(f"s_add_u32 {s(sHO)}, {s(sHO)}, {WS_HH}")
        self.stamp()
        self.poll(2)
        self.stamp()
        k.vmq = []; k.lgq = []
        CH_STEP = [40960, 31*40960, 40960]; HO_STEP = [98304, 31*98304, 98304]
        def dma(c, i):
            def f():
                if i % 4 == 0:
                    k(f"s_add_u32 m0, {s(sHL)}, {(c&1)*40960 + 1024*i}")
                    if i: k(f"s_add_u32 {s(sHS)}, {s(sHS)}, 4096")
                k.vm(f"buffer_load_dwordx4 v12, {s(rWS,4)}, {s(sHS)} offen offset:{1024*(i%4)} sc1 lds", ("h", c, i//2))
                if i == 9 and c < 3: k(f"s_add_u32 {s(sHS)}, {s(sHS)}, {CH_STEP[c] - 8192}")
            return f
        for i in range(10): dma(0, i)()
        PF = 2
        def rd(c, j, a_, h):
            q, jj = divmod(j, 5); r = HF + 8*((20*c + j) % 3) + 4*a_ + 2*h
            return lambda: k.lg(f"ds_read_b64_tr_b16 {v(r,2)}, v{HB+2*q+a_} offset:{(c&1)*40960 + jj*2048 + 1024*h}", ("f", c, j, a_))
        for j in range(PF):
            k.wait_vm(("h", 0, j))
            for a_ in range(2):
                for h in range(2): rd(0, j, a_, h)()
        for c in range(4):
            AC = AC0 + 24*(c & 1); mf = []
            for j in range(20):
                grp = []
                for a_ in range(2):
                    hf = v(HF + 8*((20*c + j) % 3) + 4*a_, 4)
                    if j < 5:
                        grp.append(dict(text=f"v_mfma_f32_16x16x32_bf16 {v(SA+4*a_,4)}, {v(ONES,4)}, {hf}, {'0' if j==0 else v(SA+4*a_,4)}", wait=[("f", c, j, a_)]))
                        grp.append(dict(text=f"v_mfma_f32_16x16x32_bf16 {v(SA+8+4*a_,4)}, {hf}, {hf}, {'0' if j==0 else v(SA+8+4*a_,4)}"))
                    for t in range(3):
                        grp.append(dict(text=f"v_mfma_f32_16x16x32_bf16 {v(AC+12*a_+4*t,4)}, {a(12*j+4*t,4)}, {hf}, {'0' if j==0 else v(AC+12*a_+4*t,4)}", wait=[("f", c, j, a_)]))
                nc, nj = (c, j+PF) if j+PF < 20 else (c+1, j+PF-20)
                if nc < 4:
                    sc = []
                    if nj < 5: sc.append(lambda nc=nc, nj=nj: k.wait_vm(("h", nc, nj)))
                    if nj == 5: sc.append("s_barrier")
                    grp[0].setdefault("scal", []).extend(sc)
                    rds = [rd(nc, nj, a_, h) for a_ in range(2) for h in range(2)]
                    for x, r_ in zip((0, 1, 3, 4), rds): grp[x].setdefault("post", []).append(r_)
                if c < 3 and 4 <= j <= 13: grp[2].setdefault("post", []).append(dma(c+1, j-4))
                if j == 6:
                    for a_ in range(2):
                        grp[2+3*a_].setdefault("post", []).append(lambda a_=a_: k.lg(f"ds_write_b128 v15, {v(SA+8+4*a_,4)} offset:{1024*a_}", "sw"))
                if j == 7:
                    for a_ in range(2):
                        grp[2+3*a_].setdefault("post", []).append(lambda a_=a_: k.lg(f"ds_write_b32 v16, v{SA+4*a_} offset:{256*a_}", "sw"))
                if j == 10: grp[5].setdefault("scal", []).extend([lambda: k.wait_lg("sw"), "s_barrier"])
                mf += grp
            fill = []
            if c > 0:
                fill += self.g1_epilogue(AC0 + 24*((c-1) & 1), 3)
                fill.append((0, lambda c=c: k(f"s_add_u32 {s(sHO)}, {s(sHO)}, {HO_STEP[c-1]}"), 3))
            n10 = 50 + 6*6
            st1 = self.g1_stats(n10)
            cut = max(0, len(fill) - 12)
            fill = fill[:cut] + st1 + fill[cut:] + self.g1_stats2(n10 + 4)
            self.interleave(mf, fill)
            self.stamp()
        for c_, fn, _ in self.g1_epilogue(AC0 + 24, 0): fn()
        k.wait_vm0(); k("s_barrier")
        self.arrive(3)
        self.stamp()

    def phase3(self):
        k = self.k
        L_RED = 0; L_RES = 98304
        AC = 24; HB = 112
        sDT, sHf, sCK = 56+5, 56+6, 56+7
        k(f"s_and_b32 {s(sDT)}, {s(sC)}, 7"); k(f"s_lshr_b32 {s(sHf)}, {s(sC)}, 3")
        k(f"s_lshl_b32 {s(sCK)}, {s(sR)}, 1"); k(f"s_and_b32 {s(sT+1)}, {s(sW)}, 1"); k(f"s_add_u32 {s(sCK)}, {s(sCK)}, {s(sT+1)}")
        k(f"s_lshr_b32 {s(sT+1)}, {s(sW)}, 1"); k(f"s_lshl_b32 {s(sT+1)}, {s(sT+1)}, 5"); k(f"s_add_u32 {s(sCK)}, {s(sCK)}, {s(sT+1)}")
        k.vmq = []; k.lgq = []
        k(f"s_mul_i32 {s(sT+1)}, {s(sDT)}, 48"); k(f"s_mul_i32 {s(sT+2)}, {s(sW)}, 12"); k(f"s_add_u32 {s(sT+1)}, {s(sT+1)}, {s(sT+2)}"); k(f"s_mul_i32 {s(sT+1)}, {s(sT+1)}, 5120"); k(f"s_add_u32 {s(sT+1)}, {s(sT+1)}, {WS_W2}")
        for f in range(60):
            k.vm(f"buffer_load_dwordx4 {a(4*f,4)}, v12, {s(rWS,4)}, {s(sT+1)} offen offset:{1024*(f%4)} sc1", "w2")
            if f % 4 == 3: k(f"s_add_u32 {s(sT+1)}, {s(sT+1)}, 4096")
        k.wait_vm0()
        k(f"s_mul_i32 {s(sT+1)}, {s(sCK)}, 40960"); k(f"s_mul_i32 {s(sT+2)}, {s(sDT)}, 5120"); k(f"s_add_u32 {s(sT+1)}, {s(sT+1)}, {s(sT+2)}"); k(f"s_add_u32 {s(sT+1)}, {s(sT+1)}, {WS_HC}")
        k(f"s_mul_i32 {s(sT+2)}, {s(sW)}, 5120"); k(f"s_add_u32 {s(sT+2)}, {s(sT+2)}, {L_RES}"); k(f"s_mov_b32 m0, {s(sT+2)}")
        for i in range(4): k.vm(f"buffer_load_dwordx4 v12, {s(rWS,4)}, {s(sT+1)} offen offset:{1024*i} sc1 lds", "res")
        k(f"s_add_u32 m0, m0, 4096"); k(f"s_add_u32 {s(sT+1)}, {s(sT+1)}, 4096")
        k.vm(f"buffer_load_dwordx4 v12, {s(rWS,4)}, {s(sT+1)} offen sc1 lds", "res")
        k("v_lshrrev_b32 v2, 4, v1"); k("v_and_b32 v3, 15, v1")
        k("v_lshrrev_b32 v4, 2, v1"); k("v_lshlrev_b32 v4, 6, v4"); k("v_and_b32 v5, 3, v1"); k("v_lshl_add_u32 v4, v5, 3, v4")
        k("v_and_b32 v5, 1, v2"); k(f"v_xor_b32 v6, {s(sHf)}, v5"); k("v_lshl_add_u32 v4, v6, 5, v4"); k(f"v_add_u32 v4, {s(sT+2)}, v4")
        k("v_mul_u32_u24 v6, 1280, v3"); k("v_lshl_add_u32 v7, v2, 3, v6"); k("v_add_u32 v7, 128, v7")
        k("v_lshl_add_u32 v6, v5, 5, v6"); k("v_lshrrev_b32 v5, 1, v2"); k("v_lshl_add_u32 v6, v5, 4, v6")
        k(f"s_mul_i32 {s(sT+1)}, {s(sW)}, 5120"); k(f"v_add_u32 v8, {s(sT+1)}, v12")
        k(f"s_mul_i32 {s(sT+1)}, {s(sW)}, 20480"); k(f"v_add_u32 v9, {s(sT+1)}, v12")
        k(f"v_add_u32 v10, {2*20480}, v8")
        sOO = sT+3
        k(f"s_lshl_b32 {s(sOO)}, {s(sCK)}, 1"); k(f"s_add_u32 {s(sOO)}, {s(sOO)}, {s(sHf)}"); k(f"s_mul_i32 {s(sOO)}, {s(sOO)}, {16*1280}"); k(f"s_mul_i32 {s(sT+1)}, {s(sDT)}, 160"); k(f"s_add_u32 {s(sOO)}, {s(sOO)}, {s(sT+1)}")
        sHI = sT+4
        k(f"s_lshl_b32 {s(sHI)}, {s(sR)}, 2"); k(f"s_add_u32 {s(sHI)}, {s(sHI)}, {s(sHf)}"); k(f"s_mul_i32 {s(sHI)}, {s(sHI)}, 49152"); k(f"s_mul_i32 {s(sT+1)}, {s(sW)}, 12288")
        k(f"s_add_u32 {s(sHI)}, {s(sHI)}, {s(sT+1)}"); k(f"s_add_u32 {s(sHI)}, {s(sHI)}, {WS_HH}")
        self.poll(3)
        self.stamp()
        STEP = [98304, 31*98304, 98304]
        def ld(i, kb):
            def f():
                k.vm(f"buffer_load_dwordx4 {v(HB+48*(i%3)+4*kb,4)}, v12, {s(rWS,4)}, {s(sHI)} offen offset:{1024*(kb%4)} sc1", ("hh", i, kb))
                if kb % 4 == 3: k(f"s_add_u32 {s(sHI)}, {s(sHI)}, {4096 if kb < 11 else (STEP[i]-8192 if i < 3 else 0)}")
            return f
        for i in range(3):
            for kb in range(12): ld(i, kb)()
        for i in range(4):
            for kb in range(12):
                k.wait_vm(("hh", i, kb))
                for t in range(5):
                    k(f"v_mfma_f32_16x16x32_bf16 {v(AC+20*i+4*t,4)}, {a(20*kb+4*t,4)}, {v(HB+48*(i%3)+4*kb,4)}, {'0' if kb==0 else v(AC+20*i+4*t,4)}")
                if i == 0: ld(3, kb)()
                if i > 0 and 2 <= kb < 7:
                    t = kb - 2; j = i - 1
                    k(f"ds_write_b128 v{8 if j<2 else 10}, {v(AC+20*j+4*t,4)} offset:{(j%2)*20480 + 1024*t}")
        for t in range(5): k(f"ds_write_b128 v10, {v(AC+60+4*t,4)} offset:{20480 + 1024*t}")
        self.stamp()
        R = 104
        for t in range(5): k(f"ds_read_b64_tr_b16 {v(R+2*t,2)}, v4 offset:{1024*t}")
        k("s_waitcnt lgkmcnt(0)"); k("s_barrier")
        for t in range(5):
            for w_ in range(4): k.lg(f"ds_read_b128 {v(AC+16*t+4*w_,4)}, v9 offset:{5120*w_ + 1024*t}", t)
        O = 116
        for t in range(5):
            k.wait_lg(t); B = AC + 16*t
            for r in range(4): k(f"v_add_f32 v{B+r}, v{B+r}, v{B+4+r}"); k(f"v_add_f32 v{B+8+r}, v{B+8+r}, v{B+12+r}")
            for h in range(2): k(f"v_lshlrev_b32 v{B+4+2*h}, 16, v{R+2*t+h}"); k(f"v_and_b32 v{B+5+2*h}, 0xffff0000, v{R+2*t+h}")
            for r in range(4): k(f"v_add_f32 v{B+r}, v{B+r}, v{B+8+r}")
            for r in range(4): k(f"v_add_f32 v{B+r}, v{B+r}, v{B+4+r}")
            k(f"v_cvt_pk_bf16_f32 v{O+2*t}, v{B}, v{B+1}"); k(f"v_cvt_pk_bf16_f32 v{O+2*t+1}, v{B+2}, v{B+3}")
            if t in (1, 3):
                b = O + 2*(t-1)
                k(f"v_permlane16_swap_b32 v{b}, v{b+2}"); k(f"v_permlane16_swap_b32 v{b+1}, v{b+3}")
                k(f"buffer_store_dwordx4 {v(b,4)}, v6, {s(rOUT,4)}, {s(sOO)} offen offset:{32*(t-1)}")
        k(f"buffer_store_dwordx2 {v(O+8,2)}, v7, {s(rOUT,4)}, {s(sOO)} offen")

    def finish(self):
        k = self.k
        if self.prof:
            self.stamp()
            k("s_memtime s[100:101]"); k.wait_lg0(); k(f"s_sub_u32 {s(sSTAMP+self.nst)}, s100, s98"); self.nst += 1
            L = k.newlabel("pf")
            k(f"s_cmp_lg_u32 {s(sW)}, 0"); k(f"s_cbranch_scc1 {L}")
            k(f"s_lshl_b32 {s(sT)}, {s(sID)}, 7"); k(f"s_add_u32 {s(sT)}, {s(sT)}, {WS_PROF}")
            k("s_mov_b64 exec, 1")
            for i in range(self.nst):
                k(f"v_mov_b32 v2, {4*i}"); k(f"v_mov_b32 v3, {s(sSTAMP+i)}")
                k(f"buffer_store_dword v3, v2, {s(rWS,4)}, {s(sT)} offen")
            k("s_mov_b64 exec, -1")
            k.label(L)
        k.label("L_END"); k("s_endpgm")

    def build(self):
        self.prologue()
        self.phase0()
        if self.stop >= 1: self.phase1()
        if self.stop >= 2: self.phase2()
        if self.stop >= 3: self.phase3()
        self.finish()
        nn = self.k.pad()
        hdr = open(os.path.join(os.path.dirname(os.path.abspath(__file__)), "header.txt")).read()
        return (hdr + f"; @launch grid=(256,1,1) block=(256,1,1) lds={LDS_BYTES}\n"
            + '.amdgcn_target "amdgcn-amd-amdhsa--gfx950"\n.text\n'
            + f".globl {KNAME}\n.p2align 8\n.type {KNAME},@function\n{KNAME}:\n" + self.k.text()
            + f""".section .rodata,"a"
.p2align 6
.amdhsa_kernel {KNAME}
  .amdhsa_next_free_vgpr 512
  .amdhsa_next_free_sgpr 102
  .amdhsa_accum_offset 256
  .amdhsa_group_segment_fixed_size 0
  .amdhsa_kernarg_size 104
  .amdhsa_user_sgpr_count 2
  .amdhsa_user_sgpr_kernarg_segment_ptr 1
  .amdhsa_system_sgpr_workgroup_id_x 1
  .amdhsa_float_denorm_mode_32 3
.end_amdhsa_kernel
""")

if __name__ == "__main__":
    import argparse
    ap = argparse.ArgumentParser(); ap.add_argument("-o", default="k.s"); ap.add_argument("--stop", type=int, default=99); ap.add_argument("--prof", action="store_true")
    A = ap.parse_args()
    open(A.o, "w").write(Gen(A.stop, A.prof).build())
```

```python
import sys, os
sys.path.insert(0, os.path.dirname(os.path.abspath(__file__)))
from asmlib import *

KNAME = "sequential_preLN__ssm_conv_h3__glu_gated_swiglu__prompt_kernel"
WS_SYNC = 0x0
WS_F3   = 0x8000
WS_PROF = 0x20000
WS_STAT = 0x40000
WS_KVT  = 0x100000
WS_XT   = 0x400000
WS_W13  = 0x800000
WS_W2   = 0xC00000
WS_HC   = 0xE00000
WS_HH   = 0x1100000
WS_SIZE = 0x2000000
NSH = 16
L_TOEP = 0; CSTR = 4160
L_U = 49920; L_UD = L_U + 1440
L_XI = L_U + 13728
L_ST = L_XI + 12288
L_PART = L_ST + 16384
L_P0K = 92320; L_P0V = L_P0K + 15360; L_P0X = L_P0V + 10240
L_RP = 128160
LDS_BYTES = 163840
sID, sW = 2, 3
sDBG, sDP = 4, 6
rK, rV, rX, rWS, rSS, rSH, rW1, rW3, rW2, rOUT = 8, 12, 16, 20, 24, 28, 32, 36, 40, 44
sXG, sM, sSB, sC0, sE, sR, sC = 48, 49, 50, 51, 52, 53, 54
sT = 56
sX = 64
sDV = 70
sCNT = 73
sHS, sHL, sHO = 70, 71, 72
sSTAMP = 76

class Gen:
    def __init__(self, stop=99, prof=False, dbgsel=None):
        self.dbgsel = dbgsel
        self.k = Asm(); self.stop = stop; self.prof = prof; self.nst = 0
    def stamp(self):
        if self.prof:
            k = self.k
            k(f"s_memrealtime s[100:101]"); k.wait_lg0(); k(f"s_mov_b32 {s(sSTAMP + self.nst)}, s100"); self.nst += 1
    def arrive(self, idx):
        k = self.k; L = k.newlabel("arr")
        k(f"s_cmp_lg_u32 {s(sW)}, 0"); k(f"s_cbranch_scc1 {L}")
        k(f"s_and_b32 {s(sT)}, {s(sID)}, {NSH-1}"); k(f"s_lshl_b32 {s(sT)}, {s(sT)}, 8")
        k(f"s_add_u32 {s(sT)}, {s(sT)}, {WS_SYNC + idx*NSH*256}")
        k(f"v_mov_b32 v2, {s(sT)}"); k("v_mov_b32 v3, 1")
        k("s_mov_b64 exec, 1")
        k(f"global_atomic_add v2, v3, {s(rWS,2)} sc1")
        k("s_mov_b64 exec, -1")
        k.label(L)
    def poll(self, idx):
        k = self.k; L = k.newlabel("pol"); Lp = k.newlabel("polp"); Ld = k.newlabel("pold")
        k(f"s_cmp_lg_u32 {s(sW)}, 0"); k(f"s_cbranch_scc1 {L}")
        k(f"v_lshlrev_b32 v2, 8, v1"); k(f"v_add_u32 v2, {WS_SYNC + idx*NSH*256}, v2")
        k(f"s_mov_b64 exec, {(1<<NSH)-1}")
        k(f"s_mov_b32 {s(sCNT)}, 0x40000")
        k.label(Lp)
        k(f"global_load_dword v3, v2, {s(rWS,2)} sc1"); k("s_waitcnt vmcnt(0)")
        k(f"v_cmp_ne_u32 vcc, {256//NSH}, v3"); k(f"s_cbranch_vccz {Ld}")
        k("s_sleep 1"); k(f"s_sub_u32 {s(sCNT)}, {s(sCNT)}, 1"); k(f"s_cmp_lg_u32 {s(sCNT)}, 0"); k(f"s_cbranch_scc1 {Lp}")
        k.label(Ld); k("s_mov_b64 exec, -1")
        k.label(L); k("s_barrier")

    def prologue(self):
        k = self.k
        k(f"s_cmp_ge_u32 {s(sID)}, 256"); k("s_cbranch_scc1 L_END")
        for r, off in ((rK, 8), (rV, 16), (rX, 0), (rWS, 96), (rSH, 24), (rSS, 32), (sDP, 40), (rW1, 56), (rW3, 64), (rW2, 72), (rOUT, 80), (sDBG, 88)):
            k(f"s_load_dwordx2 {s(r,2)}, s[0:1], {off}")
        if self.prof: k(f"s_memrealtime {s(sSTAMP,2)}"); k("s_memtime s[98:99]"); self.nst = 1
        k("v_and_b32 v1, 63, v0"); k("v_lshrrev_b32 v2, 6, v0"); k(f"v_readfirstlane_b32 {s(sW)}, v2")
        for r, n in ((rK, 2621440), (rV, 2621440), (rX, 2621440), (rWS, WS_SIZE), (rSH, 5120), (rSS, 2621440), (rW1, 1966080), (rW3, 1966080), (rW2, 1966080), (rOUT, 2621440)):
            k(f"s_mov_b32 {s(r+2)}, {n}"); k(f"s_mov_b32 {s(r+3)}, 0x20000")
        k(f"s_and_b32 {s(sXG)}, {s(sID)}, 7"); k(f"s_lshr_b32 {s(sM)}, {s(sID)}, 3")
        k(f"s_lshl_b32 {s(sSB)}, {s(sXG)}, 5"); k(f"s_add_u32 {s(sSB)}, {s(sSB)}, {s(sM)}")
        k(f"s_and_b32 {s(sE)}, {s(sM)}, 1"); k(f"s_lshr_b32 {s(sT)}, {s(sM)}, 1"); k(f"s_mul_i32 {s(sT)}, {s(sT)}, 5")
        k(f"s_mul_i32 {s(sC0)}, {s(sXG)}, 80"); k(f"s_add_u32 {s(sC0)}, {s(sC0)}, {s(sT)}")
        k(f"s_lshl_b32 {s(sT)}, {s(sE)}, 1"); k(f"s_add_u32 {s(sC0)}, {s(sC0)}, {s(sT)}")
        k(f"s_lshr_b32 {s(sR)}, {s(sXG)}, 2"); k(f"s_lshl_b32 {s(sR)}, {s(sR)}, 3"); k(f"s_lshr_b32 {s(sT)}, {s(sM)}, 2"); k(f"s_add_u32 {s(sR)}, {s(sR)}, {s(sT)}")
        k(f"s_and_b32 {s(sC)}, {s(sXG)}, 3"); k(f"s_lshl_b32 {s(sC)}, {s(sC)}, 2"); k(f"s_and_b32 {s(sT)}, {s(sM)}, 3"); k(f"s_add_u32 {s(sC)}, {s(sC)}, {s(sT)}")

    def phase0(self):
        k = self.k
        VO, KO = 4, 8
        vT16 = 12
        SH = 14
        SS = 20
        k(f"v_lshlrev_b32 v{vT16}, 4, v0")
        k("v_lshrrev_b32 v2, 4, v0"); k("v_mul_u32_u24 v2, 52, v2")
        k(f"s_mul_i32 {s(sT)}, {s(sSB)}, 10240")
        for i in range(4):
            if i: k(f"v_add_u32 v2, 832, v2"); k(f"s_add_u32 {s(sT)}, {s(sT)}, 4096")
            k("v_lshrrev_b32 v3, 2, v2"); k("v_and_b32 v3, 0xc0, v3")
            k(f"v_xad_u32 v{VO+i}, v{vT16}, v3, {s(sT)}")
            k(f"v_subrev_u32 v{KO+i}, 5120, v{VO+i}")
        k(f"s_lshl_b32 {s(sT+1)}, {s(sW)}, 10")
        k.wait_lg0()
        Lz = k.newlabel("z")
        k(f"s_cmp_lg_u32 {s(sID)}, 0"); k(f"s_cbranch_scc1 {Lz}")
        for i in range(4): k(f"v_mov_b32 v{40+i}, 0")
        k("v_lshlrev_b32 v2, 7, v0"); k(f"v_add_u32 v2, {WS_F3}, v2")
        k(f"buffer_store_dwordx4 v[40:43], v2, {s(rWS,4)}, 0 offen sc1")
        k("v_lshlrev_b32 v2, 8, v1")
        k(f"buffer_store_dword v40, v2, {s(rWS,4)}, 0 offen sc1")
        k.label(Lz)
        NT = "nt"
        def dma(srd, vo, lbase, i):
            k(f"s_add_u32 m0, {s(sT+1)}, {lbase + 4096*i}")
            k.vm(f"buffer_load_dwordx4 v{vo+i}, {s(srd,4)}, 0 offen {NT} lds", "p0")
        L1 = k.newlabel("c"); L2 = k.newlabel("c")
        k(f"s_cmp_eq_u32 {s(sW)}, 3"); k(f"s_cbranch_scc1 {L1}")
        dma(rK, KO, L_P0K, 3)
        k(f"s_cmp_eq_u32 {s(sW)}, 2"); k(f"s_cbranch_scc1 {L1}")
        dma(rV, VO, L_P0V, 2); dma(rX, VO, L_P0X, 2)
        k.label(L1)
        for i in range(3): dma(rK, KO, L_P0K, i)
        for i in range(2): dma(rV, VO, L_P0V, i)
        for i in range(2): dma(rX, VO, L_P0X, i)
        k("v_lshlrev_b32 v2, 3, v0"); k(f"s_movk_i32 {s(sT+2)}, 0x1000")
        k.vm(f"buffer_load_dwordx2 {v(SH,2)}, v2, {s(rSH,4)}, 0 offen", "p0")
        k.vm(f"buffer_load_dwordx2 {v(SH+2,2)}, v2, {s(rSH,4)}, 0 offen offset:2048", "p0")
        k.vm(f"buffer_load_dwordx2 {v(SH+4,2)}, v2, {s(rSH,4)}, {s(sT+2)} offen", "p0")
        k(f"v_cmp_eq_u32 {s(sX+2,2)}, 0, v0")
        k(f"v_subrev_u32 v2, 8, v{vT16}"); k("v_mov_b32 v3, 0x7ffffff0"); k(f"v_cndmask_b32 v2, v2, v3, {s(sX+2,2)}")
        k(f"s_lshl_b32 {s(sT+2)}, {s(sC0)}, 12")
        for j in range(3):
            k.vm(f"buffer_load_dwordx4 {v(SS+6*j+2,4)}, v{vT16}, {s(rSS,4)}, {s(sT+2)} offen {NT}", "ss")
            k.vm(f"buffer_load_dwordx2 {v(SS+6*j,2)}, v2, {s(rSS,4)}, {s(sT+2)} offen {NT}", "ss")
            if j < 2: k(f"s_add_u32 {s(sT+2)}, {s(sT+2)}, 4096")
        k(f"s_lshr_b32 {s(sT+2)}, {s(sC0)}, 1"); k(f"s_lshl_b32 {s(sT+2)}, {s(sT+2)}, 2")
        k(f"s_load_dwordx2 {s(sDV,2)}, {s(sDP,2)}, {s(sT+2)}")
        Lw2 = k.newlabel("w2"); Lj = k.newlabel("j")
        k(f"s_cmp_ge_u32 {s(sID)}, 160"); k(f"s_cbranch_scc1 {Lw2}")
        k(f"s_lshl_b32 {s(sT+2)}, {s(sM)}, 5"); k(f"s_lshl_b32 {s(sT+3)}, {s(sW)}, 3"); k(f"s_add_u32 {s(sT+2)}, {s(sT+2)}, {s(sT+3)}")
        k(f"s_mul_i32 {s(sT+2)}, {s(sT+2)}, 3072"); k(f"s_mul_i32 {s(sT+3)}, {s(sXG)}, 384"); k(f"s_add_u32 {s(sT+2)}, {s(sT+2)}, {s(sT+3)}")
        k(f"s_mul_i32 {s(sT+3)}, {s(sW)}, 3072")
        for i in range(3):
            k(f"v_add_u32 v2, {64*i}, v1"); k("v_mul_u32_u24 v3, 2731, v2"); k("v_lshrrev_b32 v3, 16, v3")
            k(f"v_mul_u32_u24 v3, {3072 - 24*16}, v3"); k("v_lshl_add_u32 v2, v2, 4, v3")
            for mat, srd in ((0, rW1), (1, rW3)):
                k(f"s_add_u32 m0, {s(sT+3)}, {L_RP + mat*12288 + 1024*i}")
                k(f"buffer_load_dwordx4 v2, {s(srd,4)}, {s(sT+2)} offen {NT} lds")
        k(f"s_branch {Lj}")
        k.label(Lw2)
        k(f"s_sub_u32 {s(sT+4)}, {s(sID)}, 160"); k(f"s_lshr_b32 {s(sT+2)}, {s(sT+4)}, 1"); k(f"s_lshl_b32 {s(sT+2)}, {s(sT+2)}, 5")
        k(f"s_lshl_b32 {s(sT+3)}, {s(sW)}, 3"); k(f"s_add_u32 {s(sT+2)}, {s(sT+2)}, {s(sT+3)}"); k(f"s_mul_i32 {s(sT+2)}, {s(sT+2)}, 1280")
        k(f"s_and_b32 {s(sT+3)}, {s(sT+4)}, 1"); k(f"s_mul_i32 {s(sT+3)}, {s(sT+3)}, 640"); k(f"s_add_u32 {s(sT+2)}, {s(sT+2)}, {s(sT+3)}")
        k(f"s_mul_i32 {s(sT+3)}, {s(sW)}, 5120")
        for i in range(5):
            k(f"v_add_u32 v2, {64*i}, v1"); k("v_mul_u32_u24 v3, 1639, v2"); k("v_lshrrev_b32 v3, 16, v3")
            k(f"v_mul_u32_u24 v3, {1280 - 40*16}, v3"); k("v_lshl_add_u32 v2, v2, 4, v3")
            k(f"s_add_u32 m0, {s(sT+3)}, {L_RP + 1024*i}")
            k(f"buffer_load_dwordx4 v2, {s(rW2,4)}, {s(sT+2)} offen {NT} lds")
        k(f"buffer_load_dword v255, v1, {s(rSH,4)}, 0 offen")
        k.label(Lj)
        k.vmq += ["rp"] * 6
        k(f"s_getpc_b64 {s(sT+2,2)}"); k.label("L_PC")
        k(f"s_lshl_b32 {s(sT+4)}, {s(sW)}, 5"); k(f"s_add_u32 {s(sT+4)}, {s(sT+4)}, {s(sM)}"); k(f"s_lshl_b32 {s(sT+4)}, {s(sT+4)}, 8")
        k(f"v_lshlrev_b32 v2, 2, v1"); k(f"v_add_u32 v2, {s(sT+4)}, v2"); k("v_min_u32 v2, L_END-L_PC, v2")
        k.vm(f"global_load_dword v254, v2, {s(sT+2,2)}", "rp")
        for i in range(4): k(f"v_mov_b32 v{40+i}, 0")
        k(f"v_cmp_gt_u32 vcc, 90, v0"); k(f"s_and_saveexec_b64 {s(sX,2)}, vcc")
        k(f"ds_write_b128 v{vT16}, v[40:43] offset:{L_U}")
        k(f"s_mov_b64 exec, {s(sX,2)}")
        k("v_lshrrev_b32 v2, 1, v0"); k(f"v_mul_u32_u24 v2, {CSTR}, v2"); k("v_and_b32 v3, 1, v0"); k("v_lshl_add_u32 v2, v3, 4, v2")
        k(f"v_cmp_gt_u32 vcc, 24, v0"); k(f"s_and_saveexec_b64 {s(sX,2)}, vcc")
        k(f"ds_write_b128 v2, v[40:43] offset:{L_TOEP + 4096}")
        k(f"s_mov_b64 exec, {s(sX,2)}")
        vTR = 13
        k("v_bfe_u32 v2, v1, 2, 2")
        k("v_lshrrev_b32 v3, 4, v1"); k("v_lshlrev_b32 v3, 1, v3")
        k("v_bfe_u32 v38, v1, 1, 1"); k("v_add_u32 v3, v3, v38")
        k("v_bfe_u32 v38, v0, 6, 1"); k("v_lshl_add_u32 v3, v38, 3, v3")
        k("v_lshlrev_b32 v38, 2, v2"); k("v_xor_b32 v3, v3, v38"); k("v_lshlrev_b32 v3, 4, v3")
        k("v_mul_u32_u24 v2, 1280, v2"); k("v_add_u32 v3, v3, v2")
        k("v_and_b32 v2, 1, v1"); k("v_lshl_add_u32 v3, v2, 3, v3")
        k("v_lshrrev_b32 v2, 7, v0"); k("v_lshl_add_u32 v3, v2, 8, v3")
        k(f"v_add_u32 v{vTR}, {L_P0K}, v3")
        k(f"s_mul_i32 {s(sT+2)}, {s(sSB)}, 10240"); k(f"s_add_u32 {s(sT+3)}, {s(sT+2)}, {WS_XT}"); k(f"s_add_u32 {s(sT+2)}, {s(sT+2)}, {WS_KVT}")
        k.wait_vm("p0"); k("s_barrier")
        Lz = k.newlabel("z")
        k(f"s_or_b32 {s(sT+4)}, {s(sID)}, {s(sW)}"); k(f"s_cmp_lg_u32 {s(sT+4)}, 0"); k(f"s_cbranch_scc1 {Lz}")
        k("v_mov_b32 v2, 0"); k("v_mov_b32 v3, 1"); k("s_mov_b64 exec, 1")
        k(f"global_store_dword v2, v3, {s(sDBG,2)} sc1"); k("s_mov_b64 exec, -1")
        k.label(Lz)
        self.stamp()
        def task(i):
            P = 40; Vv = 46; Xx = 52; Q = 56; W10, W32 = 61, 62; KS = 64; O = 72
            for b in range(3): k.lg(f"ds_read_b64_tr_b16 {v(P+2*b,2)}, v{vTR} offset:{b*5120 + 512*i}", "k")
            for b in range(2): k.lg(f"ds_read_b64_tr_b16 {v(Vv+2*b,2)}, v{vTR} offset:{L_P0V-L_P0K + b*5120 + 512*i}", "v")
            for b in range(2): k.lg(f"ds_read_b64_tr_b16 {v(Xx+2*b,2)}, v{vTR} offset:{L_P0X-L_P0K + b*5120 + 512*i}", "x")
            k(f"v_alignbit_b32 v{W10}, v{SH+2*i}, v{SH+2*i}, 16"); k(f"v_alignbit_b32 v{W32}, v{SH+2*i+1}, v{SH+2*i+1}, 16")
            k.wait_lg("k")
            for j in range(5): k(f"v_alignbit_b32 v{Q+j}, v{P+j+1}, v{P+j}, 16")
            for j in range(4):
                k(f"v_dot2_f32_bf16 v{KS+2*j+1}, v{P+j+1}, v{W32}, 0"); k(f"v_dot2_f32_bf16 v{KS+2*j}, v{Q+j}, v{W32}, 0")
            for j in range(4):
                k(f"v_dot2_f32_bf16 v{KS+2*j+1}, v{P+j+2}, v{W10}, v{KS+2*j+1}"); k(f"v_dot2_f32_bf16 v{KS+2*j}, v{Q+j+1}, v{W10}, v{KS+2*j}")
            k.wait_lg("x")
            k(f"buffer_store_dwordx4 {v(Xx,4)}, v{vT16}, {s(rWS,4)}, {s(sT+3)} offen sc1")
            for j in range(4):
                k(f"v_lshlrev_b32 v{Q+j}, 16, v{Vv+j}"); k(f"v_and_b32 v{Vv+j}, 0xffff0000, v{Vv+j}")
            for j in range(4):
                k(f"v_mul_f32 v{KS+2*j}, v{KS+2*j}, v{Q+j}"); k(f"v_mul_f32 v{KS+2*j+1}, v{KS+2*j+1}, v{Vv+j}")
            for j in range(4): k(f"v_cvt_pk_bf16_f32 v{O+j}, v{KS+2*j}, v{KS+2*j+1}")
            k(f"buffer_store_dwordx4 {v(O,4)}, v{vT16}, {s(rWS,4)}, {s(sT+2)} offen sc1")
            if i < 2: k(f"s_add_u32 {s(sT+2)}, {s(sT+2)}, 4096"); k(f"s_add_u32 {s(sT+3)}, {s(sT+3)}, 4096")
        k.wait_lg0()
        task(0); task(1)
        Ls = k.newlabel("st"); Lj = k.newlabel("j")
        k(f"s_cmp_ge_u32 {s(sW)}, 2"); k(f"s_cbranch_scc1 {Ls}")
        task(2)
        k(f"s_branch {Lj}")
        k.label(Ls)
        k("v_lshrrev_b32 v2, 4, v1"); k("v_mul_u32_u24 v3, 1280, v2"); k("v_and_b32 v38, 15, v1"); k("v_lshl_add_u32 v3, v38, 4, v3")
        k(f"s_sub_u32 {s(sT+4)}, {s(sW)}, 2"); k(f"s_mul_i32 {s(sT+5)}, {s(sT+4)}, 5120"); k(f"s_add_u32 {s(sT+5)}, {s(sT+5)}, {L_P0X}")
        k(f"v_add_u32 v3, {s(sT+5)}, v3")
        for j in range(5): k(f"ds_read_b128 {v(40+4*j,4)}, v3 offset:{256*j}")
        k(f"s_mov_b32 {s(sT+5)}, 0x3f803f80")
        k("s_waitcnt lgkmcnt(0)")
        for j in range(20):
            k(f"v_dot2_f32_bf16 v60, v{40+j}, {s(sT+5)}, {'0' if j==0 else 'v60'}"); k(f"v_dot2_f32_bf16 v61, v{40+j}, v{40+j}, {'0' if j==0 else 'v61'}")
        for r in (8, 4, 2, 1):
            k(f"v_add_f32_dpp v60, v60, v60 row_ror:{r} row_mask:0xf bank_mask:0xf"); k(f"v_add_f32_dpp v61, v61, v61 row_ror:{r} row_mask:0xf bank_mask:0xf")
        k(f"v_mul_f32 v60, {1.0/640!r}, v60"); k(f"v_mul_f32 v61, {1.0/640!r}, v61")
        k("v_fma_f32 v61, -v60, v60, v61"); k("v_max_f32 v61, 0, v61"); k(f"v_add_f32 v61, {1e-5!r}, v61"); k("v_rsq_f32 v61, v61")
        k("v_mul_f32 v60, v60, v61"); k("v_sub_f32 v60, 0, v60")
        k("v_cmp_eq_u32 vcc, 0, v38"); k("v_cndmask_b32 v60, v60, v61, vcc")
        k("v_lshlrev_b32 v2, 2, v2"); k("v_lshl_add_u32 v2, v38, 5, v2")
        k(f"s_lshl_b32 {s(sT+5)}, {s(sSB)}, 6"); k(f"s_lshl_b32 {s(sT+4)}, {s(sT+4)}, 4"); k(f"s_add_u32 {s(sT+5)}, {s(sT+5)}, {s(sT+4)}"); k(f"s_add_u32 {s(sT+5)}, {s(sT+5)}, {WS_STAT}")
        k("v_cmp_gt_u32 vcc, 2, v38"); k(f"s_and_saveexec_b64 {s(sX,2)}, vcc")
        k(f"buffer_store_dword v60, v2, {s(rWS,4)}, {s(sT+5)} offen sc1")
        k(f"s_mov_b64 exec, {s(sX,2)}")
        k.label(Lj)
        self.stamp()
        k("s_waitcnt vmcnt(11)")
        k(f"s_and_b32 {s(sT+2)}, {s(sC0)}, 1"); k(f"s_lshl_b32 {s(sT+2)}, {s(sT+2)}, 4"); k(f"s_lshr_b64 {s(sDV,2)}, {s(sDV,2)}, {s(sT+2)}")
        k(f"s_lshl_b32 {s(sDV+2)}, {s(sDV+1)}, 16"); k(f"s_and_b32 {s(sDV+1)}, {s(sDV)}, 0xffff0000"); k(f"s_lshl_b32 {s(sDV)}, {s(sDV)}, 16")
        k(f"s_mov_b32 {s(sT+2)}, 0xffff")
        k(f"v_sub_u32 v2, {255*16}, v{vT16}")
        for j in range(3):
            D = SS + 6*j
            k(f"v_lshlrev_b32 v3, 16, v{D+2}"); k(f"v_add_f32 v3, {s(sDV+j)}, v3"); k("v_cvt_pk_bf16_f32 v3, v3, v3")
            k(f"v_bfi_b32 v3, {s(sT+2)}, v3, v{D+2}"); k(f"v_cndmask_b32 v{D+2}, v{D+2}, v3, {s(sX+2,2)}")
            O = 40 + 16*(j % 2)
            for c in range(4):
                for t in range(4):
                    hi = 5 - t - (c >> 1)
                    if c % 2 == 0: k(f"v_alignbit_b32 v{O+4*c+t}, v{D+hi}, v{D+hi}, 16")
                    else: k(f"v_bfi_b32 v{O+4*c+t}, {s(sT+2)}, v{D+hi}, v{D+hi-1}")
                k(f"ds_write_b128 v2, {v(O+4*c,4)} offset:{L_TOEP + (4*j+c)*CSTR}")
        k.wait_vm0()
        Li = k.newlabel("i"); Lp = k.newlabel("ip")
        k(f"s_cmp_lg_u32 {s(sW)}, 0"); k(f"s_cbranch_scc1 {Li}")
        k("v_mov_b32 v2, 0"); k(f"s_mov_b32 {s(sCNT)}, 0x40000")
        k.label(Lp)
        k(f"global_load_dword v3, v2, {s(sDBG,2)} sc1"); k("s_waitcnt vmcnt(0)")
        k("v_cmp_eq_u32 vcc, 0, v3"); k(f"s_cbranch_vccz {Li}")
        k("s_sleep 1"); k(f"s_sub_u32 {s(sCNT)}, {s(sCNT)}, 1"); k(f"s_cmp_lg_u32 {s(sCNT)}, 0"); k(f"s_cbranch_scc1 {Lp}")
        k.label(Li)
        k("s_barrier")
        self.arrive(0)
        self.stamp()
        Lw2 = k.newlabel("w2"); Lj = k.newlabel("j")
        k("v_lshlrev_b32 v39, 4, v1")
        k("v_bfe_u32 v2, v1, 2, 2"); k("v_lshrrev_b32 v3, 4, v1"); k("v_and_b32 v38, 3, v1")
        k(f"s_cmp_ge_u32 {s(sID)}, 160"); k(f"s_cbranch_scc1 {Lw2}")
        k("v_lshl_add_u32 v2, v3, 2, v2"); k("v_mul_u32_u24 v2, 384, v2")
        k(f"s_mul_i32 {s(sT+2)}, {s(sW)}, 48"); k(f"s_add_u32 {s(sT+2)}, {s(sT+2)}, {L_RP}"); k(f"v_add_u32 v2, {s(sT+2)}, v2")
        k("v_lshl_add_u32 v4, v38, 3, v2")
        k("v_and_b32 v3, 1, v38"); k("v_mul_u32_u24 v3, 12288, v3"); k("v_lshrrev_b32 v38, 1, v38"); k("v_lshl_add_u32 v3, v38, 3, v3")
        k("v_add3_u32 v5, v2, v3, 32")
        k(f"s_lshl_b32 {s(sT+2)}, {s(sXG)}, 3"); k(f"s_add_u32 {s(sT+2)}, {s(sT+2)}, {s(sW)}"); k(f"s_mul_i32 {s(sT+2)}, {s(sT+2)}, 20"); k(f"s_add_u32 {s(sT+2)}, {s(sT+2)}, {s(sM)}")
        k(f"s_mul_i32 {s(sT+2)}, {s(sT+2)}, 3072"); k(f"s_add_u32 {s(sT+2)}, {s(sT+2)}, {WS_W13}"); k(f"s_add_u32 {s(sT+3)}, {s(sT+2)}, {80*3072}")
        for ci in range(2):
            for t in range(3):
                O = 40 + 4*(3*ci + t)
                for h in range(2):
                    off = 192*ci + 16*384*h + (12288 if t == 1 else 0)
                    k(f"ds_read_b64_tr_b16 {v(O+2*h,2)}, v{5 if t==2 else 4} offset:{off}")
        k("s_waitcnt lgkmcnt(0)")
        for ci in range(2):
            for t in range(3):
                k(f"buffer_store_dwordx4 {v(40+4*(3*ci+t),4)}, v39, {s(rWS,4)}, {s(sT+2+ci)} offen offset:{1024*t} sc1")
        k(f"s_branch {Lj}")
        k.label(Lw2)
        k("v_lshl_add_u32 v2, v3, 3, v2"); k("v_mul_u32_u24 v2, 640, v2"); k("v_lshl_add_u32 v2, v38, 3, v2")
        k(f"s_mul_i32 {s(sT+2)}, {s(sW)}, 160"); k(f"s_add_u32 {s(sT+2)}, {s(sT+2)}, {L_RP}"); k(f"v_add_u32 v4, {s(sT+2)}, v2")
        k(f"s_sub_u32 {s(sT+4)}, {s(sID)}, 160"); k(f"s_and_b32 {s(sT+2)}, {s(sT+4)}, 1"); k(f"s_lshl_b32 {s(sT+2)}, {s(sT+2)}, 2"); k(f"s_add_u32 {s(sT+2)}, {s(sT+2)}, {s(sW)}")
        k(f"s_mul_i32 {s(sT+2)}, {s(sT+2)}, 48"); k(f"s_lshr_b32 {s(sT+4)}, {s(sT+4)}, 1"); k(f"s_add_u32 {s(sT+2)}, {s(sT+2)}, {s(sT+4)}")
        k(f"s_mul_i32 {s(sT+2)}, {s(sT+2)}, 5120"); k(f"s_add_u32 {s(sT+2)}, {s(sT+2)}, {WS_W2}"); k(f"s_add_u32 {s(sT+3)}, {s(sT+2)}, 4096")
        for t in range(5):
            for h in range(2): k(f"ds_read_b64_tr_b16 {v(40+4*t+2*h,2)}, v4 offset:{32*t + 4*640*h}")
        k("s_waitcnt lgkmcnt(0)")
        for t in range(5):
            k(f"buffer_store_dwordx4 {v(40+4*t,4)}, v39, {s(rWS,4)}, {s(sT+2+(t>>2))} offen offset:{1024*(t&3)} sc1")
        k.label(Lj)
        k("s_waitcnt vmcnt(0)"); k("s_barrier")
        self.arrive(1)
        self.stamp()

    def conv_stream(self, ops, FR, nslots):
        k = self.k
        first = {}; last = {}
        for i, (_, _, A_, B_) in enumerate(ops):
            for key in (A_, B_):
                first.setdefault(key, i); last[key] = i
        order = sorted(first, key=lambda x: first[x])
        free = list(range(nslots)); slot = {}; nxt = 0
        def issue(budget):
            nonlocal nxt
            while nxt < len(order) and free and budget > 0:
                key = order[nxt]; sl = free.pop(0); slot[key] = sl; r = FR + 4*sl
                if key[0] == "A":
                    k.lg(f"ds_read_b64 {v(r,2)}, v{key[1]} offset:{key[2]}", None); k.lg(f"ds_read_b64 {v(r+2,2)}, v{key[1]} offset:{key[2]+8}", key); budget -= 2
                else:
                    k.lg(f"ds_read_b128 {v(r,4)}, v{key[1]} offset:{key[2]}", key); budget -= 1
                nxt += 1
        issue(12)
        for i, (acc, fst, A_, B_) in enumerate(ops):
            while A_ not in slot or B_ not in slot: issue(2)
            k.wait_lg([A_, B_])
            k(f"v_mfma_f32_16x16x32_bf16 {v(acc,4)}, {v(FR+4*slot[A_],4)}, {v(FR+4*slot[B_],4)}, {'0' if fst else v(acc,4)}")
            for key in {A_, B_}:
                if last[key] == i: free.append(slot[key])
            issue(2)

    def conv_ops(self, tiles, nr, vA, vB, acc):
        ops = []
        for dr in range(nr):
            for m in range(max(tiles) + 1):
                for ti, T in reversed(list(enumerate(tiles))):
                    if T >= m:
                        ops.append((acc + 4*ti, dr == 0 and m == 0, ("A", vA, 64*(56 - 8*m + nr - 1 - dr)), ("B", vB, 192*(8*(T-m) + nr - 1 - dr))))
        return ops

    def phase1(self):
        k = self.k
        vAF, vBF, vAH, vBH = 4, 5, 6, 7
        vL16 = 39
        ACF, ACH, FR = 40, 56, 64
        for i in range(3):
            k(f"v_add_u32 v2, {64*i}, v1"); k("v_mul_u32_u24 v3, 21846, v2"); k("v_lshrrev_b32 v3, 16, v3")
            k(f"v_mul_u32_u24 v3, {10240-48}, v3"); k(f"v_lshl_add_u32 v{8+i}, v2, 4, v3")
        k(f"s_mul_i32 {s(sT+2)}, {s(sW)}, {64*10240}"); k(f"s_lshl_b32 {s(sT+3)}, {s(sC0)}, 4"); k(f"s_add_u32 {s(sT+2)}, {s(sT+2)}, {s(sT+3)}")
        k(f"s_add_u32 {s(sT+3)}, {s(sT+2)}, {WS_XT}"); k(f"s_add_u32 {s(sT+2)}, {s(sT+2)}, {WS_KVT}")
        k(f"s_mul_i32 {s(sT+4)}, {s(sW)}, 3072"); k(f"s_lshl_b32 {s(sT+5)}, {s(sW)}, 12"); k(f"s_add_u32 {s(sT+6)}, {s(sT+5)}, {WS_STAT}")
        k("v_and_b32 v2, 15, v1"); k("v_lshrrev_b32 v3, 4, v1")
        k("v_lshl_add_u32 v11, v2, 1, v3"); k("v_mul_u32_u24 v11, 48, v11")
        k("v_sub_u32 v12, 15, v2"); k("v_lshl_add_u32 v12, v3, 3, v12")
        k("v_and_b32 v13, 3, v12"); k(f"v_mul_u32_u24 v13, {CSTR}, v13"); k("v_and_b32 v12, 0xfc, v12"); k("v_lshl_add_u32 v12, v12, 1, v13")
        sCF, sCH = 74, 75
        k(f"s_lshr_b32 {s(sCF)}, {s(sW)}, 1"); k(f"s_add_u32 {s(sCF)}, {s(sCF)}, {s(sE)}")
        k(f"s_lshl_b32 {s(sCH)}, {s(sE)}, 1"); k(f"s_sub_u32 {s(sCH)}, 2, {s(sCH)}")
        k(f"s_and_b32 {s(sT)}, {s(sW)}, 1"); k(f"s_lshl_b32 {s(sT)}, {s(sT)}, 2"); k(f"s_sub_u32 {s(sT)}, 4, {s(sT)}")
        k(f"s_mul_i32 {s(sT+1)}, {s(sCF)}, {4*CSTR}"); k(f"s_lshl_b32 {s(sT+7)}, {s(sT)}, 6"); k(f"s_add_u32 {s(sT+1)}, {s(sT+1)}, {s(sT+7)}"); k(f"v_add_u32 v{vAF}, {s(sT+1)}, v12")
        k(f"s_lshl_b32 {s(sT+1)}, {s(sCF)}, 4"); k(f"s_mul_i32 {s(sT+7)}, {s(sT)}, 192"); k(f"s_add_u32 {s(sT+1)}, {s(sT+1)}, {s(sT+7)}"); k(f"s_add_u32 {s(sT+1)}, {s(sT+1)}, {L_U}"); k(f"v_add_u32 v{vBF}, {s(sT+1)}, v11")
        k(f"s_lshl_b32 {s(sT)}, {s(sW)}, 1"); k(f"s_sub_u32 {s(sT)}, 6, {s(sT)}")
        k(f"s_mul_i32 {s(sT+1)}, {s(sCH)}, {4*CSTR}"); k(f"s_lshl_b32 {s(sT+7)}, {s(sT)}, 6"); k(f"s_add_u32 {s(sT+1)}, {s(sT+1)}, {s(sT+7)}"); k(f"v_add_u32 v{vAH}, {s(sT+1)}, v12")
        k(f"s_lshl_b32 {s(sT+1)}, {s(sCH)}, 4"); k(f"s_mul_i32 {s(sT+7)}, {s(sT)}, 192"); k(f"s_add_u32 {s(sT+1)}, {s(sT+1)}, {s(sT+7)}"); k(f"s_add_u32 {s(sT+1)}, {s(sT+1)}, {L_U}"); k(f"v_add_u32 v{vBH}, {s(sT+1)}, v11")
        vOF = 14
        k("v_and_b32 v13, 1, v3"); k("v_lshlrev_b32 v13, 5, v13"); k("v_lshl_add_u32 v13, v2, 1, v13"); k("v_lshrrev_b32 v15, 1, v3"); k("v_add_u32 v13, v13, v15")
        k(f"s_and_b32 {s(sT)}, {s(sW)}, 1"); k(f"s_lshl_b32 {s(sT)}, {s(sT)}, 6"); k(f"v_add_u32 v{vOF}, {s(sT)}, v13")
        vXF, vSF, vGF = 15, 16, 17
        k(f"s_lshl_b32 {s(sT)}, {s(sCF)}, 4"); k(f"s_add_u32 {s(sT)}, {s(sT)}, {L_XI}"); k(f"v_mul_u32_u24 v{vXF}, 48, v{vOF}"); k(f"v_add_u32 v{vXF}, {s(sT)}, v{vXF}")
        k(f"v_lshlrev_b32 v{vSF}, 6, v{vOF}"); k(f"v_add_u32 v{vSF}, {L_ST}, v{vSF}")
        sHF, sHH = 68, 69
        k(f"s_add_u32 {s(sT)}, {s(sC0)}, {s(sCF)}"); k(f"s_lshr_b32 {s(sT+1)}, {s(sT)}, 1"); k(f"s_and_b32 {s(sT+1)}, {s(sT+1)}, 2")
        k(f"s_lshl_b32 {s(sHF)}, {s(sT)}, 6"); k(f"s_add_u32 {s(sHF)}, {s(sHF)}, {WS_HC}")
        k(f"v_lshrrev_b32 v13, 2, v{vOF}"); k(f"v_mul_u32_u24 v13, 40960, v13"); k(f"v_and_b32 v{vGF}, 3, v{vOF}"); k(f"v_xor_b32 v{vGF}, {s(sT+1)}, v{vGF}"); k(f"v_lshl_add_u32 v{vGF}, v{vGF}, 4, v13")
        vPH, vXH, vSH, vGH = 18, 19, 20, 21
        k("v_and_b32 v2, 127, v0")
        k("v_lshrrev_b32 v3, 3, v2"); k("v_bfe_u32 v13, v2, 1, 2"); k("v_lshl_add_u32 v3, v13, 4, v3"); k("v_lshlrev_b32 v3, 4, v3"); k("v_and_b32 v13, 1, v2"); k("v_lshl_add_u32 v3, v13, 3, v3")
        k(f"s_lshr_b32 {s(sT)}, {s(sW)}, 1"); k(f"s_lshl_b32 {s(sT+1)}, {s(sT)}, 10"); k(f"s_add_u32 {s(sT+1)}, {s(sT+1)}, {L_PART + 8192}"); k(f"v_add_u32 v{vPH}, {s(sT+1)}, v3")
        k(f"s_mul_i32 {s(sT+1)}, {s(sT)}, 3"); k(f"s_add_u32 {s(sT)}, {s(sT)}, 1"); k(f"s_cmp_eq_u32 {s(sE)}, 0"); k(f"s_cselect_b32 {s(sT)}, {s(sT+1)}, {s(sT)}"); k(f"s_lshl_b32 {s(sT)}, {s(sT)}, 5")
        k("v_lshrrev_b32 v3, 2, v2"); k(f"v_add_u32 v3, {s(sT)}, v3")
        k("v_and_b32 v2, 3, v2")
        k(f"s_lshl_b32 {s(sT)}, {s(sCH)}, 4"); k(f"s_add_u32 {s(sT)}, {s(sT)}, {L_XI}"); k(f"v_mul_u32_u24 v13, 48, v3"); k("v_lshl_add_u32 v13, v2, 2, v13"); k(f"v_add_u32 v{vXH}, {s(sT)}, v13")
        k(f"v_lshlrev_b32 v13, 6, v3"); k("v_lshl_add_u32 v13, v2, 3, v13"); k(f"v_add_u32 v{vSH}, {L_ST}, v13")
        k(f"s_add_u32 {s(sT)}, {s(sC0)}, {s(sCH)}"); k(f"s_lshr_b32 {s(sT+1)}, {s(sT)}, 1"); k(f"s_and_b32 {s(sT+1)}, {s(sT+1)}, 2")
        k(f"s_lshl_b32 {s(sHH)}, {s(sT)}, 6"); k(f"s_add_u32 {s(sHH)}, {s(sHH)}, {WS_HC}")
        k(f"v_lshrrev_b32 v13, 2, v3"); k(f"v_mul_u32_u24 v13, 40960, v13"); k("v_lshl_add_u32 v13, v2, 2, v13"); k(f"v_and_b32 v3, 3, v3"); k(f"v_xor_b32 v3, {s(sT+1)}, v3"); k(f"v_lshl_add_u32 v{vGH}, v3, 4, v13")
        vPW, vPR = 22, 23
        k(f"s_lshl_b32 {s(sT)}, {s(sW)}, 11"); k(f"s_add_u32 {s(sT+1)}, {s(sT)}, {L_PART}"); k(f"v_add_u32 v{vPW}, {s(sT+1)}, v{vL16}")
        k(f"s_xor_b32 {s(sT)}, {s(sT)}, 2048"); k(f"s_add_u32 {s(sT+1)}, {s(sT)}, {L_PART}"); k(f"v_add_u32 v{vPR}, {s(sT+1)}, v{vL16}")
        self.poll(0)
        self.stamp()
        k.vmq = []
        for i in range(3):
            k(f"s_add_u32 m0, {s(sT+4)}, {L_UD + 1024*i}"); k.vm(f"buffer_load_dwordx4 v{8+i}, {s(rWS,4)}, {s(sT+2)} offen sc1 lds", "u")
        for i in range(3):
            k(f"s_add_u32 m0, {s(sT+4)}, {L_XI + 1024*i}"); k.vm(f"buffer_load_dwordx4 v{8+i}, {s(rWS,4)}, {s(sT+3)} offen sc1 lds", "x")
        k(f"s_add_u32 m0, {s(sT+5)}, {L_ST}")
        for i in range(4): k.vm(f"buffer_load_dwordx4 v{vL16}, {s(rWS,4)}, {s(sT+6)} offen offset:{1024*i} sc1 lds", "x")
        k.wait_vm("u"); k.wait_lg0(); k("s_barrier")
        self.stamp()
        for ps in range(2):
            PO = 16384*ps
            full = self.conv_ops([4*ps+t for t in range(4)], 4, vAF, vBF, ACF)
            Le = k.newlabel("e"); Lj = k.newlabel("j")
            k(f"s_cmp_lg_u32 {s(sE)}, 0"); k(f"s_cbranch_scc1 {Le}")
            self.conv_stream(self.conv_ops([4*ps, 4*ps+3], 2, vAH, vBH, ACH) + full, FR, 16)
            k(f"s_branch {Lj}"); k.label(Le); k.lgq = []
            self.conv_stream(self.conv_ops([4*ps+1, 4*ps+2], 2, vAH, vBH, ACH) + full, FR, 16)
            k.label(Lj); k.lgq = []
            k(f"ds_write_b128 v{vPW}, {v(ACH,4)} offset:{PO+8192}"); k(f"ds_write_b128 v{vPW}, {v(ACH+4,4)} offset:{PO+8192+1024}")
            Lo = k.newlabel("o"); Lj = k.newlabel("j")
            k(f"s_bitcmp1_b32 {s(sW)}, 0"); k(f"s_cbranch_scc1 {Lo}")
            k(f"ds_write_b128 v{vPW}, {v(ACF+8,4)} offset:{PO}"); k(f"ds_write_b128 v{vPW}, {v(ACF+12,4)} offset:{PO+1024}")
            k(f"s_branch {Lj}"); k.label(Lo)
            k(f"ds_write_b128 v{vPW}, {v(ACF,4)} offset:{PO}"); k(f"ds_write_b128 v{vPW}, {v(ACF+4,4)} offset:{PO+1024}")
            k("s_waitcnt lgkmcnt(0)")
            for i in range(8): k(f"v_mov_b32 v{ACF+i}, v{ACF+8+i}")
            k.label(Lj)
            if ps == 0: k.wait_vm0()
            k("s_waitcnt lgkmcnt(0)"); k("s_barrier")
            E = 64
            PB = 128*ps
            k.lg(f"ds_read_b128 {v(E,4)}, v{vPR} offset:{PO}", "p"); k.lg(f"ds_read_b128 {v(E+4,4)}, v{vPR} offset:{PO+1024}", "p")
            k.lg(f"ds_read_b128 {v(E+8,4)}, v{vXF} offset:{48*PB}", "x")
            for i in range(4): k.lg(f"ds_read_b128 {v(E+12+4*i,4)}, v{vSF} offset:{64*PB+16*i}", "s")
            H = 100
            for w_ in range(4): k.lg(f"ds_read_b64 {v(H+2*w_,2)}, v{vPH} offset:{PO+2048*w_}", "hp")
            k.lg(f"ds_read_b32 v{H+8}, v{vXH} offset:{48*PB}", "hp"); k.lg(f"ds_read_b64 {v(H+10,2)}, v{vSH} offset:{64*PB}", "hp"); k.lg(f"ds_read_b64 {v(H+12,2)}, v{vSH} offset:{64*PB+32}", "hp")
            k.wait_lg("p")
            for i in range(8): k(f"v_add_f32 v{ACF+i}, v{ACF+i}, v{E+i}")
            for i in range(4): k(f"v_permlane16_swap_b32 v{ACF+i}, v{ACF+4+i}")
            k.wait_lg("s")
            X = E + 28
            for i in range(4):
                k(f"v_lshlrev_b32 v{X+2*i}, 16, v{E+8+i}"); k(f"v_and_b32 v{X+2*i+1}, 0xffff0000, v{E+8+i}")
            for i in range(8): k(f"v_fma_f32 v{E+12+i}, v{X+i}, v{E+12+i}, v{E+20+i}")
            for i in range(8): k(f"v_fmac_f32 v{X+i}, v{E+12+i}, v{ACF+i}")
            for i in range(4): k(f"v_cvt_pk_bf16_f32 v{E+i}, v{X+2*i}, v{X+2*i+1}")
            k(f"buffer_store_dwordx4 {v(E,4)}, v{vGF}, {s(rWS,4)}, {s(sHF)} offen sc1")
            k.wait_lg("hp")
            for r in range(2):
                k(f"v_add_f32 v{H+r}, v{H+r}, v{H+2+r}"); k(f"v_add_f32 v{H+4+r}, v{H+4+r}, v{H+6+r}")
            k(f"v_lshlrev_b32 v{H+2}, 16, v{H+8}"); k(f"v_and_b32 v{H+3}, 0xffff0000, v{H+8}")
            for r in range(2):
                k(f"v_add_f32 v{H+r}, v{H+r}, v{H+4+r}"); k(f"v_fma_f32 v{H+10+r}, v{H+2+r}, v{H+10+r}, v{H+12+r}")
            for r in range(2): k(f"v_fmac_f32 v{H+2+r}, v{H+10+r}, v{H+r}")
            k(f"v_cvt_pk_bf16_f32 v{H+8}, v{H+2}, v{H+3}")
            k(f"buffer_store_dword v{H+8}, v{vGH}, {s(rWS,4)}, {s(sHH)} offen sc1")
            if ps == 0:
                k(f"s_add_u32 {s(sHF)}, {s(sHF)}, {32*40960}"); k(f"s_add_u32 {s(sHH)}, {s(sHH)}, {32*40960}")
            self.stamp()
        k("s_waitcnt vmcnt(0)"); k("s_barrier")
        self.arrive(2)
        self.stamp()

    def interleave(self, mf, fill, per=2):
        k = self.k; fi = 0; credit = 0
        if mf and mf[0].get("wait"): k.wait_lg(mf[0]["wait"])
        for i, m in enumerate(mf):
            k(m["text"])
            if i + 1 < len(mf) and mf[i+1].get("wait"): k.wait_lg(mf[i+1]["wait"])
            for x in m.get("scal", []): x() if callable(x) else k(x)
            credit = min(credit, 0) + per
            for x in m.get("post", []):
                x(); credit -= 1
            while fi < len(fill) and credit > 0 and fill[fi][2] <= i:
                c, fn, _ = fill[fi]; fn(); credit -= c; fi += 1
        while fi < len(fill): fill[fi][1](); fi += 1

    def g1_epilogue(self, AC, first_idx=2):
        k = self.k; P = []
        C1, C3, CG, CU = 24, 28, 32, 36
        ST = {"m": 40, 0: 43, 1: 46}; OUT = 148
        def add(t, c=1): P.append((c, (lambda t=t: k(t)), first_idx))
        def swi(G, U, cg, cu, st):
            nm, nl, ve = st, st+1, st+2
            for r in range(4): add(f"v_fmac_f32 v{G+r}, v{nm}, v{cg+r}")
            for r in range(4): add(f"v_fmac_f32 v{U+r}, v{nm}, v{cu+r}")
            for r in range(4): add(f"v_mul_f32 v{U+r}, v{G+r}, v{U+r}")
            for r in range(4): add(f"v_mul_f32 v{G+r}, v{G+r}, v{nl}")
            for r in range(4): add(f"v_exp_f32 v{G+r}, v{G+r}", 2)
            for r in range(4): add(f"v_fma_f32 v{G+r}, v{G+r}, v{ve}, v{ve}")
            for r in range(4): add(f"v_rcp_f32 v{G+r}, v{G+r}", 2)
            for r in range(4): add(f"v_mul_f32 v{U+r}, v{U+r}, v{G+r}")
        for a_ in range(2):
            swi(AC+12*a_, AC+12*a_+4, C1, C3, ST[a_])
            add(f"v_cvt_pk_bf16_f32 v{OUT+2*a_}, v{AC+12*a_+4}, v{AC+12*a_+5}"); add(f"v_cvt_pk_bf16_f32 v{OUT+2*a_+1}, v{AC+12*a_+6}, v{AC+12*a_+7}")
        for r in range(4): add(f"v_permlane16_swap_b32 v{AC+8+r}, v{AC+20+r}")
        add(f"v_permlane16_swap_b32 v{OUT}, v{OUT+2}"); add(f"v_permlane16_swap_b32 v{OUT+1}, v{OUT+3}")
        P.append((1, lambda: k.vm(f"buffer_store_dwordx4 {v(OUT,4)}, v13, {s(rWS,4)}, {s(sHO)} offen sc1", "hh"), first_idx))
        swi(AC+8, AC+20, CG, CU, ST["m"])
        add(f"v_cvt_pk_bf16_f32 v{OUT+4}, v{AC+20}, v{AC+21}"); add(f"v_cvt_pk_bf16_f32 v{OUT+5}, v{AC+22}, v{AC+23}")
        P.append((1, lambda: k.vm(f"buffer_store_dwordx2 {v(OUT+4,2)}, v14, {s(rWS,4)}, {s(sHO)} offen sc1", "hh"), first_idx))
        return P

    def g1_stats(self, idx):
        k = self.k; P = []
        def add(t, c=1): P.append((c, (lambda t=t: k(t)), idx))
        T = 50
        P.append((1, lambda: k.lg(f"ds_read2st64_b32 {v(T,2)}, v18 offset0:0 offset1:2", "st"), idx))
        P.append((1, lambda: k.lg(f"ds_read2st64_b32 {v(T+2,2)}, v18 offset0:4 offset1:6", "st"), idx))
        P.append((1, lambda: k.lg(f"ds_read2st64_b32 {v(T+4,2)}, v17 offset0:0 offset1:8", "st"), idx))
        P.append((1, lambda: k.lg(f"ds_read2st64_b32 {v(T+6,2)}, v17 offset0:16 offset1:24", "st"), idx))
        return P
    def g1_stats2(self, idx):
        k = self.k; P = []
        def add(t, c=1): P.append((c, (lambda t=t: k(t)), idx))
        T = 50
        P.append((0, lambda: k.wait_lg("st"), idx))
        for i in range(4): add(f"v_add_f32 v{T+2*i}, v{T+2*i}, v{T+2*i+1}")
        add(f"v_add_f32 v{T}, v{T}, v{T+2}"); add(f"v_add_f32 v{T+4}, v{T+4}, v{T+6}")
        add(f"v_mul_f32 v40, {-1.0/640!r}, v{T}")
        add(f"v_mul_f32 v42, {1.0/640!r}, v{T+4}")
        add(f"v_fma_f32 v42, -v40, v40, v42"); add("v_max_f32 v42, 0, v42"); add(f"v_add_f32 v42, {1e-5!r}, v42")
        add("v_rsq_f32 v41, v42", 2); add("v_mov_b32 v43, v40"); add(f"v_mul_f32 v41, {-1.4426950408889634!r}, v41")
        add("v_mov_b32 v46, v40"); add("v_mov_b32 v45, v42"); add("v_mov_b32 v48, v42"); add("v_mov_b32 v44, v41"); add("v_mov_b32 v47, v41")
        add("v_permlane16_swap_b32 v43, v46"); add("v_permlane16_swap_b32 v45, v48"); add("v_permlane16_swap_b32 v44, v47")
        return P

    def phase2(self):
        k = self.k
        HB = 4; ONES = 20; SA = 60; AC0 = 76; HF = 124
        L_GR = 81920; L_SM = L_GR + 8192
        self.poll(1)
        k("v_lshlrev_b32 v12, 4, v1")
        k(f"s_lshl_b32 {s(sT)}, {s(sC)}, 2"); k(f"s_add_u32 {s(sT)}, {s(sT)}, {s(sW)}"); k(f"s_mul_i32 {s(sT)}, {s(sT)}, {20*3072}"); k(f"s_add_u32 {s(sT)}, {s(sT)}, {WS_W13}")
        k.vmq = []
        for q in range(4):
            k(f"s_add_u32 {s(sT+1)}, {s(sW)}, {q}"); k(f"s_and_b32 {s(sT+1)}, {s(sT+1)}, 3"); k(f"s_mul_i32 {s(sT+1)}, {s(sT+1)}, {5*3072}"); k(f"s_add_u32 {s(sT+1)}, {s(sT+1)}, {s(sT)}")
            for jj in range(5):
                for t in range(3):
                    k.vm(f"buffer_load_dwordx4 {a(12*(5*q+jj)+4*t,4)}, v12, {s(rWS,4)}, {s(sT+1)} offen offset:{1024*t} sc1", ("w", 5*q+jj))
                if jj < 4: k(f"s_add_u32 {s(sT+1)}, {s(sT+1)}, 3072")
        k("v_lshrrev_b32 v2, 4, v1"); k("v_and_b32 v3, 15, v1")
        k("v_lshrrev_b32 v49, 2, v1"); k("v_lshlrev_b32 v49, 6, v49")
        k("v_and_b32 v50, 3, v1"); k("v_lshl_add_u32 v49, v50, 3, v49")
        k("v_and_b32 v50, 1, v2"); k("v_lshl_add_u32 v49, v50, 5, v49")
        for q in range(4):
            k(f"s_add_u32 {s(sT+1)}, {s(sW)}, {q}"); k(f"s_and_b32 {s(sT+1)}, {s(sT+1)}, 3"); k(f"s_mul_i32 {s(sT+1)}, {s(sT+1)}, 10240")
            k(f"v_add_u32 v{HB+2*q}, {s(sT+1)}, v49"); k(f"v_xor_b32 v{HB+2*q+1}, 32, v{HB+2*q}")
        k("v_mul_u32_u24 v51, 49152, v50"); k("v_lshl_add_u32 v51, v3, 4, v51"); k("v_lshrrev_b32 v52, 1, v2")
        k("v_lshl_add_u32 v13, v52, 8, v51"); k("v_lshl_add_u32 v14, v52, 3, v51"); k("v_add_u32 v14, 512, v14")
        k(f"s_lshl_b32 {s(sT+1)}, {s(sW)}, 11"); k(f"s_add_u32 {s(sT+1)}, {s(sT+1)}, {L_GR}"); k(f"v_add_u32 v15, {s(sT+1)}, v12")
        k(f"s_lshl_b32 {s(sT+1)}, {s(sW)}, 9"); k(f"s_add_u32 {s(sT+1)}, {s(sT+1)}, {L_SM}"); k("v_lshlrev_b32 v16, 2, v1"); k(f"v_add_u32 v16, {s(sT+1)}, v16")
        k("v_lshrrev_b32 v51, 2, v3"); k("v_lshl_add_u32 v51, v51, 4, v3"); k("v_lshlrev_b32 v51, 4, v51"); k("v_and_b32 v52, 3, v3"); k("v_lshl_add_u32 v51, v52, 2, v51")
        k("v_lshl_add_u32 v51, v50, 10, v51"); k(f"v_add_u32 v17, {L_GR}, v51")
        k("v_lshlrev_b32 v51, 2, v3"); k("v_lshl_add_u32 v51, v50, 8, v51"); k(f"v_add_u32 v18, {L_SM}, v51")
        for i in range(4): k(f"v_mov_b32 v{ONES+i}, 0x3f803f80")
        for j in range(20):
            k.wait_vm(("w", j))
            for t in range(3): k(f"v_mfma_f32_16x16x32_bf16 {v(24+4*t,4)}, {a(12*j+4*t,4)}, {v(ONES,4)}, {'0' if j==0 else v(24+4*t,4)}")
        for r in range(4): k(f"v_mov_b32 v{36+r}, v{32+r}")
        for r in range(4): k(f"v_permlane16_swap_b32 v{32+r}, v{36+r}")
        k(f"s_mul_i32 {s(sHS)}, {s(sR)}, {2*40960}"); k(f"s_mul_i32 {s(sHL)}, {s(sW)}, 10240"); k(f"s_add_u32 {s(sHS)}, {s(sHS)}, {s(sHL)}"); k(f"s_add_u32 {s(sHS)}, {s(sHS)}, {WS_HC}")
        k(f"s_mul_i32 {s(sHO)}, {s(sR)}, {2*98304}"); k(f"s_lshl_b32 {s(sT)}, {s(sC)}, 2"); k(f"s_add_u32 {s(sT)}, {s(sT)}, {s(sW)}"); k(f"s_mul_i32 {s(sT)}, {s(sT)}, 768")
        k(f"s_add_u32 {s(sHO)}, {s(sHO)}, {s(sT)}"); k(f"s_add_u32 {s(sHO)}, {s(sHO)}, {WS_HH}")
        self.stamp()
        self.poll(2)
        self.stamp()
        k.vmq = []; k.lgq = []
        CH_STEP = [40960, 31*40960, 40960]; HO_STEP = [98304, 31*98304, 98304]
        def dma(c, i):
            def f():
                if i % 4 == 0:
                    k(f"s_add_u32 m0, {s(sHL)}, {(c&1)*40960 + 1024*i}")
                    if i: k(f"s_add_u32 {s(sHS)}, {s(sHS)}, 4096")
                k.vm(f"buffer_load_dwordx4 v12, {s(rWS,4)}, {s(sHS)} offen offset:{1024*(i%4)} sc1 lds", ("h", c, i//2))
                if i == 9 and c < 3: k(f"s_add_u32 {s(sHS)}, {s(sHS)}, {CH_STEP[c] - 8192}")
            return f
        for i in range(10): dma(0, i)()
        PF = 2
        def rd(c, j, a_, h):
            q, jj = divmod(j, 5); r = HF + 8*((20*c + j) % 3) + 4*a_ + 2*h
            return lambda: k.lg(f"ds_read_b64_tr_b16 {v(r,2)}, v{HB+2*q+a_} offset:{(c&1)*40960 + jj*2048 + 1024*h}", ("f", c, j, a_))
        for j in range(PF):
            k.wait_vm(("h", 0, j))
            for a_ in range(2):
                for h in range(2): rd(0, j, a_, h)()
        for c in range(4):
            AC = AC0 + 24*(c & 1); mf = []
            for j in range(20):
                grp = []
                for a_ in range(2):
                    hf = v(HF + 8*((20*c + j) % 3) + 4*a_, 4)
                    if j < 5:
                        grp.append(dict(text=f"v_mfma_f32_16x16x32_bf16 {v(SA+4*a_,4)}, {v(ONES,4)}, {hf}, {'0' if j==0 else v(SA+4*a_,4)}", wait=[("f", c, j, a_)]))
                        grp.append(dict(text=f"v_mfma_f32_16x16x32_bf16 {v(SA+8+4*a_,4)}, {hf}, {hf}, {'0' if j==0 else v(SA+8+4*a_,4)}"))
                    for t in range(3):
                        grp.append(dict(text=f"v_mfma_f32_16x16x32_bf16 {v(AC+12*a_+4*t,4)}, {a(12*j+4*t,4)}, {hf}, {'0' if j==0 else v(AC+12*a_+4*t,4)}", wait=[("f", c, j, a_)]))
                nc, nj = (c, j+PF) if j+PF < 20 else (c+1, j+PF-20)
                if nc < 4:
                    sc = []
                    if nj < 5: sc.append(lambda nc=nc, nj=nj: k.wait_vm(("h", nc, nj)))
                    if nj == 5: sc.append("s_barrier")
                    grp[0].setdefault("scal", []).extend(sc)
                    rds = [rd(nc, nj, a_, h) for a_ in range(2) for h in range(2)]
                    for x, r_ in zip((0, 1, 3, 4), rds): grp[x].setdefault("post", []).append(r_)
                if c < 3 and 4 <= j <= 13: grp[2].setdefault("post", []).append(dma(c+1, j-4))
                if j == 6:
                    for a_ in range(2):
                        grp[2+3*a_].setdefault("post", []).append(lambda a_=a_: k.lg(f"ds_write_b128 v15, {v(SA+8+4*a_,4)} offset:{1024*a_}", "sw"))
                if j == 7:
                    for a_ in range(2):
                        grp[2+3*a_].setdefault("post", []).append(lambda a_=a_: k.lg(f"ds_write_b32 v16, v{SA+4*a_} offset:{256*a_}", "sw"))
                if j == 10: grp[5].setdefault("scal", []).extend([lambda: k.wait_lg("sw"), "s_barrier"])
                mf += grp
            fill = []
            if c > 0:
                fill += self.g1_epilogue(AC0 + 24*((c-1) & 1), 3)
                fill.append((0, lambda c=c: k(f"s_add_u32 {s(sHO)}, {s(sHO)}, {HO_STEP[c-1]}"), 3))
            n10 = 50 + 6*6
            st1 = self.g1_stats(n10)
            cut = max(0, len(fill) - 12)
            fill = fill[:cut] + st1 + fill[cut:] + self.g1_stats2(n10 + 4)
            self.interleave(mf, fill)
            self.stamp()
        for c_, fn, _ in self.g1_epilogue(AC0 + 24, 0): fn()
        k.wait_vm0(); k("s_barrier")
        self.arrive(3)
        self.stamp()

    def phase3(self):
        k = self.k
        L_RED = 0; L_RES = 98304
        AC = 24; HB = 112
        sDT, sHf, sCK = 56+5, 56+6, 56+7
        k(f"s_and_b32 {s(sDT)}, {s(sC)}, 7"); k(f"s_lshr_b32 {s(sHf)}, {s(sC)}, 3")
        k(f"s_lshl_b32 {s(sCK)}, {s(sR)}, 1"); k(f"s_and_b32 {s(sT+1)}, {s(sW)}, 1"); k(f"s_add_u32 {s(sCK)}, {s(sCK)}, {s(sT+1)}")
        k(f"s_lshr_b32 {s(sT+1)}, {s(sW)}, 1"); k(f"s_lshl_b32 {s(sT+1)}, {s(sT+1)}, 5"); k(f"s_add_u32 {s(sCK)}, {s(sCK)}, {s(sT+1)}")
        k.vmq = []; k.lgq = []
        k(f"s_mul_i32 {s(sT+1)}, {s(sDT)}, 48"); k(f"s_mul_i32 {s(sT+2)}, {s(sW)}, 12"); k(f"s_add_u32 {s(sT+1)}, {s(sT+1)}, {s(sT+2)}"); k(f"s_mul_i32 {s(sT+1)}, {s(sT+1)}, 5120"); k(f"s_add_u32 {s(sT+1)}, {s(sT+1)}, {WS_W2}")
        for f in range(60):
            k.vm(f"buffer_load_dwordx4 {a(4*f,4)}, v12, {s(rWS,4)}, {s(sT+1)} offen offset:{1024*(f%4)} sc1", "w2")
            if f % 4 == 3: k(f"s_add_u32 {s(sT+1)}, {s(sT+1)}, 4096")
        k.wait_vm0()
        k(f"s_mul_i32 {s(sT+1)}, {s(sCK)}, 40960"); k(f"s_mul_i32 {s(sT+2)}, {s(sDT)}, 5120"); k(f"s_add_u32 {s(sT+1)}, {s(sT+1)}, {s(sT+2)}"); k(f"s_add_u32 {s(sT+1)}, {s(sT+1)}, {WS_HC}")
        k(f"s_mul_i32 {s(sT+2)}, {s(sW)}, 5120"); k(f"s_add_u32 {s(sT+2)}, {s(sT+2)}, {L_RES}"); k(f"s_mov_b32 m0, {s(sT+2)}")
        for i in range(4): k.vm(f"buffer_load_dwordx4 v12, {s(rWS,4)}, {s(sT+1)} offen offset:{1024*i} sc1 lds", "res")
        k(f"s_add_u32 m0, m0, 4096"); k(f"s_add_u32 {s(sT+1)}, {s(sT+1)}, 4096")
        k.vm(f"buffer_load_dwordx4 v12, {s(rWS,4)}, {s(sT+1)} offen sc1 lds", "res")
        k("v_lshrrev_b32 v2, 4, v1"); k("v_and_b32 v3, 15, v1")
        k("v_lshrrev_b32 v4, 2, v1"); k("v_lshlrev_b32 v4, 6, v4"); k("v_and_b32 v5, 3, v1"); k("v_lshl_add_u32 v4, v5, 3, v4")
        k("v_and_b32 v5, 1, v2"); k(f"v_xor_b32 v6, {s(sHf)}, v5"); k("v_lshl_add_u32 v4, v6, 5, v4"); k(f"v_add_u32 v4, {s(sT+2)}, v4")
        k("v_mul_u32_u24 v6, 1280, v3"); k("v_lshl_add_u32 v7, v2, 3, v6"); k("v_add_u32 v7, 128, v7")
        k("v_lshl_add_u32 v6, v5, 5, v6"); k("v_lshrrev_b32 v5, 1, v2"); k("v_lshl_add_u32 v6, v5, 4, v6")
        k(f"s_mul_i32 {s(sT+1)}, {s(sW)}, 5120"); k(f"v_add_u32 v8, {s(sT+1)}, v12")
        k(f"s_mul_i32 {s(sT+1)}, {s(sW)}, 20480"); k(f"v_add_u32 v9, {s(sT+1)}, v12")
        k(f"v_add_u32 v10, {2*20480}, v8")
        sOO = sT+3
        k(f"s_lshl_b32 {s(sOO)}, {s(sCK)}, 1"); k(f"s_add_u32 {s(sOO)}, {s(sOO)}, {s(sHf)}"); k(f"s_mul_i32 {s(sOO)}, {s(sOO)}, {16*1280}"); k(f"s_mul_i32 {s(sT+1)}, {s(sDT)}, 160"); k(f"s_add_u32 {s(sOO)}, {s(sOO)}, {s(sT+1)}")
        sHI = sT+4
        k(f"s_lshl_b32 {s(sHI)}, {s(sR)}, 2"); k(f"s_add_u32 {s(sHI)}, {s(sHI)}, {s(sHf)}"); k(f"s_mul_i32 {s(sHI)}, {s(sHI)}, 49152"); k(f"s_mul_i32 {s(sT+1)}, {s(sW)}, 12288")
        k(f"s_add_u32 {s(sHI)}, {s(sHI)}, {s(sT+1)}"); k(f"s_add_u32 {s(sHI)}, {s(sHI)}, {WS_HH}")
        self.poll(3)
        self.stamp()
        STEP = [98304, 31*98304, 98304]
        def ld(i, kb):
            def f():
                k.vm(f"buffer_load_dwordx4 {v(HB+48*(i%3)+4*kb,4)}, v12, {s(rWS,4)}, {s(sHI)} offen offset:{1024*(kb%4)} sc1", ("hh", i, kb))
                if kb % 4 == 3: k(f"s_add_u32 {s(sHI)}, {s(sHI)}, {4096 if kb < 11 else (STEP[i]-8192 if i < 3 else 0)}")
            return f
        for i in range(3):
            for kb in range(12): ld(i, kb)()
        for i in range(4):
            for kb in range(12):
                k.wait_vm(("hh", i, kb))
                for t in range(5):
                    k(f"v_mfma_f32_16x16x32_bf16 {v(AC+20*i+4*t,4)}, {a(20*kb+4*t,4)}, {v(HB+48*(i%3)+4*kb,4)}, {'0' if kb==0 else v(AC+20*i+4*t,4)}")
                if i == 0: ld(3, kb)()
                if i > 0 and 2 <= kb < 7:
                    t = kb - 2; j = i - 1
                    k(f"ds_write_b128 v{8 if j<2 else 10}, {v(AC+20*j+4*t,4)} offset:{(j%2)*20480 + 1024*t}")
        for t in range(5): k(f"ds_write_b128 v10, {v(AC+60+4*t,4)} offset:{20480 + 1024*t}")
        self.stamp()
        R = 104
        for t in range(5): k(f"ds_read_b64_tr_b16 {v(R+2*t,2)}, v4 offset:{1024*t}")
        k("s_waitcnt lgkmcnt(0)"); k("s_barrier")
        for t in range(5):
            for w_ in range(4): k.lg(f"ds_read_b128 {v(AC+16*t+4*w_,4)}, v9 offset:{5120*w_ + 1024*t}", t)
        O = 116
        for t in range(5):
            k.wait_lg(t); B = AC + 16*t
            for r in range(4): k(f"v_add_f32 v{B+r}, v{B+r}, v{B+4+r}"); k(f"v_add_f32 v{B+8+r}, v{B+8+r}, v{B+12+r}")
            for h in range(2): k(f"v_lshlrev_b32 v{B+4+2*h}, 16, v{R+2*t+h}"); k(f"v_and_b32 v{B+5+2*h}, 0xffff0000, v{R+2*t+h}")
            for r in range(4): k(f"v_add_f32 v{B+r}, v{B+r}, v{B+8+r}")
            for r in range(4): k(f"v_add_f32 v{B+r}, v{B+r}, v{B+4+r}")
            k(f"v_cvt_pk_bf16_f32 v{O+2*t}, v{B}, v{B+1}"); k(f"v_cvt_pk_bf16_f32 v{O+2*t+1}, v{B+2}, v{B+3}")
            if t in (1, 3):
                b = O + 2*(t-1)
                k(f"v_permlane16_swap_b32 v{b}, v{b+2}"); k(f"v_permlane16_swap_b32 v{b+1}, v{b+3}")
                k(f"buffer_store_dwordx4 {v(b,4)}, v6, {s(rOUT,4)}, {s(sOO)} offen offset:{32*(t-1)}")
        k(f"buffer_store_dwordx2 {v(O+8,2)}, v7, {s(rOUT,4)}, {s(sOO)} offen")

    def finish(self):
        k = self.k
        if self.prof:
            self.stamp()
            k("s_memtime s[100:101]"); k.wait_lg0(); k(f"s_sub_u32 {s(sSTAMP+self.nst)}, s100, s98"); self.nst += 1
            L = k.newlabel("pf")
            k(f"s_cmp_lg_u32 {s(sW)}, 0"); k(f"s_cbranch_scc1 {L}")
            k(f"s_lshl_b32 {s(sT)}, {s(sID)}, 7"); k(f"s_add_u32 {s(sT)}, {s(sT)}, {WS_PROF}")
            k("s_mov_b64 exec, 1")
            for i in range(self.nst):
                k(f"v_mov_b32 v2, {4*i}"); k(f"v_mov_b32 v3, {s(sSTAMP+i)}")
                k(f"buffer_store_dword v3, v2, {s(rWS,4)}, {s(sT)} offen")
            if self.dbgsel:
                k(f"s_cmp_lg_u32 {s(sID)}, 77"); k(f"s_cbranch_scc1 {L}")
                for j, i in enumerate(self.dbgsel):
                    k(f"s_sub_u32 {s(sT)}, {s(sSTAMP+i)}, {s(sSTAMP) if i < self.nst-1 else 0}")
                    k(f"v_mov_b32 v2, {4*(j+1)}"); k(f"v_mov_b32 v3, {s(sT)}")
                    k(f"global_store_dword v2, v3, {s(sDBG,2)}")
            k("s_mov_b64 exec, -1")
            k.label(L)
        k.label("L_END"); k("s_endpgm")

    def build(self):
        self.prologue()
        self.phase0()
        if self.stop >= 1: self.phase1()
        if self.stop >= 2: self.phase2()
        if self.stop >= 3: self.phase3()
        self.finish()
        nn = self.k.pad()
        hdr = open(os.path.join(os.path.dirname(os.path.abspath(__file__)), "header.txt")).read()
        return (hdr + f"; @launch grid=(256,1,1) block=(256,1,1) lds={LDS_BYTES}\n"
            + '.amdgcn_target "amdgcn-amd-amdhsa--gfx950"\n.text\n'
            + f".globl {KNAME}\n.p2align 8\n.type {KNAME},@function\n{KNAME}:\n" + self.k.text()
            + f""".section .rodata,"a"
.p2align 6
.amdhsa_kernel {KNAME}
  .amdhsa_next_free_vgpr 512
  .amdhsa_next_free_sgpr 102
  .amdhsa_accum_offset 256
  .amdhsa_group_segment_fixed_size 0
  .amdhsa_kernarg_size 104
  .amdhsa_user_sgpr_count 2
  .amdhsa_user_sgpr_kernarg_segment_ptr 1
  .amdhsa_system_sgpr_workgroup_id_x 1
  .amdhsa_float_denorm_mode_32 3
.end_amdhsa_kernel
""")

if __name__ == "__main__":
    import argparse
    ap = argparse.ArgumentParser(); ap.add_argument("-o", default="k.s"); ap.add_argument("--stop", type=int, default=99); ap.add_argument("--prof", action="store_true")
    ap.add_argument("--dbg", default="")
    A = ap.parse_args()
    open(A.o, "w").write(Gen(A.stop, A.prof, [int(x) for x in A.dbg.split(",")] if A.dbg else None).build())
```

```python
import sys, os
sys.path.insert(0, os.path.dirname(os.path.abspath(__file__)))
from asmlib import *

KNAME = "sequential_preLN__ssm_conv_h3__glu_gated_swiglu__prompt_kernel"
WS_SYNC = 0x0
WS_F3   = 0x8000
WS_PROF = 0x20000
WS_STAT = 0x40000
WS_KVT  = 0x100000
WS_XT   = 0x400000
WS_W13  = 0x800000
WS_W2   = 0xC00000
WS_HC   = 0xE00000
WS_HH   = 0x1100000
WS_SIZE = 0x2000000
NSH = 16
L_TOEP = 0; CSTR = 4160
L_U = 49920; L_UD = L_U + 1440
L_XI = L_U + 13728
L_ST = L_XI + 12288
L_PART = L_ST + 16384
L_P0K = 92320; L_P0V = L_P0K + 15360; L_P0X = L_P0V + 10240
L_RP = 128160
LDS_BYTES = 163840
sID, sW = 2, 3
sDBG, sDP = 4, 6
rK, rV, rX, rWS, rSS, rSH, rW1, rW3, rW2, rOUT = 8, 12, 16, 20, 24, 28, 32, 36, 40, 44
sXG, sM, sSB, sC0, sE, sR, sC = 48, 49, 50, 51, 52, 53, 54
sT = 56
sX = 64
sDV = 70
sCNT = 73
sHS, sHL, sHO = 70, 71, 72
sSTAMP = 76

class Gen:
    def __init__(self, stop=99, prof=False, dbgsel=None):
        self.dbgsel = dbgsel
        self.k = Asm(); self.stop = stop; self.prof = prof; self.nst = 0
    def stamp(self):
        if self.prof:
            k = self.k
            k(f"s_memrealtime s[100:101]"); k.wait_lg0(); k(f"s_mov_b32 {s(sSTAMP + self.nst)}, s100"); self.nst += 1
    def arrive(self, idx):
        k = self.k; L = k.newlabel("arr")
        k(f"s_cmp_lg_u32 {s(sW)}, 0"); k(f"s_cbranch_scc1 {L}")
        k(f"s_and_b32 {s(sT)}, {s(sID)}, {NSH-1}"); k(f"s_lshl_b32 {s(sT)}, {s(sT)}, 8")
        k(f"s_add_u32 {s(sT)}, {s(sT)}, {WS_SYNC + idx*NSH*256}")
        k(f"v_mov_b32 v2, {s(sT)}"); k("v_mov_b32 v3, 1")
        k("s_mov_b64 exec, 1")
        k(f"global_atomic_add v2, v3, {s(rWS,2)} sc1")
        k("s_mov_b64 exec, -1")
        k.label(L)
    def poll(self, idx):
        k = self.k; L = k.newlabel("pol"); Lp = k.newlabel("polp"); Ld = k.newlabel("pold")
        k(f"s_cmp_lg_u32 {s(sW)}, 0"); k(f"s_cbranch_scc1 {L}")
        k(f"v_lshlrev_b32 v2, 8, v1"); k(f"v_add_u32 v2, {WS_SYNC + idx*NSH*256}, v2")
        k(f"s_mov_b64 exec, {(1<<NSH)-1}")
        k(f"s_mov_b32 {s(sCNT)}, 0x40000")
        k.label(Lp)
        k(f"global_load_dword v3, v2, {s(rWS,2)} sc1"); k("s_waitcnt vmcnt(0)")
        k(f"v_cmp_ne_u32 vcc, {256//NSH}, v3"); k(f"s_cbranch_vccz {Ld}")
        k("s_sleep 1"); k(f"s_sub_u32 {s(sCNT)}, {s(sCNT)}, 1"); k(f"s_cmp_lg_u32 {s(sCNT)}, 0"); k(f"s_cbranch_scc1 {Lp}")
        k.label(Ld); k("s_mov_b64 exec, -1")
        k.label(L); k("s_barrier")

    def prologue(self):
        k = self.k
        k(f"s_cmp_ge_u32 {s(sID)}, 256"); k("s_cbranch_scc1 L_END")
        for r, off in ((rK, 8), (rV, 16), (rX, 0), (rWS, 96), (rSH, 24), (rSS, 32), (sDP, 40), (rW1, 56), (rW3, 64), (rW2, 72), (rOUT, 80), (sDBG, 88)):
            k(f"s_load_dwordx2 {s(r,2)}, s[0:1], {off}")
        if self.prof: k(f"s_memrealtime {s(sSTAMP,2)}"); k("s_memtime s[98:99]"); self.nst = 1
        k("v_and_b32 v1, 63, v0"); k("v_lshrrev_b32 v2, 6, v0"); k(f"v_readfirstlane_b32 {s(sW)}, v2")
        for r, n in ((rK, 2621440), (rV, 2621440), (rX, 2621440), (rWS, WS_SIZE), (rSH, 5120), (rSS, 2621440), (rW1, 1966080), (rW3, 1966080), (rW2, 1966080), (rOUT, 2621440)):
            k(f"s_mov_b32 {s(r+2)}, {n}"); k(f"s_mov_b32 {s(r+3)}, 0x20000")
        k(f"s_and_b32 {s(sXG)}, {s(sID)}, 7"); k(f"s_lshr_b32 {s(sM)}, {s(sID)}, 3")
        k(f"s_lshl_b32 {s(sSB)}, {s(sXG)}, 5"); k(f"s_add_u32 {s(sSB)}, {s(sSB)}, {s(sM)}")
        k(f"s_and_b32 {s(sE)}, {s(sM)}, 1"); k(f"s_lshr_b32 {s(sT)}, {s(sM)}, 1"); k(f"s_mul_i32 {s(sT)}, {s(sT)}, 5")
        k(f"s_mul_i32 {s(sC0)}, {s(sXG)}, 80"); k(f"s_add_u32 {s(sC0)}, {s(sC0)}, {s(sT)}")
        k(f"s_lshl_b32 {s(sT)}, {s(sE)}, 1"); k(f"s_add_u32 {s(sC0)}, {s(sC0)}, {s(sT)}")
        k(f"s_lshr_b32 {s(sR)}, {s(sXG)}, 2"); k(f"s_lshl_b32 {s(sR)}, {s(sR)}, 3"); k(f"s_lshr_b32 {s(sT)}, {s(sM)}, 2"); k(f"s_add_u32 {s(sR)}, {s(sR)}, {s(sT)}")
        k(f"s_and_b32 {s(sC)}, {s(sXG)}, 3"); k(f"s_lshl_b32 {s(sC)}, {s(sC)}, 2"); k(f"s_and_b32 {s(sT)}, {s(sM)}, 3"); k(f"s_add_u32 {s(sC)}, {s(sC)}, {s(sT)}")

    def phase0(self):
        k = self.k
        VO, KO = 4, 8
        vT16 = 12
        SH = 14
        SS = 20
        k(f"v_lshlrev_b32 v{vT16}, 4, v0")
        k("v_lshrrev_b32 v2, 4, v0"); k("v_mul_u32_u24 v2, 52, v2")
        k(f"s_mul_i32 {s(sT)}, {s(sSB)}, 10240")
        for i in range(4):
            if i: k(f"v_add_u32 v2, 832, v2"); k(f"s_add_u32 {s(sT)}, {s(sT)}, 4096")
            k("v_lshrrev_b32 v3, 2, v2"); k("v_and_b32 v3, 0xc0, v3")
            k(f"v_xad_u32 v{VO+i}, v{vT16}, v3, {s(sT)}")
            k(f"v_subrev_u32 v{KO+i}, 5120, v{VO+i}")
        k(f"s_lshl_b32 {s(sT+1)}, {s(sW)}, 10")
        k.wait_lg0()
        Lz = k.newlabel("z")
        k(f"s_cmp_lg_u32 {s(sID)}, 0"); k(f"s_cbranch_scc1 {Lz}")
        for i in range(4): k(f"v_mov_b32 v{40+i}, 0")
        k("v_lshlrev_b32 v2, 7, v0"); k(f"v_add_u32 v2, {WS_F3}, v2")
        k(f"buffer_store_dwordx4 v[40:43], v2, {s(rWS,4)}, 0 offen sc1")
        k("v_lshlrev_b32 v2, 8, v1")
        k(f"buffer_store_dword v40, v2, {s(rWS,4)}, 0 offen sc1")
        k.label(Lz)
        NT = "nt"
        def dma(srd, vo, lbase, i):
            k(f"s_add_u32 m0, {s(sT+1)}, {lbase + 4096*i}")
            k.vm(f"buffer_load_dwordx4 v{vo+i}, {s(srd,4)}, 0 offen {NT} lds", "p0")
        L1 = k.newlabel("c"); L2 = k.newlabel("c")
        k(f"s_cmp_eq_u32 {s(sW)}, 3"); k(f"s_cbranch_scc1 {L1}")
        dma(rK, KO, L_P0K, 3)
        k(f"s_cmp_eq_u32 {s(sW)}, 2"); k(f"s_cbranch_scc1 {L1}")
        dma(rV, VO, L_P0V, 2); dma(rX, VO, L_P0X, 2)
        k.label(L1)
        for i in range(3): dma(rK, KO, L_P0K, i)
        for i in range(2): dma(rV, VO, L_P0V, i)
        for i in range(2): dma(rX, VO, L_P0X, i)
        k("v_lshlrev_b32 v2, 3, v0"); k(f"s_movk_i32 {s(sT+2)}, 0x1000")
        k.vm(f"buffer_load_dwordx2 {v(SH,2)}, v2, {s(rSH,4)}, 0 offen", "p0")
        k.vm(f"buffer_load_dwordx2 {v(SH+2,2)}, v2, {s(rSH,4)}, 0 offen offset:2048", "p0")
        k.vm(f"buffer_load_dwordx2 {v(SH+4,2)}, v2, {s(rSH,4)}, {s(sT+2)} offen", "p0")
        k(f"v_cmp_eq_u32 {s(sX+2,2)}, 0, v0")
        k(f"v_subrev_u32 v2, 8, v{vT16}"); k("v_mov_b32 v3, 0x7ffffff0"); k(f"v_cndmask_b32 v2, v2, v3, {s(sX+2,2)}")
        k(f"s_lshl_b32 {s(sT+2)}, {s(sC0)}, 12")
        for j in range(3):
            k.vm(f"buffer_load_dwordx4 {v(SS+6*j+2,4)}, v{vT16}, {s(rSS,4)}, {s(sT+2)} offen {NT}", "ss")
            k.vm(f"buffer_load_dwordx2 {v(SS+6*j,2)}, v2, {s(rSS,4)}, {s(sT+2)} offen {NT}", "ss")
            if j < 2: k(f"s_add_u32 {s(sT+2)}, {s(sT+2)}, 4096")
        k(f"s_lshr_b32 {s(sT+2)}, {s(sC0)}, 1"); k(f"s_lshl_b32 {s(sT+2)}, {s(sT+2)}, 2")
        k(f"s_load_dwordx2 {s(sDV,2)}, {s(sDP,2)}, {s(sT+2)}")
        Lw2 = k.newlabel("w2"); Lj = k.newlabel("j")
        k(f"s_cmp_ge_u32 {s(sID)}, 160"); k(f"s_cbranch_scc1 {Lw2}")
        k(f"s_lshl_b32 {s(sT+2)}, {s(sM)}, 5"); k(f"s_lshl_b32 {s(sT+3)}, {s(sW)}, 3"); k(f"s_add_u32 {s(sT+2)}, {s(sT+2)}, {s(sT+3)}")
        k(f"s_mul_i32 {s(sT+2)}, {s(sT+2)}, 3072"); k(f"s_mul_i32 {s(sT+3)}, {s(sXG)}, 384"); k(f"s_add_u32 {s(sT+2)}, {s(sT+2)}, {s(sT+3)}")
        k(f"s_mul_i32 {s(sT+3)}, {s(sW)}, 3072")
        for i in range(3):
            k(f"v_add_u32 v2, {64*i}, v1"); k("v_mul_u32_u24 v3, 2731, v2"); k("v_lshrrev_b32 v3, 16, v3")
            k(f"v_mul_u32_u24 v3, {3072 - 24*16}, v3"); k("v_lshl_add_u32 v2, v2, 4, v3")
            for mat, srd in ((0, rW1), (1, rW3)):
                k(f"s_add_u32 m0, {s(sT+3)}, {L_RP + mat*12288 + 1024*i}")
                k(f"buffer_load_dwordx4 v2, {s(srd,4)}, {s(sT+2)} offen {NT} lds")
        k(f"s_branch {Lj}")
        k.label(Lw2)
        k(f"s_sub_u32 {s(sT+4)}, {s(sID)}, 160"); k(f"s_lshr_b32 {s(sT+2)}, {s(sT+4)}, 1"); k(f"s_lshl_b32 {s(sT+2)}, {s(sT+2)}, 5")
        k(f"s_lshl_b32 {s(sT+3)}, {s(sW)}, 3"); k(f"s_add_u32 {s(sT+2)}, {s(sT+2)}, {s(sT+3)}"); k(f"s_mul_i32 {s(sT+2)}, {s(sT+2)}, 1280")
        k(f"s_and_b32 {s(sT+3)}, {s(sT+4)}, 1"); k(f"s_mul_i32 {s(sT+3)}, {s(sT+3)}, 640"); k(f"s_add_u32 {s(sT+2)}, {s(sT+2)}, {s(sT+3)}")
        k(f"s_mul_i32 {s(sT+3)}, {s(sW)}, 5120")
        for i in range(5):
            k(f"v_add_u32 v2, {64*i}, v1"); k("v_mul_u32_u24 v3, 1639, v2"); k("v_lshrrev_b32 v3, 16, v3")
            k(f"v_mul_u32_u24 v3, {1280 - 40*16}, v3"); k("v_lshl_add_u32 v2, v2, 4, v3")
            k(f"s_add_u32 m0, {s(sT+3)}, {L_RP + 1024*i}")
            k(f"buffer_load_dwordx4 v2, {s(rW2,4)}, {s(sT+2)} offen {NT} lds")
        k(f"buffer_load_dword v255, v1, {s(rSH,4)}, 0 offen")
        k.label(Lj)
        k.vmq += ["rp"] * 6
        k(f"s_getpc_b64 {s(sT+2,2)}"); k.label("L_PC")
        k(f"s_lshl_b32 {s(sT+4)}, {s(sW)}, 5"); k(f"s_add_u32 {s(sT+4)}, {s(sT+4)}, {s(sM)}"); k(f"s_lshl_b32 {s(sT+4)}, {s(sT+4)}, 8")
        k(f"v_lshlrev_b32 v2, 2, v1"); k(f"v_add_u32 v2, {s(sT+4)}, v2"); k("v_min_u32 v2, L_END-L_PC, v2")
        k.vm(f"global_load_dword v254, v2, {s(sT+2,2)}", "rp")
        for i in range(4): k(f"v_mov_b32 v{40+i}, 0")
        k(f"v_cmp_gt_u32 vcc, 90, v0"); k(f"s_and_saveexec_b64 {s(sX,2)}, vcc")
        k(f"ds_write_b128 v{vT16}, v[40:43] offset:{L_U}")
        k(f"s_mov_b64 exec, {s(sX,2)}")
        k("v_lshrrev_b32 v2, 1, v0"); k(f"v_mul_u32_u24 v2, {CSTR}, v2"); k("v_and_b32 v3, 1, v0"); k("v_lshl_add_u32 v2, v3, 4, v2")
        k(f"v_cmp_gt_u32 vcc, 24, v0"); k(f"s_and_saveexec_b64 {s(sX,2)}, vcc")
        k(f"ds_write_b128 v2, v[40:43] offset:{L_TOEP + 4096}")
        k(f"s_mov_b64 exec, {s(sX,2)}")
        vTR = 13
        k("v_bfe_u32 v2, v1, 2, 2")
        k("v_lshrrev_b32 v3, 4, v1"); k("v_lshlrev_b32 v3, 1, v3")
        k("v_bfe_u32 v38, v1, 1, 1"); k("v_add_u32 v3, v3, v38")
        k("v_bfe_u32 v38, v0, 6, 1"); k("v_lshl_add_u32 v3, v38, 3, v3")
        k("v_lshlrev_b32 v38, 2, v2"); k("v_xor_b32 v3, v3, v38"); k("v_lshlrev_b32 v3, 4, v3")
        k("v_mul_u32_u24 v2, 1280, v2"); k("v_add_u32 v3, v3, v2")
        k("v_and_b32 v2, 1, v1"); k("v_lshl_add_u32 v3, v2, 3, v3")
        k("v_lshrrev_b32 v2, 7, v0"); k("v_lshl_add_u32 v3, v2, 8, v3")
        k(f"v_add_u32 v{vTR}, {L_P0K}, v3")
        k(f"s_mul_i32 {s(sT+2)}, {s(sSB)}, 10240"); k(f"s_add_u32 {s(sT+3)}, {s(sT+2)}, {WS_XT}"); k(f"s_add_u32 {s(sT+2)}, {s(sT+2)}, {WS_KVT}")
        k.wait_vm("p0"); k("s_barrier")
        Lz = k.newlabel("z")
        k(f"s_or_b32 {s(sT+4)}, {s(sID)}, {s(sW)}"); k(f"s_cmp_lg_u32 {s(sT+4)}, 0"); k(f"s_cbranch_scc1 {Lz}")
        k("v_mov_b32 v2, 0"); k("v_mov_b32 v3, 1"); k("s_mov_b64 exec, 1")
        k(f"global_store_dword v2, v3, {s(sDBG,2)} sc1"); k("s_mov_b64 exec, -1")
        k.label(Lz)
        self.stamp()
        def task(i):
            P = 40; Vv = 46; Xx = 52; Q = 56; W10, W32 = 61, 62; KS = 64; O = 72
            for b in range(3): k.lg(f"ds_read_b64_tr_b16 {v(P+2*b,2)}, v{vTR} offset:{b*5120 + 512*i}", "k")
            for b in range(2): k.lg(f"ds_read_b64_tr_b16 {v(Vv+2*b,2)}, v{vTR} offset:{L_P0V-L_P0K + b*5120 + 512*i}", "v")
            for b in range(2): k.lg(f"ds_read_b64_tr_b16 {v(Xx+2*b,2)}, v{vTR} offset:{L_P0X-L_P0K + b*5120 + 512*i}", "x")
            k(f"v_alignbit_b32 v{W10}, v{SH+2*i}, v{SH+2*i}, 16"); k(f"v_alignbit_b32 v{W32}, v{SH+2*i+1}, v{SH+2*i+1}, 16")
            k.wait_lg("k")
            for j in range(5): k(f"v_alignbit_b32 v{Q+j}, v{P+j+1}, v{P+j}, 16")
            for j in range(4):
                k(f"v_dot2_f32_bf16 v{KS+2*j+1}, v{P+j+1}, v{W32}, 0"); k(f"v_dot2_f32_bf16 v{KS+2*j}, v{Q+j}, v{W32}, 0")
            for j in range(4):
                k(f"v_dot2_f32_bf16 v{KS+2*j+1}, v{P+j+2}, v{W10}, v{KS+2*j+1}"); k(f"v_dot2_f32_bf16 v{KS+2*j}, v{Q+j+1}, v{W10}, v{KS+2*j}")
            k.wait_lg("x")
            k(f"buffer_store_dwordx4 {v(Xx,4)}, v{vT16}, {s(rWS,4)}, {s(sT+3)} offen sc1")
            for j in range(4):
                k(f"v_lshlrev_b32 v{Q+j}, 16, v{Vv+j}"); k(f"v_and_b32 v{Vv+j}, 0xffff0000, v{Vv+j}")
            for j in range(4):
                k(f"v_mul_f32 v{KS+2*j}, v{KS+2*j}, v{Q+j}"); k(f"v_mul_f32 v{KS+2*j+1}, v{KS+2*j+1}, v{Vv+j}")
            for j in range(4): k(f"v_cvt_pk_bf16_f32 v{O+j}, v{KS+2*j}, v{KS+2*j+1}")
            k(f"buffer_store_dwordx4 {v(O,4)}, v{vT16}, {s(rWS,4)}, {s(sT+2)} offen sc1")
            if i < 2: k(f"s_add_u32 {s(sT+2)}, {s(sT+2)}, 4096"); k(f"s_add_u32 {s(sT+3)}, {s(sT+3)}, 4096")
        k.wait_lg0()
        task(0); task(1)
        Ls = k.newlabel("st"); Lj = k.newlabel("j")
        k(f"s_cmp_ge_u32 {s(sW)}, 2"); k(f"s_cbranch_scc1 {Ls}")
        task(2)
        k(f"s_branch {Lj}")
        k.label(Ls)
        k("v_lshrrev_b32 v2, 4, v1"); k("v_mul_u32_u24 v3, 1280, v2"); k("v_and_b32 v38, 15, v1"); k("v_lshl_add_u32 v3, v38, 4, v3")
        k(f"s_sub_u32 {s(sT+4)}, {s(sW)}, 2"); k(f"s_mul_i32 {s(sT+5)}, {s(sT+4)}, 5120"); k(f"s_add_u32 {s(sT+5)}, {s(sT+5)}, {L_P0X}")
        k(f"v_add_u32 v3, {s(sT+5)}, v3")
        for j in range(5): k(f"ds_read_b128 {v(40+4*j,4)}, v3 offset:{256*j}")
        k(f"s_mov_b32 {s(sT+5)}, 0x3f803f80")
        k("s_waitcnt lgkmcnt(0)")
        for j in range(20):
            k(f"v_dot2_f32_bf16 v60, v{40+j}, {s(sT+5)}, {'0' if j==0 else 'v60'}"); k(f"v_dot2_f32_bf16 v61, v{40+j}, v{40+j}, {'0' if j==0 else 'v61'}")
        for r in (8, 4, 2, 1):
            k(f"v_add_f32_dpp v60, v60, v60 row_ror:{r} row_mask:0xf bank_mask:0xf"); k(f"v_add_f32_dpp v61, v61, v61 row_ror:{r} row_mask:0xf bank_mask:0xf")
        k(f"v_mul_f32 v60, {1.0/640!r}, v60"); k(f"v_mul_f32 v61, {1.0/640!r}, v61")
        k("v_fma_f32 v61, -v60, v60, v61"); k("v_max_f32 v61, 0, v61"); k(f"v_add_f32 v61, {1e-5!r}, v61"); k("v_rsq_f32 v61, v61")
        k("v_mul_f32 v60, v60, v61"); k("v_sub_f32 v60, 0, v60")
        k("v_cmp_eq_u32 vcc, 0, v38"); k("v_cndmask_b32 v60, v60, v61, vcc")
        k("v_lshlrev_b32 v2, 2, v2"); k("v_lshl_add_u32 v2, v38, 5, v2")
        k(f"s_lshl_b32 {s(sT+5)}, {s(sSB)}, 6"); k(f"s_lshl_b32 {s(sT+4)}, {s(sT+4)}, 4"); k(f"s_add_u32 {s(sT+5)}, {s(sT+5)}, {s(sT+4)}"); k(f"s_add_u32 {s(sT+5)}, {s(sT+5)}, {WS_STAT}")
        k("v_cmp_gt_u32 vcc, 2, v38"); k(f"s_and_saveexec_b64 {s(sX,2)}, vcc")
        k(f"buffer_store_dword v60, v2, {s(rWS,4)}, {s(sT+5)} offen sc1")
        k(f"s_mov_b64 exec, {s(sX,2)}")
        k.label(Lj)
        self.stamp()
        k("s_waitcnt vmcnt(11)")
        k(f"s_and_b32 {s(sT+2)}, {s(sC0)}, 1"); k(f"s_lshl_b32 {s(sT+2)}, {s(sT+2)}, 4"); k(f"s_lshr_b64 {s(sDV,2)}, {s(sDV,2)}, {s(sT+2)}")
        k(f"s_lshl_b32 {s(sDV+2)}, {s(sDV+1)}, 16"); k(f"s_and_b32 {s(sDV+1)}, {s(sDV)}, 0xffff0000"); k(f"s_lshl_b32 {s(sDV)}, {s(sDV)}, 16")
        k(f"s_mov_b32 {s(sT+2)}, 0xffff")
        k(f"v_sub_u32 v2, {255*16}, v{vT16}")
        for j in range(3):
            D = SS + 6*j
            k(f"v_lshlrev_b32 v3, 16, v{D+2}"); k(f"v_add_f32 v3, {s(sDV+j)}, v3"); k("v_cvt_pk_bf16_f32 v3, v3, v3")
            k(f"v_bfi_b32 v3, {s(sT+2)}, v3, v{D+2}"); k(f"v_cndmask_b32 v{D+2}, v{D+2}, v3, {s(sX+2,2)}")
            O = 40 + 16*(j % 2)
            for c in range(4):
                for t in range(4):
                    hi = 5 - t - (c >> 1)
                    if c % 2 == 0: k(f"v_alignbit_b32 v{O+4*c+t}, v{D+hi}, v{D+hi}, 16")
                    else: k(f"v_bfi_b32 v{O+4*c+t}, {s(sT+2)}, v{D+hi}, v{D+hi-1}")
                k(f"ds_write_b128 v2, {v(O+4*c,4)} offset:{L_TOEP + (4*j+c)*CSTR}")
        k.wait_vm0()
        Li = k.newlabel("i"); Lp = k.newlabel("ip")
        k(f"s_cmp_lg_u32 {s(sW)}, 0"); k(f"s_cbranch_scc1 {Li}")
        k("v_mov_b32 v2, 0"); k(f"s_mov_b32 {s(sCNT)}, 0x40000")
        k.label(Lp)
        k(f"global_load_dword v3, v2, {s(sDBG,2)} sc1"); k("s_waitcnt vmcnt(0)")
        k("v_cmp_eq_u32 vcc, 0, v3"); k(f"s_cbranch_vccz {Li}")
        k("s_sleep 1"); k(f"s_sub_u32 {s(sCNT)}, {s(sCNT)}, 1"); k(f"s_cmp_lg_u32 {s(sCNT)}, 0"); k(f"s_cbranch_scc1 {Lp}")
        k.label(Li)
        k("s_barrier")
        self.arrive(0)
        self.stamp()
        Lw2 = k.newlabel("w2"); Lj = k.newlabel("j")
        k("v_lshlrev_b32 v39, 4, v1")
        k("v_bfe_u32 v2, v1, 2, 2"); k("v_lshrrev_b32 v3, 4, v1"); k("v_and_b32 v38, 3, v1")
        k(f"s_cmp_ge_u32 {s(sID)}, 160"); k(f"s_cbranch_scc1 {Lw2}")
        k("v_lshl_add_u32 v2, v3, 2, v2"); k("v_mul_u32_u24 v2, 384, v2")
        k(f"s_mul_i32 {s(sT+2)}, {s(sW)}, 48"); k(f"s_add_u32 {s(sT+2)}, {s(sT+2)}, {L_RP}"); k(f"v_add_u32 v2, {s(sT+2)}, v2")
        k("v_lshl_add_u32 v4, v38, 3, v2")
        k("v_and_b32 v3, 1, v38"); k("v_mul_u32_u24 v3, 12288, v3"); k("v_lshrrev_b32 v38, 1, v38"); k("v_lshl_add_u32 v3, v38, 3, v3")
        k("v_add3_u32 v5, v2, v3, 32")
        k(f"s_lshl_b32 {s(sT+2)}, {s(sXG)}, 3"); k(f"s_add_u32 {s(sT+2)}, {s(sT+2)}, {s(sW)}"); k(f"s_mul_i32 {s(sT+2)}, {s(sT+2)}, 20"); k(f"s_add_u32 {s(sT+2)}, {s(sT+2)}, {s(sM)}")
        k(f"s_mul_i32 {s(sT+2)}, {s(sT+2)}, 3072"); k(f"s_add_u32 {s(sT+2)}, {s(sT+2)}, {WS_W13}"); k(f"s_add_u32 {s(sT+3)}, {s(sT+2)}, {80*3072}")
        for ci in range(2):
            for t in range(3):
                O = 40 + 4*(3*ci + t)
                for h in range(2):
                    off = 192*ci + 16*384*h + (12288 if t == 1 else 0)
                    k(f"ds_read_b64_tr_b16 {v(O+2*h,2)}, v{5 if t==2 else 4} offset:{off}")
        k("s_waitcnt lgkmcnt(0)")
        for ci in range(2):
            for t in range(3):
                k(f"buffer_store_dwordx4 {v(40+4*(3*ci+t),4)}, v39, {s(rWS,4)}, {s(sT+2+ci)} offen offset:{1024*t} sc1")
        k(f"s_branch {Lj}")
        k.label(Lw2)
        k("v_lshl_add_u32 v2, v3, 3, v2"); k("v_mul_u32_u24 v2, 640, v2"); k("v_lshl_add_u32 v2, v38, 3, v2")
        k(f"s_mul_i32 {s(sT+2)}, {s(sW)}, 160"); k(f"s_add_u32 {s(sT+2)}, {s(sT+2)}, {L_RP}"); k(f"v_add_u32 v4, {s(sT+2)}, v2")
        k(f"s_sub_u32 {s(sT+4)}, {s(sID)}, 160"); k(f"s_and_b32 {s(sT+2)}, {s(sT+4)}, 1"); k(f"s_lshl_b32 {s(sT+2)}, {s(sT+2)}, 2"); k(f"s_add_u32 {s(sT+2)}, {s(sT+2)}, {s(sW)}")
        k(f"s_mul_i32 {s(sT+2)}, {s(sT+2)}, 48"); k(f"s_lshr_b32 {s(sT+4)}, {s(sT+4)}, 1"); k(f"s_add_u32 {s(sT+2)}, {s(sT+2)}, {s(sT+4)}")
        k(f"s_mul_i32 {s(sT+2)}, {s(sT+2)}, 5120"); k(f"s_add_u32 {s(sT+2)}, {s(sT+2)}, {WS_W2}"); k(f"s_add_u32 {s(sT+3)}, {s(sT+2)}, 4096")
        for t in range(5):
            for h in range(2): k(f"ds_read_b64_tr_b16 {v(40+4*t+2*h,2)}, v4 offset:{32*t + 4*640*h}")
        k("s_waitcnt lgkmcnt(0)")
        for t in range(5):
            k(f"buffer_store_dwordx4 {v(40+4*t,4)}, v39, {s(rWS,4)}, {s(sT+2+(t>>2))} offen offset:{1024*(t&3)} sc1")
        k.label(Lj)
        k("s_waitcnt vmcnt(0)"); k("s_barrier")
        self.arrive(1)
        self.stamp()

    def conv_stream(self, ops, FR, nslots):
        k = self.k
        first = {}; last = {}
        for i, (_, _, A_, B_) in enumerate(ops):
            for key in (A_, B_):
                first.setdefault(key, i); last[key] = i
        order = sorted(first, key=lambda x: first[x])
        free = list(range(nslots)); slot = {}; nxt = 0
        def issue(budget):
            nonlocal nxt
            while nxt < len(order) and free and budget > 0:
                key = order[nxt]; sl = free.pop(0); slot[key] = sl; r = FR + 4*sl
                if key[0] == "A":
                    k.lg(f"ds_read_b64 {v(r,2)}, v{key[1]} offset:{key[2]}", None); k.lg(f"ds_read_b64 {v(r+2,2)}, v{key[1]} offset:{key[2]+8}", key); budget -= 2
                else:
                    k.lg(f"ds_read_b128 {v(r,4)}, v{key[1]} offset:{key[2]}", key); budget -= 1
                nxt += 1
        issue(12)
        for i, (acc, fst, A_, B_) in enumerate(ops):
            while A_ not in slot or B_ not in slot: issue(2)
            k.wait_lg([A_, B_])
            k(f"v_mfma_f32_16x16x32_bf16 {v(acc,4)}, {v(FR+4*slot[A_],4)}, {v(FR+4*slot[B_],4)}, {'0' if fst else v(acc,4)}")
            for key in {A_, B_}:
                if last[key] == i: free.append(slot[key])
            issue(2)

    def conv_ops(self, tiles, nr, vA, vB, acc):
        ops = []
        for dr in range(nr):
            for m in range(max(tiles) + 1):
                for ti, T in reversed(list(enumerate(tiles))):
                    if T >= m:
                        ops.append((acc + 4*ti, dr == 0 and m == 0, ("A", vA, 64*(56 - 8*m + nr - 1 - dr)), ("B", vB, 192*(8*(T-m) + nr - 1 - dr))))
        return ops

    def phase1(self):
        k = self.k
        vAF, vBF, vAH, vBH = 4, 5, 6, 7
        vL16 = 39
        ACF, ACH, FR = 40, 56, 64
        for i in range(3):
            k(f"v_add_u32 v2, {64*i}, v1"); k("v_mul_u32_u24 v3, 21846, v2"); k("v_lshrrev_b32 v3, 16, v3")
            k(f"v_mul_u32_u24 v3, {10240-48}, v3"); k(f"v_lshl_add_u32 v{8+i}, v2, 4, v3")
        k(f"s_mul_i32 {s(sT+2)}, {s(sW)}, {64*10240}"); k(f"s_lshl_b32 {s(sT+3)}, {s(sC0)}, 4"); k(f"s_add_u32 {s(sT+2)}, {s(sT+2)}, {s(sT+3)}")
        k(f"s_add_u32 {s(sT+3)}, {s(sT+2)}, {WS_XT}"); k(f"s_add_u32 {s(sT+2)}, {s(sT+2)}, {WS_KVT}")
        k(f"s_mul_i32 {s(sT+4)}, {s(sW)}, 3072"); k(f"s_lshl_b32 {s(sT+5)}, {s(sW)}, 12"); k(f"s_add_u32 {s(sT+6)}, {s(sT+5)}, {WS_STAT}")
        k("v_and_b32 v2, 15, v1"); k("v_lshrrev_b32 v3, 4, v1")
        k("v_lshl_add_u32 v11, v2, 1, v3"); k("v_mul_u32_u24 v11, 48, v11")
        k("v_sub_u32 v12, 15, v2"); k("v_lshl_add_u32 v12, v3, 3, v12")
        k("v_and_b32 v13, 3, v12"); k(f"v_mul_u32_u24 v13, {CSTR}, v13"); k("v_and_b32 v12, 0xfc, v12"); k("v_lshl_add_u32 v12, v12, 1, v13")
        sCF, sCH = 74, 75
        k(f"s_lshr_b32 {s(sCF)}, {s(sW)}, 1"); k(f"s_add_u32 {s(sCF)}, {s(sCF)}, {s(sE)}")
        k(f"s_lshl_b32 {s(sCH)}, {s(sE)}, 1"); k(f"s_sub_u32 {s(sCH)}, 2, {s(sCH)}")
        k(f"s_and_b32 {s(sT)}, {s(sW)}, 1"); k(f"s_lshl_b32 {s(sT)}, {s(sT)}, 2"); k(f"s_sub_u32 {s(sT)}, 4, {s(sT)}")
        k(f"s_mul_i32 {s(sT+1)}, {s(sCF)}, {4*CSTR}"); k(f"s_lshl_b32 {s(sT+7)}, {s(sT)}, 6"); k(f"s_add_u32 {s(sT+1)}, {s(sT+1)}, {s(sT+7)}"); k(f"v_add_u32 v{vAF}, {s(sT+1)}, v12")
        k(f"s_lshl_b32 {s(sT+1)}, {s(sCF)}, 4"); k(f"s_mul_i32 {s(sT+7)}, {s(sT)}, 192"); k(f"s_add_u32 {s(sT+1)}, {s(sT+1)}, {s(sT+7)}"); k(f"s_add_u32 {s(sT+1)}, {s(sT+1)}, {L_U}"); k(f"v_add_u32 v{vBF}, {s(sT+1)}, v11")
        k(f"s_lshl_b32 {s(sT)}, {s(sW)}, 1"); k(f"s_sub_u32 {s(sT)}, 6, {s(sT)}")
        k(f"s_mul_i32 {s(sT+1)}, {s(sCH)}, {4*CSTR}"); k(f"s_lshl_b32 {s(sT+7)}, {s(sT)}, 6"); k(f"s_add_u32 {s(sT+1)}, {s(sT+1)}, {s(sT+7)}"); k(f"v_add_u32 v{vAH}, {s(sT+1)}, v12")
        k(f"s_lshl_b32 {s(sT+1)}, {s(sCH)}, 4"); k(f"s_mul_i32 {s(sT+7)}, {s(sT)}, 192"); k(f"s_add_u32 {s(sT+1)}, {s(sT+1)}, {s(sT+7)}"); k(f"s_add_u32 {s(sT+1)}, {s(sT+1)}, {L_U}"); k(f"v_add_u32 v{vBH}, {s(sT+1)}, v11")
        vOF = 14
        k("v_and_b32 v13, 1, v3"); k("v_lshlrev_b32 v13, 5, v13"); k("v_lshl_add_u32 v13, v2, 1, v13"); k("v_lshrrev_b32 v15, 1, v3"); k("v_add_u32 v13, v13, v15")
        k(f"s_and_b32 {s(sT)}, {s(sW)}, 1"); k(f"s_lshl_b32 {s(sT)}, {s(sT)}, 6"); k(f"v_add_u32 v{vOF}, {s(sT)}, v13")
        vXF, vSF, vGF = 15, 16, 17
        k(f"s_lshl_b32 {s(sT)}, {s(sCF)}, 4"); k(f"s_add_u32 {s(sT)}, {s(sT)}, {L_XI}"); k(f"v_mul_u32_u24 v{vXF}, 48, v{vOF}"); k(f"v_add_u32 v{vXF}, {s(sT)}, v{vXF}")
        k(f"v_lshlrev_b32 v{vSF}, 6, v{vOF}"); k(f"v_add_u32 v{vSF}, {L_ST}, v{vSF}")
        sHF, sHH = 68, 69
        k(f"s_add_u32 {s(sT)}, {s(sC0)}, {s(sCF)}"); k(f"s_lshr_b32 {s(sT+1)}, {s(sT)}, 1"); k(f"s_and_b32 {s(sT+1)}, {s(sT+1)}, 2")
        k(f"s_lshl_b32 {s(sHF)}, {s(sT)}, 6"); k(f"s_add_u32 {s(sHF)}, {s(sHF)}, {WS_HC}")
        k(f"v_lshrrev_b32 v13, 2, v{vOF}"); k(f"v_mul_u32_u24 v13, 40960, v13"); k(f"v_and_b32 v{vGF}, 3, v{vOF}"); k(f"v_xor_b32 v{vGF}, {s(sT+1)}, v{vGF}"); k(f"v_lshl_add_u32 v{vGF}, v{vGF}, 4, v13")
        vPH, vXH, vSH, vGH = 18, 19, 20, 21
        k("v_and_b32 v2, 127, v0")
        k("v_lshrrev_b32 v3, 3, v2"); k("v_bfe_u32 v13, v2, 1, 2"); k("v_lshl_add_u32 v3, v13, 4, v3"); k("v_lshlrev_b32 v3, 4, v3"); k("v_and_b32 v13, 1, v2"); k("v_lshl_add_u32 v3, v13, 3, v3")
        k(f"s_lshr_b32 {s(sT)}, {s(sW)}, 1"); k(f"s_lshl_b32 {s(sT+1)}, {s(sT)}, 10"); k(f"s_add_u32 {s(sT+1)}, {s(sT+1)}, {L_PART + 8192}"); k(f"v_add_u32 v{vPH}, {s(sT+1)}, v3")
        k(f"s_mul_i32 {s(sT+1)}, {s(sT)}, 3"); k(f"s_add_u32 {s(sT)}, {s(sT)}, 1"); k(f"s_cmp_eq_u32 {s(sE)}, 0"); k(f"s_cselect_b32 {s(sT)}, {s(sT+1)}, {s(sT)}"); k(f"s_lshl_b32 {s(sT)}, {s(sT)}, 5")
        k("v_lshrrev_b32 v3, 2, v2"); k(f"v_add_u32 v3, {s(sT)}, v3")
        k("v_and_b32 v2, 3, v2")
        k(f"s_lshl_b32 {s(sT)}, {s(sCH)}, 4"); k(f"s_add_u32 {s(sT)}, {s(sT)}, {L_XI}"); k(f"v_mul_u32_u24 v13, 48, v3"); k("v_lshl_add_u32 v13, v2, 2, v13"); k(f"v_add_u32 v{vXH}, {s(sT)}, v13")
        k(f"v_lshlrev_b32 v13, 6, v3"); k("v_lshl_add_u32 v13, v2, 3, v13"); k(f"v_add_u32 v{vSH}, {L_ST}, v13")
        k(f"s_add_u32 {s(sT)}, {s(sC0)}, {s(sCH)}"); k(f"s_lshr_b32 {s(sT+1)}, {s(sT)}, 1"); k(f"s_and_b32 {s(sT+1)}, {s(sT+1)}, 2")
        k(f"s_lshl_b32 {s(sHH)}, {s(sT)}, 6"); k(f"s_add_u32 {s(sHH)}, {s(sHH)}, {WS_HC}")
        k(f"v_lshrrev_b32 v13, 2, v3"); k(f"v_mul_u32_u24 v13, 40960, v13"); k("v_lshl_add_u32 v13, v2, 2, v13"); k(f"v_and_b32 v3, 3, v3"); k(f"v_xor_b32 v3, {s(sT+1)}, v3"); k(f"v_lshl_add_u32 v{vGH}, v3, 4, v13")
        vPW, vPR = 22, 23
        k(f"s_lshl_b32 {s(sT)}, {s(sW)}, 11"); k(f"s_add_u32 {s(sT+1)}, {s(sT)}, {L_PART}"); k(f"v_add_u32 v{vPW}, {s(sT+1)}, v{vL16}")
        k(f"s_xor_b32 {s(sT)}, {s(sT)}, 2048"); k(f"s_add_u32 {s(sT+1)}, {s(sT)}, {L_PART}"); k(f"v_add_u32 v{vPR}, {s(sT+1)}, v{vL16}")
        self.poll(0)
        self.stamp()
        k.vmq = []
        for i in range(3):
            k(f"s_add_u32 m0, {s(sT+4)}, {L_UD + 1024*i}"); k.vm(f"buffer_load_dwordx4 v{8+i}, {s(rWS,4)}, {s(sT+2)} offen sc1 lds", "u")
        for i in range(3):
            k(f"s_add_u32 m0, {s(sT+4)}, {L_XI + 1024*i}"); k.vm(f"buffer_load_dwordx4 v{8+i}, {s(rWS,4)}, {s(sT+3)} offen sc1 lds", "x")
        k(f"s_add_u32 m0, {s(sT+5)}, {L_ST}")
        for i in range(4): k.vm(f"buffer_load_dwordx4 v{vL16}, {s(rWS,4)}, {s(sT+6)} offen offset:{1024*i} sc1 lds", "x")
        k.wait_vm("u"); k.wait_lg0(); k("s_barrier")
        self.stamp()
        for ps in range(2):
            PO = 16384*ps
            full = self.conv_ops([4*ps+t for t in range(4)], 4, vAF, vBF, ACF)
            Le = k.newlabel("e"); Lj = k.newlabel("j")
            k(f"s_cmp_lg_u32 {s(sE)}, 0"); k(f"s_cbranch_scc1 {Le}")
            self.conv_stream(self.conv_ops([4*ps, 4*ps+3], 2, vAH, vBH, ACH) + full, FR, 16)
            k(f"s_branch {Lj}"); k.label(Le); k.lgq = []
            self.conv_stream(self.conv_ops([4*ps+1, 4*ps+2], 2, vAH, vBH, ACH) + full, FR, 16)
            k.label(Lj); k.lgq = []
            k(f"ds_write_b128 v{vPW}, {v(ACH,4)} offset:{PO+8192}"); k(f"ds_write_b128 v{vPW}, {v(ACH+4,4)} offset:{PO+8192+1024}")
            Lo = k.newlabel("o"); Lj = k.newlabel("j")
            k(f"s_bitcmp1_b32 {s(sW)}, 0"); k(f"s_cbranch_scc1 {Lo}")
            k(f"ds_write_b128 v{vPW}, {v(ACF+8,4)} offset:{PO}"); k(f"ds_write_b128 v{vPW}, {v(ACF+12,4)} offset:{PO+1024}")
            k(f"s_branch {Lj}"); k.label(Lo)
            k(f"ds_write_b128 v{vPW}, {v(ACF,4)} offset:{PO}"); k(f"ds_write_b128 v{vPW}, {v(ACF+4,4)} offset:{PO+1024}")
            k("s_waitcnt lgkmcnt(0)")
            for i in range(8): k(f"v_mov_b32 v{ACF+i}, v{ACF+8+i}")
            k.label(Lj)
            if ps == 0: k.wait_vm0()
            k("s_waitcnt lgkmcnt(0)"); k("s_barrier")
            E = 64
            PB = 128*ps
            k.lg(f"ds_read_b128 {v(E,4)}, v{vPR} offset:{PO}", "p"); k.lg(f"ds_read_b128 {v(E+4,4)}, v{vPR} offset:{PO+1024}", "p")
            k.lg(f"ds_read_b128 {v(E+8,4)}, v{vXF} offset:{48*PB}", "x")
            for i in range(4): k.lg(f"ds_read_b128 {v(E+12+4*i,4)}, v{vSF} offset:{64*PB+16*i}", "s")
            H = 100
            for w_ in range(4): k.lg(f"ds_read_b64 {v(H+2*w_,2)}, v{vPH} offset:{PO+2048*w_}", "hp")
            k.lg(f"ds_read_b32 v{H+8}, v{vXH} offset:{48*PB}", "hp"); k.lg(f"ds_read_b64 {v(H+10,2)}, v{vSH} offset:{64*PB}", "hp"); k.lg(f"ds_read_b64 {v(H+12,2)}, v{vSH} offset:{64*PB+32}", "hp")
            k.wait_lg("p")
            for i in range(8): k(f"v_add_f32 v{ACF+i}, v{ACF+i}, v{E+i}")
            for i in range(4): k(f"v_permlane16_swap_b32 v{ACF+i}, v{ACF+4+i}")
            k.wait_lg("s")
            X = E + 28
            for i in range(4):
                k(f"v_lshlrev_b32 v{X+2*i}, 16, v{E+8+i}"); k(f"v_and_b32 v{X+2*i+1}, 0xffff0000, v{E+8+i}")
            for i in range(8): k(f"v_fma_f32 v{E+12+i}, v{X+i}, v{E+12+i}, v{E+20+i}")
            for i in range(8): k(f"v_fmac_f32 v{X+i}, v{E+12+i}, v{ACF+i}")
            for i in range(4): k(f"v_cvt_pk_bf16_f32 v{E+i}, v{X+2*i}, v{X+2*i+1}")
            k(f"buffer_store_dwordx4 {v(E,4)}, v{vGF}, {s(rWS,4)}, {s(sHF)} offen sc1")
            k.wait_lg("hp")
            for r in range(2):
                k(f"v_add_f32 v{H+r}, v{H+r}, v{H+2+r}"); k(f"v_add_f32 v{H+4+r}, v{H+4+r}, v{H+6+r}")
            k(f"v_lshlrev_b32 v{H+2}, 16, v{H+8}"); k(f"v_and_b32 v{H+3}, 0xffff0000, v{H+8}")
            for r in range(2):
                k(f"v_add_f32 v{H+r}, v{H+r}, v{H+4+r}"); k(f"v_fma_f32 v{H+10+r}, v{H+2+r}, v{H+10+r}, v{H+12+r}")
            for r in range(2): k(f"v_fmac_f32 v{H+2+r}, v{H+10+r}, v{H+r}")
            k(f"v_cvt_pk_bf16_f32 v{H+8}, v{H+2}, v{H+3}")
            k(f"buffer_store_dword v{H+8}, v{vGH}, {s(rWS,4)}, {s(sHH)} offen sc1")
            if ps == 0:
                k(f"s_add_u32 {s(sHF)}, {s(sHF)}, {32*40960}"); k(f"s_add_u32 {s(sHH)}, {s(sHH)}, {32*40960}")
            self.stamp()
        k("s_waitcnt vmcnt(0)"); k("s_barrier")
        self.arrive(2)
        self.stamp()

    def interleave(self, mf, fill, per=2):
        k = self.k; fi = 0; credit = 0
        if mf and mf[0].get("wait"): k.wait_lg(mf[0]["wait"])
        for i, m in enumerate(mf):
            k(m["text"])
            if i + 1 < len(mf) and mf[i+1].get("wait"): k.wait_lg(mf[i+1]["wait"])
            for x in m.get("scal", []): x() if callable(x) else k(x)
            credit = min(credit, 0) + per
            for x in m.get("post", []):
                x(); credit -= 1
            while fi < len(fill) and credit > 0 and fill[fi][2] <= i:
                c, fn, _ = fill[fi]; fn(); credit -= c; fi += 1
        while fi < len(fill): fill[fi][1](); fi += 1

    def g1_epilogue(self, AC, first_idx=2):
        k = self.k; P = []
        C1, C3, CG, CU = 24, 28, 32, 36
        ST = {"m": 40, 0: 43, 1: 46}; OUT = 148
        def add(t, c=1): P.append((c, (lambda t=t: k(t)), first_idx))
        def swi(G, U, cg, cu, st):
            nm, nl, ve = st, st+1, st+2
            for r in range(4): add(f"v_fmac_f32 v{G+r}, v{nm}, v{cg+r}")
            for r in range(4): add(f"v_fmac_f32 v{U+r}, v{nm}, v{cu+r}")
            for r in range(4): add(f"v_mul_f32 v{U+r}, v{G+r}, v{U+r}")
            for r in range(4): add(f"v_mul_f32 v{G+r}, v{G+r}, v{nl}")
            for r in range(4): add(f"v_exp_f32 v{G+r}, v{G+r}", 2)
            for r in range(4): add(f"v_fma_f32 v{G+r}, v{G+r}, v{ve}, v{ve}")
            for r in range(4): add(f"v_rcp_f32 v{G+r}, v{G+r}", 2)
            for r in range(4): add(f"v_mul_f32 v{U+r}, v{U+r}, v{G+r}")
        for a_ in range(2):
            swi(AC+12*a_, AC+12*a_+4, C1, C3, ST[a_])
            add(f"v_cvt_pk_bf16_f32 v{OUT+2*a_}, v{AC+12*a_+4}, v{AC+12*a_+5}"); add(f"v_cvt_pk_bf16_f32 v{OUT+2*a_+1}, v{AC+12*a_+6}, v{AC+12*a_+7}")
        for r in range(4): add(f"v_permlane16_swap_b32 v{AC+8+r}, v{AC+20+r}")
        add(f"v_permlane16_swap_b32 v{OUT}, v{OUT+2}"); add(f"v_permlane16_swap_b32 v{OUT+1}, v{OUT+3}")
        P.append((1, lambda: k.vm(f"buffer_store_dwordx4 {v(OUT,4)}, v13, {s(rWS,4)}, {s(sHO)} offen sc1", "hh"), first_idx))
        swi(AC+8, AC+20, CG, CU, ST["m"])
        add(f"v_cvt_pk_bf16_f32 v{OUT+4}, v{AC+20}, v{AC+21}"); add(f"v_cvt_pk_bf16_f32 v{OUT+5}, v{AC+22}, v{AC+23}")
        P.append((1, lambda: k.vm(f"buffer_store_dwordx2 {v(OUT+4,2)}, v14, {s(rWS,4)}, {s(sHO)} offen sc1", "hh"), first_idx))
        return P

    def g1_stats(self, idx):
        k = self.k; P = []
        def add(t, c=1): P.append((c, (lambda t=t: k(t)), idx))
        T = 50
        P.append((1, lambda: k.lg(f"ds_read2st64_b32 {v(T,2)}, v18 offset0:0 offset1:2", "st"), idx))
        P.append((1, lambda: k.lg(f"ds_read2st64_b32 {v(T+2,2)}, v18 offset0:4 offset1:6", "st"), idx))
        P.append((1, lambda: k.lg(f"ds_read2st64_b32 {v(T+4,2)}, v17 offset0:0 offset1:8", "st"), idx))
        P.append((1, lambda: k.lg(f"ds_read2st64_b32 {v(T+6,2)}, v17 offset0:16 offset1:24", "st"), idx))
        return P
    def g1_stats2(self, idx):
        k = self.k; P = []
        def add(t, c=1): P.append((c, (lambda t=t: k(t)), idx))
        T = 50
        P.append((0, lambda: k.wait_lg("st"), idx))
        for i in range(4): add(f"v_add_f32 v{T+2*i}, v{T+2*i}, v{T+2*i+1}")
        add(f"v_add_f32 v{T}, v{T}, v{T+2}"); add(f"v_add_f32 v{T+4}, v{T+4}, v{T+6}")
        add(f"v_mul_f32 v40, {-1.0/640!r}, v{T}")
        add(f"v_mul_f32 v42, {1.0/640!r}, v{T+4}")
        add(f"v_fma_f32 v42, -v40, v40, v42"); add("v_max_f32 v42, 0, v42"); add(f"v_add_f32 v42, {1e-5!r}, v42")
        add("v_rsq_f32 v41, v42", 2); add("v_mov_b32 v43, v40"); add(f"v_mul_f32 v41, {-1.4426950408889634!r}, v41")
        add("v_mov_b32 v46, v40"); add("v_mov_b32 v45, v42"); add("v_mov_b32 v48, v42"); add("v_mov_b32 v44, v41"); add("v_mov_b32 v47, v41")
        add("v_permlane16_swap_b32 v43, v46"); add("v_permlane16_swap_b32 v45, v48"); add("v_permlane16_swap_b32 v44, v47")
        return P

    def phase2(self):
        k = self.k
        HB = 4; ONES = 20; SA = 60; AC0 = 76; HF = 124
        L_GR = 81920; L_SM = L_GR + 8192
        self.poll(1)
        k("v_lshlrev_b32 v12, 4, v1")
        k(f"s_lshl_b32 {s(sT)}, {s(sC)}, 2"); k(f"s_add_u32 {s(sT)}, {s(sT)}, {s(sW)}"); k(f"s_mul_i32 {s(sT)}, {s(sT)}, {20*3072}"); k(f"s_add_u32 {s(sT)}, {s(sT)}, {WS_W13}")
        k.vmq = []
        for q in range(4):
            k(f"s_add_u32 {s(sT+1)}, {s(sW)}, {q}"); k(f"s_and_b32 {s(sT+1)}, {s(sT+1)}, 3"); k(f"s_mul_i32 {s(sT+1)}, {s(sT+1)}, {5*3072}"); k(f"s_add_u32 {s(sT+1)}, {s(sT+1)}, {s(sT)}")
            for jj in range(5):
                for t in range(3):
                    k.vm(f"buffer_load_dwordx4 {a(12*(5*q+jj)+4*t,4)}, v12, {s(rWS,4)}, {s(sT+1)} offen offset:{1024*t} sc1", ("w", 5*q+jj))
                if jj < 4: k(f"s_add_u32 {s(sT+1)}, {s(sT+1)}, 3072")
        k("v_lshrrev_b32 v2, 4, v1"); k("v_and_b32 v3, 15, v1")
        k("v_lshrrev_b32 v49, 2, v1"); k("v_lshlrev_b32 v49, 6, v49")
        k("v_and_b32 v50, 3, v1"); k("v_lshl_add_u32 v49, v50, 3, v49")
        k("v_and_b32 v50, 1, v2"); k("v_lshl_add_u32 v49, v50, 5, v49")
        for q in range(4):
            k(f"s_add_u32 {s(sT+1)}, {s(sW)}, {q}"); k(f"s_and_b32 {s(sT+1)}, {s(sT+1)}, 3"); k(f"s_mul_i32 {s(sT+1)}, {s(sT+1)}, 10240")
            k(f"v_add_u32 v{HB+2*q}, {s(sT+1)}, v49"); k(f"v_xor_b32 v{HB+2*q+1}, 32, v{HB+2*q}")
        k("v_mul_u32_u24 v51, 49152, v50"); k("v_lshl_add_u32 v51, v3, 4, v51"); k("v_lshrrev_b32 v52, 1, v2")
        k("v_lshl_add_u32 v13, v52, 8, v51"); k("v_lshl_add_u32 v14, v52, 3, v51"); k("v_add_u32 v14, 512, v14")
        k(f"s_lshl_b32 {s(sT+1)}, {s(sW)}, 11"); k(f"s_add_u32 {s(sT+1)}, {s(sT+1)}, {L_GR}"); k(f"v_add_u32 v15, {s(sT+1)}, v12")
        k(f"s_lshl_b32 {s(sT+1)}, {s(sW)}, 9"); k(f"s_add_u32 {s(sT+1)}, {s(sT+1)}, {L_SM}"); k("v_lshlrev_b32 v16, 2, v1"); k(f"v_add_u32 v16, {s(sT+1)}, v16")
        k("v_lshrrev_b32 v51, 2, v3"); k("v_lshl_add_u32 v51, v51, 4, v3"); k("v_lshlrev_b32 v51, 4, v51"); k("v_and_b32 v52, 3, v3"); k("v_lshl_add_u32 v51, v52, 2, v51")
        k("v_lshl_add_u32 v51, v50, 10, v51"); k(f"v_add_u32 v17, {L_GR}, v51")
        k("v_lshlrev_b32 v51, 2, v3"); k("v_lshl_add_u32 v51, v50, 8, v51"); k(f"v_add_u32 v18, {L_SM}, v51")
        for i in range(4): k(f"v_mov_b32 v{ONES+i}, 0x3f803f80")
        for j in range(20):
            k.wait_vm(("w", j))
            for t in range(3): k(f"v_mfma_f32_16x16x32_bf16 {v(24+4*t,4)}, {a(12*j+4*t,4)}, {v(ONES,4)}, {'0' if j==0 else v(24+4*t,4)}")
        for r in range(4): k(f"v_mov_b32 v{36+r}, v{32+r}")
        for r in range(4): k(f"v_permlane16_swap_b32 v{32+r}, v{36+r}")
        k(f"s_mul_i32 {s(sHS)}, {s(sR)}, {2*40960}"); k(f"s_mul_i32 {s(sHL)}, {s(sW)}, 10240"); k(f"s_add_u32 {s(sHS)}, {s(sHS)}, {s(sHL)}"); k(f"s_add_u32 {s(sHS)}, {s(sHS)}, {WS_HC}")
        k(f"s_mul_i32 {s(sHO)}, {s(sR)}, {2*98304}"); k(f"s_lshl_b32 {s(sT)}, {s(sC)}, 2"); k(f"s_add_u32 {s(sT)}, {s(sT)}, {s(sW)}"); k(f"s_mul_i32 {s(sT)}, {s(sT)}, 768")
        k(f"s_add_u32 {s(sHO)}, {s(sHO)}, {s(sT)}"); k(f"s_add_u32 {s(sHO)}, {s(sHO)}, {WS_HH}")
        self.stamp()
        self.poll(2)
        self.stamp()
        k.vmq = []; k.lgq = []
        CH_STEP = [40960, 31*40960, 40960]; HO_STEP = [98304, 31*98304, 98304]
        def dma(c, i):
            def f():
                if i % 4 == 0:
                    k(f"s_add_u32 m0, {s(sHL)}, {(c&1)*40960 + 1024*i}")
                    if i: k(f"s_add_u32 {s(sHS)}, {s(sHS)}, 4096")
                k.vm(f"buffer_load_dwordx4 v12, {s(rWS,4)}, {s(sHS)} offen offset:{1024*(i%4)} sc1 lds", ("h", c, i//2))
                if i == 9 and c < 3: k(f"s_add_u32 {s(sHS)}, {s(sHS)}, {CH_STEP[c] - 8192}")
            return f
        for i in range(10): dma(0, i)()
        PF = 2
        def rd(c, j, a_, h):
            q, jj = divmod(j, 5); r = HF + 8*((20*c + j) % 3) + 4*a_ + 2*h
            return lambda: k.lg(f"ds_read_b64_tr_b16 {v(r,2)}, v{HB+2*q+a_} offset:{(c&1)*40960 + jj*2048 + 1024*h}", ("f", c, j, a_))
        for j in range(PF):
            k.wait_vm(("h", 0, j))
            for a_ in range(2):
                for h in range(2): rd(0, j, a_, h)()
        for c in range(4):
            AC = AC0 + 24*(c & 1); mf = []
            for j in range(20):
                grp = []
                for a_ in range(2):
                    hf = v(HF + 8*((20*c + j) % 3) + 4*a_, 4)
                    if j < 5:
                        grp.append(dict(text=f"v_mfma_f32_16x16x32_bf16 {v(SA+4*a_,4)}, {v(ONES,4)}, {hf}, {'0' if j==0 else v(SA+4*a_,4)}", wait=[("f", c, j, a_)]))
                        grp.append(dict(text=f"v_mfma_f32_16x16x32_bf16 {v(SA+8+4*a_,4)}, {hf}, {hf}, {'0' if j==0 else v(SA+8+4*a_,4)}"))
                    for t in range(3):
                        grp.append(dict(text=f"v_mfma_f32_16x16x32_bf16 {v(AC+12*a_+4*t,4)}, {a(12*j+4*t,4)}, {hf}, {'0' if j==0 else v(AC+12*a_+4*t,4)}", wait=[("f", c, j, a_)]))
                nc, nj = (c, j+PF) if j+PF < 20 else (c+1, j+PF-20)
                if nc < 4:
                    sc = []
                    if nj < 5: sc.append(lambda nc=nc, nj=nj: k.wait_vm(("h", nc, nj)))
                    if nj == 5: sc.append("s_barrier")
                    grp[0].setdefault("scal", []).extend(sc)
                    rds = [rd(nc, nj, a_, h) for a_ in range(2) for h in range(2)]
                    for x, r_ in zip((0, 1, 3, 4), rds): grp[x].setdefault("post", []).append(r_)
                if c < 3 and 4 <= j <= 13: grp[2].setdefault("post", []).append(dma(c+1, j-4))
                if j == 6:
                    for a_ in range(2):
                        grp[2+3*a_].setdefault("post", []).append(lambda a_=a_: k.lg(f"ds_write_b128 v15, {v(SA+8+4*a_,4)} offset:{1024*a_}", "sw"))
                if j == 7:
                    for a_ in range(2):
                        grp[2+3*a_].setdefault("post", []).append(lambda a_=a_: k.lg(f"ds_write_b32 v16, v{SA+4*a_} offset:{256*a_}", "sw"))
                if j == 10: grp[5].setdefault("scal", []).extend([lambda: k.wait_lg("sw"), "s_barrier"])
                mf += grp
            fill = []
            if c > 0:
                fill += self.g1_epilogue(AC0 + 24*((c-1) & 1), 3)
                fill.append((0, lambda c=c: k(f"s_add_u32 {s(sHO)}, {s(sHO)}, {HO_STEP[c-1]}"), 3))
            n10 = 50 + 6*6
            st1 = self.g1_stats(n10)
            cut = max(0, len(fill) - 12)
            fill = fill[:cut] + st1 + fill[cut:] + self.g1_stats2(n10 + 4)
            self.interleave(mf, fill)
            self.stamp()
        for c_, fn, _ in self.g1_epilogue(AC0 + 24, 0): fn()
        k.wait_vm0(); k("s_barrier")
        self.arrive(3)
        self.stamp()

    def phase3(self):
        k = self.k
        L_RED = 0; L_RES = 98304
        AC = 24; HB = 112
        sDT, sHf, sCK = 56+5, 56+6, 56+7
        k(f"s_and_b32 {s(sDT)}, {s(sC)}, 7"); k(f"s_lshr_b32 {s(sHf)}, {s(sC)}, 3")
        k(f"s_lshl_b32 {s(sCK)}, {s(sR)}, 1"); k(f"s_and_b32 {s(sT+1)}, {s(sW)}, 1"); k(f"s_add_u32 {s(sCK)}, {s(sCK)}, {s(sT+1)}")
        k(f"s_lshr_b32 {s(sT+1)}, {s(sW)}, 1"); k(f"s_lshl_b32 {s(sT+1)}, {s(sT+1)}, 5"); k(f"s_add_u32 {s(sCK)}, {s(sCK)}, {s(sT+1)}")
        k.vmq = []; k.lgq = []
        k(f"s_mul_i32 {s(sT+1)}, {s(sDT)}, 48"); k(f"s_mul_i32 {s(sT+2)}, {s(sW)}, 12"); k(f"s_add_u32 {s(sT+1)}, {s(sT+1)}, {s(sT+2)}"); k(f"s_mul_i32 {s(sT+1)}, {s(sT+1)}, 5120"); k(f"s_add_u32 {s(sT+1)}, {s(sT+1)}, {WS_W2}")
        for f in range(60):
            k.vm(f"buffer_load_dwordx4 {a(4*f,4)}, v12, {s(rWS,4)}, {s(sT+1)} offen offset:{1024*(f%4)} sc1", "w2")
            if f % 4 == 3: k(f"s_add_u32 {s(sT+1)}, {s(sT+1)}, 4096")
        k.wait_vm0()
        k(f"s_mul_i32 {s(sT+1)}, {s(sCK)}, 40960"); k(f"s_mul_i32 {s(sT+2)}, {s(sDT)}, 5120"); k(f"s_add_u32 {s(sT+1)}, {s(sT+1)}, {s(sT+2)}"); k(f"s_add_u32 {s(sT+1)}, {s(sT+1)}, {WS_HC}")
        k(f"s_mul_i32 {s(sT+2)}, {s(sW)}, 5120"); k(f"s_add_u32 {s(sT+2)}, {s(sT+2)}, {L_RES}"); k(f"s_mov_b32 m0, {s(sT+2)}")
        for i in range(4): k.vm(f"buffer_load_dwordx4 v12, {s(rWS,4)}, {s(sT+1)} offen offset:{1024*i} sc1 lds", "res")
        k(f"s_add_u32 m0, m0, 4096"); k(f"s_add_u32 {s(sT+1)}, {s(sT+1)}, 4096")
        k.vm(f"buffer_load_dwordx4 v12, {s(rWS,4)}, {s(sT+1)} offen sc1 lds", "res")
        k("v_lshrrev_b32 v2, 4, v1"); k("v_and_b32 v3, 15, v1")
        k("v_lshrrev_b32 v4, 2, v1"); k("v_lshlrev_b32 v4, 6, v4"); k("v_and_b32 v5, 3, v1"); k("v_lshl_add_u32 v4, v5, 3, v4")
        k("v_and_b32 v5, 1, v2"); k(f"v_xor_b32 v6, {s(sHf)}, v5"); k("v_lshl_add_u32 v4, v6, 5, v4"); k(f"v_add_u32 v4, {s(sT+2)}, v4")
        k("v_mul_u32_u24 v6, 1280, v3"); k("v_lshl_add_u32 v7, v2, 3, v6"); k("v_add_u32 v7, 128, v7")
        k("v_lshl_add_u32 v6, v5, 5, v6"); k("v_lshrrev_b32 v5, 1, v2"); k("v_lshl_add_u32 v6, v5, 4, v6")
        k(f"s_mul_i32 {s(sT+1)}, {s(sW)}, 5120"); k(f"v_add_u32 v8, {s(sT+1)}, v12")
        k(f"s_mul_i32 {s(sT+1)}, {s(sW)}, 20480"); k(f"v_add_u32 v9, {s(sT+1)}, v12")
        k(f"v_add_u32 v10, {2*20480}, v8")
        sOO = sT+3
        k(f"s_lshl_b32 {s(sOO)}, {s(sCK)}, 1"); k(f"s_add_u32 {s(sOO)}, {s(sOO)}, {s(sHf)}"); k(f"s_mul_i32 {s(sOO)}, {s(sOO)}, {16*1280}"); k(f"s_mul_i32 {s(sT+1)}, {s(sDT)}, 160"); k(f"s_add_u32 {s(sOO)}, {s(sOO)}, {s(sT+1)}")
        sHI = sT+4
        k(f"s_lshl_b32 {s(sHI)}, {s(sR)}, 2"); k(f"s_add_u32 {s(sHI)}, {s(sHI)}, {s(sHf)}"); k(f"s_mul_i32 {s(sHI)}, {s(sHI)}, 49152"); k(f"s_mul_i32 {s(sT+1)}, {s(sW)}, 12288")
        k(f"s_add_u32 {s(sHI)}, {s(sHI)}, {s(sT+1)}"); k(f"s_add_u32 {s(sHI)}, {s(sHI)}, {WS_HH}")
        self.poll(3)
        self.stamp()
        STEP = [98304, 31*98304, 98304]
        def ld(i, kb):
            def f():
                k.vm(f"buffer_load_dwordx4 {v(HB+48*(i%3)+4*kb,4)}, v12, {s(rWS,4)}, {s(sHI)} offen offset:{1024*(kb%4)} sc1", ("hh", i, kb))
                if kb % 4 == 3: k(f"s_add_u32 {s(sHI)}, {s(sHI)}, {4096 if kb < 11 else (STEP[i]-8192 if i < 3 else 0)}")
            return f
        for i in range(3):
            for kb in range(12): ld(i, kb)()
        for i in range(4):
            for kb in range(12):
                k.wait_vm(("hh", i, kb))
                for t in range(5):
                    k(f"v_mfma_f32_16x16x32_bf16 {v(AC+20*i+4*t,4)}, {a(20*kb+4*t,4)}, {v(HB+48*(i%3)+4*kb,4)}, {'0' if kb==0 else v(AC+20*i+4*t,4)}")
                if i == 0: ld(3, kb)()
                if i > 0 and 2 <= kb < 7:
                    t = kb - 2; j = i - 1
                    k(f"ds_write_b128 v{8 if j<2 else 10}, {v(AC+20*j+4*t,4)} offset:{(j%2)*20480 + 1024*t}")
        for t in range(5): k(f"ds_write_b128 v10, {v(AC+60+4*t,4)} offset:{20480 + 1024*t}")
        self.stamp()
        R = 104
        for t in range(5): k(f"ds_read_b64_tr_b16 {v(R+2*t,2)}, v4 offset:{1024*t}")
        k("s_waitcnt lgkmcnt(0)"); k("s_barrier")
        for t in range(5):
            for w_ in range(4): k.lg(f"ds_read_b128 {v(AC+16*t+4*w_,4)}, v9 offset:{5120*w_ + 1024*t}", t)
        O = 116
        for t in range(5):
            k.wait_lg(t); B = AC + 16*t
            for r in range(4): k(f"v_add_f32 v{B+r}, v{B+r}, v{B+4+r}"); k(f"v_add_f32 v{B+8+r}, v{B+8+r}, v{B+12+r}")
            for h in range(2): k(f"v_lshlrev_b32 v{B+4+2*h}, 16, v{R+2*t+h}"); k(f"v_and_b32 v{B+5+2*h}, 0xffff0000, v{R+2*t+h}")
            for r in range(4): k(f"v_add_f32 v{B+r}, v{B+r}, v{B+8+r}")
            for r in range(4): k(f"v_add_f32 v{B+r}, v{B+r}, v{B+4+r}")
            k(f"v_cvt_pk_bf16_f32 v{O+2*t}, v{B}, v{B+1}"); k(f"v_cvt_pk_bf16_f32 v{O+2*t+1}, v{B+2}, v{B+3}")
            if t in (1, 3):
                b = O + 2*(t-1)
                k(f"v_permlane16_swap_b32 v{b}, v{b+2}"); k(f"v_permlane16_swap_b32 v{b+1}, v{b+3}")
                k(f"buffer_store_dwordx4 {v(b,4)}, v6, {s(rOUT,4)}, {s(sOO)} offen offset:{32*(t-1)}")
        k(f"buffer_store_dwordx2 {v(O+8,2)}, v7, {s(rOUT,4)}, {s(sOO)} offen")

    def finish(self):
        k = self.k
        if self.prof:
            self.stamp()
            k("s_memtime s[100:101]"); k.wait_lg0(); k(f"s_sub_u32 {s(sSTAMP+self.nst)}, s100, s98"); self.nst += 1
            L = k.newlabel("pf")
            k(f"s_cmp_lg_u32 {s(sW)}, 0"); k(f"s_cbranch_scc1 {L}")
            k(f"s_lshl_b32 {s(sT)}, {s(sID)}, 7"); k(f"s_add_u32 {s(sT)}, {s(sT)}, {WS_PROF}")
            k("s_mov_b64 exec, 1")
            for i in range(self.nst):
                k(f"v_mov_b32 v2, {4*i}"); k(f"v_mov_b32 v3, {s(sSTAMP+i)}")
                k(f"buffer_store_dword v3, v2, {s(rWS,4)}, {s(sT)} offen")
            if self.dbgsel:
                k(f"s_cmp_lg_u32 {s(sID)}, 77"); k(f"s_cbranch_scc1 {L}")
                for j, i in enumerate(self.dbgsel):
                    k(f"s_sub_u32 {s(sT)}, {s(sSTAMP+i)}, {s(sSTAMP) if i < self.nst-1 else 0}")
                    k(f"v_mov_b32 v2, {4*(j+1)}"); k(f"v_mov_b32 v3, {s(sT)}")
                    k(f"global_store_dword v2, v3, {s(sDBG,2)}")
            k("s_mov_b64 exec, -1")
            k.label(L)
        if self.prof and os.environ.get("SPIN"):
            b_, i_, m_ = [int(x) for x in os.environ["SPIN"].split(",")]
            k(f"s_sub_u32 {s(sT+1)}, {s(sSTAMP+i_)}, {s(sSTAMP)}"); k(f"s_mul_i32 {s(sT+1)}, {s(sT+1)}, {m_}"); k(f"s_add_u32 {s(sT+1)}, {s(sT+1)}, {b_}")
            k("L_SPIN:"); k("s_memrealtime s[100:101]"); k("s_waitcnt lgkmcnt(0)"); k(f"s_sub_u32 {s(sT)}, s100, {s(sSTAMP)}")
            k(f"s_cmp_lt_u32 {s(sT)}, {s(sT+1)}"); k("s_cbranch_scc1 L_SPIN")
        k.label("L_END"); k("s_endpgm")

    def build(self):
        self.prologue()
        self.phase0()
        if self.stop >= 1: self.phase1()
        if self.stop >= 2: self.phase2()
        if self.stop >= 3: self.phase3()
        self.finish()
        nn = self.k.pad()
        hdr = open(os.path.join(os.path.dirname(os.path.abspath(__file__)), "header.txt")).read()
        return (hdr + f"; @launch grid=(256,1,1) block=(256,1,1) lds={LDS_BYTES}\n"
            + '.amdgcn_target "amdgcn-amd-amdhsa--gfx950"\n.text\n'
            + f".globl {KNAME}\n.p2align 8\n.type {KNAME},@function\n{KNAME}:\n" + self.k.text()
            + f""".section .rodata,"a"
.p2align 6
.amdhsa_kernel {KNAME}
  .amdhsa_next_free_vgpr 512
  .amdhsa_next_free_sgpr 102
  .amdhsa_accum_offset 256
  .amdhsa_group_segment_fixed_size 0
  .amdhsa_kernarg_size 104
  .amdhsa_user_sgpr_count 2
  .amdhsa_user_sgpr_kernarg_segment_ptr 1
  .amdhsa_system_sgpr_workgroup_id_x 1
  .amdhsa_float_denorm_mode_32 3
.end_amdhsa_kernel
""")

if __name__ == "__main__":
    import argparse
    ap = argparse.ArgumentParser(); ap.add_argument("-o", default="k.s"); ap.add_argument("--stop", type=int, default=99); ap.add_argument("--prof", action="store_true")
    ap.add_argument("--dbg", default="")
    A = ap.parse_args()
    open(A.o, "w").write(Gen(A.stop, A.prof, [int(x) for x in A.dbg.split(",")] if A.dbg else None).build())
```

```python
import sys, os
sys.path.insert(0, os.path.dirname(os.path.abspath(__file__)))
from asmlib import *

KNAME = "sequential_preLN__ssm_conv_h3__glu_gated_swiglu__prompt_kernel"
OPT = dict(late=0, nt0="nt", nt1="nt", wrate=4, presleep=0, st0="", st1="", norp=0)
for kv_ in os.environ.get("OPT", "").split(","):
    if "=" in kv_:
        a_, b_ = kv_.split("="); OPT[a_] = int(b_) if b_.lstrip("-").isdigit() else b_
WS_SYNC = 0x0
WS_F3   = 0x80000
WS_PROF = 0x30000
WS_STAT = 0x40000
WS_FINE = 0x1800000
WS_KVT  = 0x100000
WS_XT   = 0x400000
WS_W13  = 0x800000
WS_W2   = 0xC00000
WS_HC   = 0xE00000
WS_HH   = 0x1100000
WS_SIZE = 0x2000000
NSH = 16
S1, SW, S2A, S2B = 0, 1, 2, 3
L_TOEP = 0; CSTR = 4160
L_U = 49920; L_UD = L_U + 1440
L_XI = L_U + 13728
L_ST = L_XI + 12288
STP = 4224
L_PART = L_ST + 4*STP
L_P0K = L_PART; L_P0V = L_P0K + 15360; L_P0X = L_P0V + 10240
L_RP = 128672
L_GR = 81920; L_SM = L_GR + 8192
L_W2 = 92160
LDS_BYTES = 163840
sID, sW = 2, 3
sDBG, sDP = 4, 6
rK, rV, rX, rWS, rSS, rSH, rW1, rW3, rW2, rOUT = 8, 12, 16, 20, 24, 28, 32, 36, 40, 44
sXG, sM, sSB, sC0, sE, sR, sC = 48, 49, 50, 51, 52, 53, 54
sT = 56
sX = 64
sDV = 70
sCNT = 73
sGK, sGX, sGL, sSTL, sSTS, sHF, sHH, sW13, sHS, sHL, sHO, sW2 = 8, 9, 10, 11, 12, 13, 14, 15, 16, 17, 18, 19
sHI, sOO, sRS, sW2L = 68, 69, 74, 75
sKS, sXS = 55, 63
sSTAMP = 76
vL16, vARR, vPOL, vONE, vPV = 4, 5, 6, 7, 8
vGO = 9
vAF, vBF, vAH, vBH = 12, 13, 14, 15
vXF, vSF, vGF = 16, 17, 18
vPH, vXH, vSH, vGH = 19, 20, 21, 22
vPW, vPR, vPWH = 23, 24, 25
vHB = 26
vSP, vSMX, vGW, vSWR, vGR, vSR = 34, 35, 36, 37, 38, 39
vFW, vFR = 40, 41
vRA, vOP, vO4 = 42, 43, 48
ONES = 44
vRW, vRW2, vRR, vW2R = 49, 50, 51, 52
vT16 = 53
TIMER = "s_memtime" if os.environ.get("CYC") else "s_memrealtime"
MF = "v_mfma_f32_16x16x32_bf16"

class Gen:
    def __init__(self, stop=99, prof=False, dbgsel=None):
        self.dbgsel = dbgsel
        self.k = Asm(); self.stop = stop; self.prof = prof; self.nst = 0; self.slow = []; self.nf = 0; self.fine = int(os.environ.get('FINE', -1))
    def stamp(self):
        if self.prof:
            k = self.k
            k(f"{TIMER} s[100:101]"); k.wait_lg0(); k(f"s_mov_b32 {s(sSTAMP + self.nst)}, s100"); self.nst += 1
    def fstamp(self):
        pool = list(range(24, 44, 2)) + list(range(76, 100, 2))
        self.k(f"s_memtime {s(pool[self.nf], 2)}"); self.nf += 1
    def arrive(self, idx):
        self.k.vm(f"buffer_atomic_add v{vONE}, v{vARR}, {s(rWS,4)}, 0 offen offset:{256*idx} sc1", "arr")
    def poll_issue(self, idx):
        self.k.vm(f"buffer_load_dword v{vPV}, v{vPOL}, {s(rWS,4)}, 0 offen offset:{256*idx} sc1", "poll")
    def check(self, load, cmp):
        k = self.k; S = k.newlabel("slow"); B = k.newlabel("back")
        k.wait_vm("poll"); k(cmp); k(f"s_cbranch_vccnz {S}"); k.label(B)
        self.slow.append((S, B, load, cmp))
    def poll_check(self, idx):
        self.check(f"buffer_load_dword v{vPV}, v{vPOL}, {s(rWS,4)}, 0 offen offset:{256*idx} sc1", f"v_cmp_ne_u32 vcc, {256//NSH}, v{vPV}")
    def flag_issue(self): self.k.vm(f"buffer_load_dword v{vPV}, v{vFR}, {s(rWS,4)}, 0 offen sc1", "poll")
    def flag_check(self, n): self.check(f"buffer_load_dword v{vPV}, v{vFR}, {s(rWS,4)}, 0 offen sc1", f"v_cmp_gt_u32 vcc, {n}, v{vPV}")
    def emit_slow(self):
        k = self.k
        for S, B, load, cmp in self.slow:
            Lp = k.newlabel("sp")
            k.label(S); k(f"s_mov_b32 {s(sCNT)}, 0x40000"); k.label(Lp)
            k(load); k("s_waitcnt vmcnt(0)"); k(cmp); k(f"s_cbranch_vccz {B}")
            k("s_sleep 1"); k(f"s_sub_u32 {s(sCNT)}, {s(sCNT)}, 1"); k(f"s_cmp_lg_u32 {s(sCNT)}, 0"); k(f"s_cbranch_scc1 {Lp}")
            k(f"s_branch {B}")

    def prologue(self):
        k = self.k
        k(f"s_cmp_ge_u32 {s(sID)}, 256"); k("s_cbranch_scc1 L_END")
        for r, off in ((rK, 8), (rV, 16), (rX, 0), (rWS, 96), (rSH, 24), (rSS, 32), (sDP, 40), (rW1, 56), (rW3, 64), (rW2, 72), (rOUT, 80), (sDBG, 88)):
            k(f"s_load_dwordx2 {s(r,2)}, s[0:1], {off}")
        if self.prof: k(f"{TIMER} {s(sSTAMP,2)}"); k("s_memtime s[98:99]"); self.nst = 1
        k("v_and_b32 v1, 63, v0"); k("v_lshrrev_b32 v2, 6, v0"); k(f"v_readfirstlane_b32 {s(sW)}, v2")
        for r, n in ((rK, 2621440), (rV, 2621440), (rX, 2621440), (rWS, WS_SIZE), (rSH, 5120), (rSS, 2621440), (rW1, 1966080), (rW3, 1966080), (rW2, 1966080), (rOUT, 2621440)):
            k(f"s_mov_b32 {s(r+2)}, {n}"); k(f"s_mov_b32 {s(r+3)}, 0x20000")
        k(f"s_and_b32 {s(sXG)}, {s(sID)}, 7"); k(f"s_lshr_b32 {s(sM)}, {s(sID)}, 3")
        k(f"s_lshl_b32 {s(sSB)}, {s(sXG)}, 5"); k(f"s_add_u32 {s(sSB)}, {s(sSB)}, {s(sM)}")

    def roles(self):
        k = self.k
        k(f"s_and_b32 {s(sE)}, {s(sM)}, 1"); k(f"s_lshr_b32 {s(sT)}, {s(sM)}, 1"); k(f"s_mul_i32 {s(sT)}, {s(sT)}, 5")
        k(f"s_mul_i32 {s(sC0)}, {s(sXG)}, 80"); k(f"s_add_u32 {s(sC0)}, {s(sC0)}, {s(sT)}")
        k(f"s_lshl_b32 {s(sT)}, {s(sE)}, 1"); k(f"s_add_u32 {s(sC0)}, {s(sC0)}, {s(sT)}")
        k(f"s_lshr_b32 {s(sR)}, {s(sXG)}, 2"); k(f"s_lshl_b32 {s(sR)}, {s(sR)}, 3"); k(f"s_lshr_b32 {s(sT)}, {s(sM)}, 2"); k(f"s_add_u32 {s(sR)}, {s(sR)}, {s(sT)}")
        k(f"s_and_b32 {s(sC)}, {s(sXG)}, 3"); k(f"s_lshl_b32 {s(sC)}, {s(sC)}, 2"); k(f"s_and_b32 {s(sT)}, {s(sM)}, 3"); k(f"s_add_u32 {s(sC)}, {s(sC)}, {s(sT)}")

    def consts(self):
        k = self.k; t0, t1, t2, t3 = 56, 57, 58, 59; vN, vG, vG1 = 60, 61, 62
        S = lambda i: s(sT+i)
        k(f"v_lshlrev_b32 v{vL16}, 4, v1"); k(f"v_mov_b32 v{vONE}, 1")
        k(f"s_and_b32 {S(0)}, {s(sM)}, {NSH-1}"); k(f"s_lshl_b32 {S(0)}, {S(0)}, 10"); k(f"v_lshlrev_b32 v{t0}, 14, v0"); k(f"v_add_u32 v{t0}, {S(0)}, v{t0}"); k(f"v_mov_b32 v{t1}, 0x7ffff000")
        k(f"v_cmp_gt_u32 vcc, 8, v0"); k(f"v_cndmask_b32 v{vARR}, v{t1}, v{t0}, vcc")
        k(f"v_and_b32 v{vN}, 15, v1"); k(f"v_lshrrev_b32 v{vG}, 4, v1"); k(f"v_and_b32 v{vG1}, 1, v{vG}")
        k(f"v_lshlrev_b32 v{vPOL}, 10, v{vN}"); k(f"s_lshl_b32 {S(0)}, {s(sXG)}, 14"); k(f"v_add_u32 v{vPOL}, {S(0)}, v{vPOL}")
        for i in range(3):
            k(f"v_add_u32 v{t0}, {64*i}, v1"); k(f"v_mul_u32_u24 v{t1}, 21846, v{t0}"); k(f"v_lshrrev_b32 v{t1}, 16, v{t1}")
            k(f"v_mul_u32_u24 v{t1}, {10240-48}, v{t1}"); k(f"v_lshl_add_u32 v{vGO+i}, v{t0}, 4, v{t1}")
        k(f"s_mul_i32 {S(0)}, {s(sW)}, {64*10240}"); k(f"s_lshl_b32 {S(1)}, {s(sC0)}, 4"); k(f"s_add_u32 {S(0)}, {S(0)}, {S(1)}")
        k(f"s_add_u32 {s(sGX)}, {S(0)}, {WS_XT}"); k(f"s_add_u32 {s(sGK)}, {S(0)}, {WS_KVT}")
        k(f"s_mul_i32 {s(sGL)}, {s(sW)}, 3072"); k(f"s_mul_i32 {s(sSTL)}, {s(sW)}, {STP}"); k(f"s_add_u32 {s(sSTL)}, {s(sSTL)}, {L_ST}")
        k(f"s_lshl_b32 {s(sSTS)}, {s(sW)}, 12"); k(f"s_add_u32 {s(sSTS)}, {s(sSTS)}, {WS_STAT}")
        k(f"v_lshl_add_u32 v{t2}, v{vN}, 1, v{vG}"); k(f"v_mul_u32_u24 v{t2}, 48, v{t2}")
        k(f"v_sub_u32 v{t3}, 15, v{vN}"); k(f"v_lshl_add_u32 v{t3}, v{vG}, 3, v{t3}")
        k(f"v_and_b32 v{t0}, 3, v{t3}"); k(f"v_mul_u32_u24 v{t0}, {CSTR}, v{t0}"); k(f"v_and_b32 v{t3}, 0xfc, v{t3}"); k(f"v_lshl_add_u32 v{t3}, v{t3}, 1, v{t0}")
        sCF, sCH = S(4), S(5)
        k(f"s_lshr_b32 {sCF}, {s(sW)}, 1"); k(f"s_add_u32 {sCF}, {sCF}, {s(sE)}"); k(f"s_lshl_b32 {sCH}, {s(sE)}, 1"); k(f"s_sub_u32 {sCH}, 2, {sCH}")
        for ch, vA, vB, full in ((sCF, vAF, vBF, True), (sCH, vAH, vBH, False)):
            if full: k(f"s_and_b32 {S(0)}, {s(sW)}, 1"); k(f"s_lshl_b32 {S(0)}, {S(0)}, 2"); k(f"s_sub_u32 {S(0)}, 4, {S(0)}")
            else: k(f"s_lshl_b32 {S(0)}, {s(sW)}, 1"); k(f"s_sub_u32 {S(0)}, 6, {S(0)}")
            k(f"s_mul_i32 {S(1)}, {ch}, {4*CSTR}"); k(f"s_lshl_b32 {S(2)}, {S(0)}, 6"); k(f"s_add_u32 {S(1)}, {S(1)}, {S(2)}"); k(f"v_add_u32 v{vA}, {S(1)}, v{t3}")
            k(f"s_lshl_b32 {S(1)}, {ch}, 4"); k(f"s_mul_i32 {S(2)}, {S(0)}, 192"); k(f"s_add_u32 {S(1)}, {S(1)}, {S(2)}"); k(f"s_add_u32 {S(1)}, {S(1)}, {L_U}"); k(f"v_add_u32 v{vB}, {S(1)}, v{t2}")
        k(f"v_lshlrev_b32 v{t0}, 5, v{vG1}"); k(f"v_lshl_add_u32 v{t0}, v{vN}, 1, v{t0}"); k(f"v_lshrrev_b32 v{t1}, 1, v{vG}"); k(f"v_add_u32 v{t0}, v{t0}, v{t1}")
        k(f"s_and_b32 {S(0)}, {s(sW)}, 1"); k(f"s_lshl_b32 {S(0)}, {S(0)}, 6"); k(f"v_add_u32 v{t0}, {S(0)}, v{t0}")
        k(f"s_lshl_b32 {S(0)}, {sCF}, 4"); k(f"s_add_u32 {S(0)}, {S(0)}, {L_XI}"); k(f"v_mul_u32_u24 v{t1}, 48, v{t0}"); k(f"v_add_u32 v{vXF}, {S(0)}, v{t1}")
        k(f"v_xor_b32 v{t1}, v{t0}, v{vG1}"); k(f"v_lshlrev_b32 v{t1}, 4, v{t1}"); k(f"v_add_u32 v{vSF}, {L_ST}, v{t1}")
        k(f"s_add_u32 {S(0)}, {s(sC0)}, {sCF}"); k(f"s_lshr_b32 {S(1)}, {S(0)}, 1"); k(f"s_and_b32 {S(1)}, {S(1)}, 2")
        k(f"s_lshl_b32 {s(sHF)}, {S(0)}, 6"); k(f"s_add_u32 {s(sHF)}, {s(sHF)}, {WS_HC}")
        k(f"v_lshrrev_b32 v{t1}, 2, v{t0}"); k(f"v_mul_u32_u24 v{t1}, 40960, v{t1}"); k(f"v_and_b32 v{t0}, 3, v{t0}"); k(f"v_xor_b32 v{t0}, {S(1)}, v{t0}"); k(f"v_lshl_add_u32 v{vGF}, v{t0}, 4, v{t1}")
        k(f"v_and_b32 v{t0}, 127, v0"); k(f"v_lshrrev_b32 v{t1}, 3, v{t0}"); k(f"v_bfe_u32 v{t2}, v{t0}, 1, 2")
        k(f"v_lshl_add_u32 v{t1}, v{t2}, 2, v{t1}"); k(f"v_and_b32 v{t1}, 15, v{t1}"); k(f"v_lshl_add_u32 v{t1}, v{t2}, 4, v{t1}"); k(f"v_lshlrev_b32 v{t1}, 4, v{t1}")
        k(f"v_and_b32 v{t2}, 1, v{t0}"); k(f"v_lshl_add_u32 v{t1}, v{t2}, 3, v{t1}")
        k(f"s_lshr_b32 {S(0)}, {s(sW)}, 1"); k(f"s_lshl_b32 {S(1)}, {S(0)}, 10"); k(f"s_add_u32 {S(1)}, {S(1)}, {L_PART + 8192}"); k(f"v_add_u32 v{vPH}, {S(1)}, v{t1}")
        k(f"s_mul_i32 {S(1)}, {S(0)}, 3"); k(f"s_add_u32 {S(0)}, {S(0)}, 1"); k(f"s_cmp_eq_u32 {s(sE)}, 0"); k(f"s_cselect_b32 {S(0)}, {S(1)}, {S(0)}")
        k(f"s_and_b32 {S(2)}, {S(0)}, 1"); k(f"s_lshl_b32 {S(0)}, {S(0)}, 5")
        k(f"v_lshrrev_b32 v{t1}, 2, v{t0}"); k(f"v_add_u32 v{t1}, {S(0)}, v{t1}")
        k(f"v_and_b32 v{t3}, 3, v{t0}")
        k(f"s_lshl_b32 {S(0)}, {sCH}, 4"); k(f"s_add_u32 {S(0)}, {S(0)}, {L_XI}"); k(f"v_mul_u32_u24 v{vXH}, 48, v{t1}"); k(f"v_lshl_add_u32 v{vXH}, v{t3}, 2, v{vXH}"); k(f"v_add_u32 v{vXH}, {S(0)}, v{vXH}")
        k(f"v_xor_b32 v{vSH}, {S(2)}, v{t1}"); k(f"v_lshlrev_b32 v{vSH}, 4, v{vSH}"); k(f"v_lshl_add_u32 v{vSH}, v{t2}, 3, v{vSH}")
        k(f"v_bfe_u32 v{t0}, v{t0}, 1, 1"); k(f"v_mul_u32_u24 v{t0}, {STP}, v{t0}"); k(f"v_add_u32 v{vSH}, v{vSH}, v{t0}"); k(f"v_add_u32 v{vSH}, {L_ST}, v{vSH}")
        k(f"s_add_u32 {S(0)}, {s(sC0)}, {sCH}"); k(f"s_lshr_b32 {S(1)}, {S(0)}, 1"); k(f"s_and_b32 {S(1)}, {S(1)}, 2")
        k(f"s_lshl_b32 {s(sHH)}, {S(0)}, 6"); k(f"s_add_u32 {s(sHH)}, {s(sHH)}, {WS_HC}")
        k(f"v_lshrrev_b32 v{t0}, 2, v{t1}"); k(f"v_mul_u32_u24 v{t0}, 40960, v{t0}"); k(f"v_lshl_add_u32 v{t0}, v{t3}, 2, v{t0}"); k(f"v_and_b32 v{t1}, 3, v{t1}"); k(f"v_xor_b32 v{t1}, {S(1)}, v{t1}"); k(f"v_lshl_add_u32 v{vGH}, v{t1}, 4, v{t0}")
        k(f"s_lshl_b32 {S(0)}, {s(sW)}, 11"); k(f"s_add_u32 {S(1)}, {S(0)}, {L_PART}"); k(f"v_add_u32 v{vPW}, {S(1)}, v{vL16}")
        k(f"v_lshl_add_u32 v{t0}, v{vG}, 2, v{vN}"); k(f"v_and_b32 v{t0}, 15, v{t0}"); k(f"v_lshl_add_u32 v{t0}, v{vG}, 4, v{t0}"); k(f"v_lshlrev_b32 v{t0}, 4, v{t0}"); k(f"v_add_u32 v{vPWH}, {S(1)}, v{t0}")
        k(f"s_xor_b32 {S(0)}, {S(0)}, 2048"); k(f"s_add_u32 {S(1)}, {S(0)}, {L_PART}"); k(f"v_add_u32 v{vPR}, {S(1)}, v{vL16}")
        k(f"s_lshl_b32 {S(6)}, {s(sC)}, 2"); k(f"s_add_u32 {S(6)}, {S(6)}, {s(sW)}")
        k(f"s_mul_i32 {s(sW13)}, {S(6)}, {20*3072}"); k(f"s_add_u32 {s(sW13)}, {s(sW13)}, {WS_W13}")
        k(f"v_lshrrev_b32 v{t0}, 2, v1"); k(f"v_lshlrev_b32 v{t0}, 6, v{t0}"); k(f"v_and_b32 v{t1}, 3, v1"); k(f"v_lshl_add_u32 v{t0}, v{t1}, 3, v{t0}")
        k(f"v_lshl_add_u32 v{t2}, v{vG1}, 5, v{t0}")
        for q in range(4):
            k(f"s_add_u32 {S(1)}, {s(sW)}, {q}"); k(f"s_and_b32 {S(1)}, {S(1)}, 3"); k(f"s_mul_i32 {S(1)}, {S(1)}, 10240")
            k(f"v_add_u32 v{vHB+2*q}, {S(1)}, v{t2}"); k(f"v_xor_b32 v{vHB+2*q+1}, 32, v{vHB+2*q}")
        k(f"v_mul_u32_u24 v{t2}, 49152, v{vG1}"); k(f"v_lshl_add_u32 v{t2}, v{vN}, 4, v{t2}"); k(f"v_lshrrev_b32 v{t3}, 1, v{vG}")
        k(f"v_lshl_add_u32 v{vSP}, v{t3}, 8, v{t2}"); k(f"v_lshl_add_u32 v{vSMX}, v{t3}, 3, v{t2}"); k(f"v_add_u32 v{vSMX}, 512, v{vSMX}")
        k(f"s_lshl_b32 {S(1)}, {s(sW)}, 11"); k(f"s_add_u32 {S(1)}, {S(1)}, {L_GR}"); k(f"v_add_u32 v{vGW}, {S(1)}, v{vL16}")
        k(f"s_lshl_b32 {S(1)}, {s(sW)}, 9"); k(f"s_add_u32 {S(1)}, {S(1)}, {L_SM}"); k(f"v_lshlrev_b32 v{vSWR}, 2, v1"); k(f"v_add_u32 v{vSWR}, {S(1)}, v{vSWR}")
        k(f"v_lshrrev_b32 v{t2}, 2, v{vN}"); k(f"v_lshl_add_u32 v{t2}, v{t2}, 4, v{vN}"); k(f"v_lshlrev_b32 v{t2}, 4, v{t2}"); k(f"v_lshl_add_u32 v{t2}, v{t1}, 2, v{t2}")
        k(f"v_lshl_add_u32 v{t2}, v{vG1}, 10, v{t2}"); k(f"v_add_u32 v{vGR}, {L_GR}, v{t2}")
        k(f"v_lshlrev_b32 v{t2}, 2, v{vN}"); k(f"v_lshl_add_u32 v{t2}, v{vG1}, 8, v{t2}"); k(f"v_add_u32 v{vSR}, {L_SM}, v{t2}")
        for i in range(4): k(f"v_mov_b32 v{ONES+i}, 0x3f803f80")
        k(f"s_mul_i32 {s(sHS)}, {s(sR)}, {2*40960}"); k(f"s_mul_i32 {s(sHL)}, {s(sW)}, 10240"); k(f"s_add_u32 {s(sHS)}, {s(sHS)}, {s(sHL)}"); k(f"s_add_u32 {s(sHS)}, {s(sHS)}, {WS_HC}")
        k(f"s_mul_i32 {s(sHO)}, {s(sR)}, {2*98304}"); k(f"s_mul_i32 {S(1)}, {S(6)}, 768"); k(f"s_add_u32 {s(sHO)}, {s(sHO)}, {S(1)}"); k(f"s_add_u32 {s(sHO)}, {s(sHO)}, {WS_HH}")
        k(f"s_lshl_b32 {S(0)}, {s(sR)}, 6"); k(f"s_add_u32 {S(1)}, {S(0)}, {S(6)}"); k(f"s_lshl_b32 {S(1)}, {S(1)}, 9"); k(f"s_add_u32 {S(1)}, {S(1)}, {WS_F3}")
        k(f"v_lshlrev_b32 v{vFW}, 7, v{t1}"); k(f"v_add_u32 v{vFW}, {S(1)}, v{vFW}")
        k(f"s_lshl_b32 {S(2)}, {s(sW)}, 4"); k(f"s_add_u32 {S(0)}, {S(0)}, {S(2)}"); k(f"s_lshl_b32 {S(0)}, {S(0)}, 9"); k(f"s_lshr_b32 {S(2)}, {s(sC)}, 2"); k(f"s_lshl_b32 {S(2)}, {S(2)}, 7")
        k(f"s_add_u32 {S(0)}, {S(0)}, {S(2)}"); k(f"s_add_u32 {S(0)}, {S(0)}, {WS_F3}"); k(f"v_lshlrev_b32 v{vFR}, 9, v{vN}"); k(f"v_add_u32 v{vFR}, {S(0)}, v{vFR}")
        sDT, sHf, sCK = S(3), S(4), S(5)
        k(f"s_and_b32 {sDT}, {s(sC)}, 7"); k(f"s_lshr_b32 {sHf}, {s(sC)}, 3")
        k(f"s_lshl_b32 {sCK}, {s(sR)}, 1"); k(f"s_and_b32 {S(1)}, {s(sW)}, 1"); k(f"s_add_u32 {sCK}, {sCK}, {S(1)}")
        k(f"s_lshr_b32 {S(1)}, {s(sW)}, 1"); k(f"s_lshl_b32 {S(1)}, {S(1)}, 5"); k(f"s_add_u32 {sCK}, {sCK}, {S(1)}")
        k(f"s_mul_i32 {S(1)}, {sDT}, 48"); k(f"s_mul_i32 {S(2)}, {s(sW)}, 12"); k(f"s_add_u32 {S(1)}, {S(1)}, {S(2)}"); k(f"s_mul_i32 {s(sW2)}, {S(1)}, 5120"); k(f"s_add_u32 {s(sW2)}, {s(sW2)}, {WS_W2}")
        k(f"s_mul_i32 {s(sRS)}, {sCK}, 40960"); k(f"s_mul_i32 {S(2)}, {sDT}, 5120"); k(f"s_add_u32 {s(sRS)}, {s(sRS)}, {S(2)}"); k(f"s_add_u32 {s(sRS)}, {s(sRS)}, {WS_HC}")
        k(f"v_xor_b32 v{t2}, {sHf}, v{vG1}"); k(f"v_lshl_add_u32 v{t2}, v{t2}, 5, v{t0}"); k(f"v_add_u32 v{vRA}, {s(sHL)}, v{t2}")
        k(f"v_mul_u32_u24 v{t2}, 1280, v{vN}"); k(f"v_lshl_add_u32 v{vO4}, v{vG}, 3, v{t2}"); k(f"v_add_u32 v{vO4}, 128, v{vO4}")
        k(f"v_lshl_add_u32 v{t2}, v{vG1}, 5, v{t2}"); k(f"v_lshl_add_u32 v{vOP}, v{t3}, 4, v{t2}")
        L_RED = 40960
        k(f"s_mul_i32 {S(1)}, {s(sW)}, 5120"); k(f"s_add_u32 {S(1)}, {S(1)}, {L_RED}"); k(f"v_add_u32 v{vRW}, {S(1)}, v{vL16}"); k(f"v_add_u32 v{vRW2}, {2*20480}, v{vRW}")
        k(f"s_mul_i32 {S(1)}, {s(sW)}, 20480"); k(f"s_add_u32 {S(1)}, {S(1)}, {L_RED}"); k(f"v_add_u32 v{vRR}, {S(1)}, v{vL16}")
        k(f"s_mul_i32 {s(sW2L)}, {s(sW)}, 15360"); k(f"s_add_u32 {s(sW2L)}, {s(sW2L)}, {L_W2}"); k(f"v_add_u32 v{vW2R}, {s(sW2L)}, v{vL16}")
        k(f"s_lshl_b32 {s(sOO)}, {sCK}, 1"); k(f"s_add_u32 {s(sOO)}, {s(sOO)}, {sHf}"); k(f"s_mul_i32 {s(sOO)}, {s(sOO)}, {16*1280}"); k(f"s_mul_i32 {S(1)}, {sDT}, 160"); k(f"s_add_u32 {s(sOO)}, {s(sOO)}, {S(1)}")
        k(f"s_lshl_b32 {s(sHI)}, {s(sR)}, 2"); k(f"s_add_u32 {s(sHI)}, {s(sHI)}, {sHf}"); k(f"s_mul_i32 {s(sHI)}, {s(sHI)}, 49152"); k(f"s_mul_i32 {S(1)}, {s(sW)}, 12288")
        k(f"s_add_u32 {s(sHI)}, {s(sHI)}, {S(1)}"); k(f"s_add_u32 {s(sHI)}, {s(sHI)}, {WS_HH}")

    def other_loads(self, SS):
        k = self.k; NT = OPT["nt1"]
        k(f"v_subrev_u32 v2, 8, v{vT16}"); k("v_mov_b32 v3, 0x7ffffff0"); k(f"v_cndmask_b32 v2, v2, v3, {s(sX+2,2)}")
        k(f"s_lshl_b32 {s(sT+2)}, {s(sC0)}, 12")
        for j in range(3):
            k.vm(f"buffer_load_dwordx4 {v(SS+6*j+2,4)}, v{vT16}, {s(rSS,4)}, {s(sT+2)} offen {NT}", "ss")
            k.vm(f"buffer_load_dwordx2 {v(SS+6*j,2)}, v2, {s(rSS,4)}, {s(sT+2)} offen {NT}", "ss")
            if j < 2: k(f"s_add_u32 {s(sT+2)}, {s(sT+2)}, 4096")
        if OPT["norp"]: return
        Lw2 = k.newlabel("w2"); Lj = k.newlabel("j")
        k(f"s_cmp_ge_u32 {s(sID)}, 160"); k(f"s_cbranch_scc1 {Lw2}")
        k(f"s_lshl_b32 {s(sT+2)}, {s(sM)}, 5"); k(f"s_lshl_b32 {s(sT+3)}, {s(sW)}, 3"); k(f"s_add_u32 {s(sT+2)}, {s(sT+2)}, {s(sT+3)}")
        k(f"s_mul_i32 {s(sT+2)}, {s(sT+2)}, 3072"); k(f"s_mul_i32 {s(sT+3)}, {s(sXG)}, 384"); k(f"s_add_u32 {s(sT+2)}, {s(sT+2)}, {s(sT+3)}")
        k(f"s_mul_i32 {s(sT+3)}, {s(sW)}, 3072")
        for i in range(3):
            k(f"v_add_u32 v2, {64*i}, v1"); k("v_mul_u32_u24 v3, 2731, v2"); k("v_lshrrev_b32 v3, 16, v3")
            k(f"v_mul_u32_u24 v3, {3072 - 24*16}, v3"); k("v_lshl_add_u32 v2, v2, 4, v3")
            for mat, srd in ((0, rW1), (1, rW3)):
                k(f"s_add_u32 m0, {s(sT+3)}, {L_RP + mat*12288 + 1024*i}")
                k(f"buffer_load_dwordx4 v2, {s(srd,4)}, {s(sT+2)} offen {NT} lds")
        k(f"s_branch {Lj}")
        k.label(Lw2)
        k(f"s_sub_u32 {s(sT+4)}, {s(sID)}, 160"); k(f"s_lshr_b32 {s(sT+2)}, {s(sT+4)}, 1"); k(f"s_lshl_b32 {s(sT+2)}, {s(sT+2)}, 5")
        k(f"s_lshl_b32 {s(sT+3)}, {s(sW)}, 3"); k(f"s_add_u32 {s(sT+2)}, {s(sT+2)}, {s(sT+3)}"); k(f"s_mul_i32 {s(sT+2)}, {s(sT+2)}, 1280")
        k(f"s_and_b32 {s(sT+3)}, {s(sT+4)}, 1"); k(f"s_mul_i32 {s(sT+3)}, {s(sT+3)}, 640"); k(f"s_add_u32 {s(sT+2)}, {s(sT+2)}, {s(sT+3)}")
        k(f"s_mul_i32 {s(sT+3)}, {s(sW)}, 5120")
        for i in range(5):
            k(f"v_add_u32 v2, {64*i}, v1"); k("v_mul_u32_u24 v3, 1639, v2"); k("v_lshrrev_b32 v3, 16, v3")
            k(f"v_mul_u32_u24 v3, {1280 - 40*16}, v3"); k("v_lshl_add_u32 v2, v2, 4, v3")
            k(f"s_add_u32 m0, {s(sT+3)}, {L_RP + 1024*i}")
            k(f"buffer_load_dwordx4 v2, {s(rW2,4)}, {s(sT+2)} offen {NT} lds")
        k(f"buffer_load_dword v255, v1, {s(rSH,4)}, 0 offen")
        k.label(Lj)
        k.vmq += ["rp"] * 6

    def phase0(self):
        k = self.k
        VO, KO = 64, 68
        SH = 72
        SS = 78
        vTR = 96
        k(f"v_lshlrev_b32 v{vT16}, 4, v0")
        k("v_lshrrev_b32 v2, 4, v0"); k("v_mul_u32_u24 v2, 52, v2")
        k(f"s_mul_i32 {s(sT)}, {s(sSB)}, 10240")
        k(f"s_add_u32 {s(sXS)}, {s(sT)}, {WS_XT}"); k(f"s_add_u32 {s(sKS)}, {s(sT)}, {WS_KVT}")
        for i in range(4):
            if i: k(f"v_add_u32 v2, 832, v2"); k(f"s_add_u32 {s(sT)}, {s(sT)}, 4096")
            k("v_lshrrev_b32 v3, 2, v2"); k("v_and_b32 v3, 0xc0, v3")
            k(f"v_xad_u32 v{VO+i}, v{vT16}, v3, {s(sT)}")
            k(f"v_subrev_u32 v{KO+i}, 5120, v{VO+i}")
        k(f"s_lshl_b32 {s(sT+1)}, {s(sW)}, 10")
        k(f"s_or_b32 {s(sT+5)}, {s(sM)}, {s(sW)}")
        k.wait_lg0()
        Lz = k.newlabel("z")
        k(f"s_cmp_lg_u32 {s(sT+5)}, 0"); k(f"s_cbranch_scc1 {Lz}")
        for i in range(4): k(f"v_mov_b32 v{100+i}, 0")
        k("v_lshrrev_b32 v2, 3, v1"); k("v_lshlrev_b32 v2, 10, v2"); k("v_and_b32 v3, 7, v1"); k("v_lshl_add_u32 v2, v3, 4, v2"); k(f"s_lshl_b32 {s(sT+2)}, {s(sXG)}, 14"); k(f"s_add_u32 {s(sT+3)}, {s(sT+2)}, 0x2000")
        k(f"buffer_store_dwordx4 v[100:103], v2, {s(rWS,4)}, {s(sT+2)} offen sc1"); k(f"buffer_store_dwordx4 v[100:103], v2, {s(rWS,4)}, {s(sT+3)} offen sc1")
        k.label(Lz)
        NT = OPT["nt0"]
        def dma(srd, vo, lbase, i, tag="p0"):
            k(f"s_add_u32 m0, {s(sT+1)}, {lbase + 4096*i}")
            k(f"buffer_load_dwordx4 v{vo+i}, {s(srd,4)}, 0 offen {NT} lds")
            if tag: k.vmq.append(tag)
        L1 = k.newlabel("c")
        k(f"s_cmp_eq_u32 {s(sW)}, 3"); k(f"s_cbranch_scc1 {L1}")
        dma(rK, KO, L_P0K, 3, None)
        k(f"s_cmp_eq_u32 {s(sW)}, 2"); k(f"s_cbranch_scc1 {L1}")
        dma(rV, VO, L_P0V, 2, None); dma(rX, VO, L_P0X, 2, None)
        k.label(L1)
        for i in range(3): dma(rK, KO, L_P0K, i)
        for i in range(2): dma(rV, VO, L_P0V, i)
        for i in range(2): dma(rX, VO, L_P0X, i)
        k("v_lshlrev_b32 v2, 3, v0"); k(f"s_movk_i32 {s(sT+2)}, 0x1000")
        k.vm(f"buffer_load_dwordx2 {v(SH,2)}, v2, {s(rSH,4)}, 0 offen", "p0")
        k.vm(f"buffer_load_dwordx2 {v(SH+2,2)}, v2, {s(rSH,4)}, 0 offen offset:2048", "p0")
        k.vm(f"buffer_load_dwordx2 {v(SH+4,2)}, v2, {s(rSH,4)}, {s(sT+2)} offen", "p0")
        k(f"s_getpc_b64 {s(sT+2,2)}"); k.label("L_PC")
        k(f"s_lshl_b32 {s(sT+4)}, {s(sW)}, 5"); k(f"s_add_u32 {s(sT+4)}, {s(sT+4)}, {s(sM)}"); k(f"s_lshl_b32 {s(sT+4)}, {s(sT+4)}, 9")
        k(f"v_lshlrev_b32 v2, 3, v1"); k(f"v_add_u32 v2, {s(sT+4)}, v2"); k("v_min_u32 v2, L_END-L_PC, v2")
        k.vm(f"global_load_dword v254, v2, {s(sT+2,2)}", "p0")
        self.roles()
        k(f"v_cmp_eq_u32 {s(sX+2,2)}, 0, v0")
        k(f"s_lshr_b32 {s(sT+2)}, {s(sC0)}, 1"); k(f"s_lshl_b32 {s(sT+2)}, {s(sT+2)}, 2")
        k(f"s_load_dwordx2 {s(sDV,2)}, {s(sDP,2)}, {s(sT+2)}")
        if not OPT["late"]: self.other_loads(SS)
        Lz = k.newlabel("z")
        k(f"s_cmp_lg_u32 {s(sT+5)}, 0"); k(f"s_cbranch_scc1 {Lz}")
        k(f"s_waitcnt vmcnt({len(k.vmq)+3})")
        k("v_mov_b32 v2, 0"); k("v_mov_b32 v3, 1"); k("s_mov_b64 exec, 1"); k(f"global_atomic_add v2, v3, {s(sDBG,2)} sc1"); k("s_mov_b64 exec, -1")
        k.label(Lz)
        for i in range(4): k(f"v_mov_b32 v{100+i}, 0")
        k(f"v_cmp_gt_u32 vcc, 90, v0"); k(f"s_and_saveexec_b64 {s(sX,2)}, vcc")
        k(f"ds_write_b128 v{vT16}, v[100:103] offset:{L_U}")
        k(f"s_mov_b64 exec, {s(sX,2)}")
        k("v_lshrrev_b32 v2, 1, v0"); k(f"v_mul_u32_u24 v2, {CSTR}, v2"); k("v_and_b32 v3, 1, v0"); k("v_lshl_add_u32 v2, v3, 4, v2")
        k(f"v_cmp_gt_u32 vcc, 24, v0"); k(f"s_and_saveexec_b64 {s(sX,2)}, vcc")
        k(f"ds_write_b128 v2, v[100:103] offset:{L_TOEP + 4096}")
        k(f"s_mov_b64 exec, {s(sX,2)}")
        k("v_bfe_u32 v2, v1, 2, 2")
        k("v_lshrrev_b32 v3, 4, v1"); k("v_lshlrev_b32 v3, 1, v3")
        k("v_bfe_u32 v97, v1, 1, 1"); k("v_add_u32 v3, v3, v97")
        k("v_bfe_u32 v97, v0, 6, 1"); k("v_lshl_add_u32 v3, v97, 3, v3")
        k("v_lshlrev_b32 v97, 2, v2"); k("v_xor_b32 v3, v3, v97"); k("v_lshlrev_b32 v3, 4, v3")
        k("v_mul_u32_u24 v2, 1280, v2"); k("v_add_u32 v3, v3, v2")
        k("v_and_b32 v2, 1, v1"); k("v_lshl_add_u32 v3, v2, 3, v3")
        k("v_lshrrev_b32 v2, 7, v0"); k("v_lshl_add_u32 v3, v2, 8, v3")
        k(f"v_add_u32 v{vTR}, {L_P0K}, v3")
        self.consts()
        for i in range(4): k(f"v_mov_b32 v{204+i}, 0")
        k(f"v_and_b32 v202, 0xfffffe00, v{vFW}"); k("v_and_b32 v2, 31, v1"); k("v_lshl_add_u32 v202, v2, 4, v202")
        k(f"s_lshl_b32 {s(sT+2)}, {s(sXG)}, 8"); k(f"s_lshl_b32 {s(sT+4)}, {s(sM)}, 10"); k(f"s_add_u32 {s(sT+2)}, {s(sT+2)}, {s(sT+4)}")
        k(f"s_sub_u32 {s(sT+3)}, {s(sXG)}, 1"); k(f"s_and_b32 {s(sT+4)}, {s(sM)}, 16"); k(f"s_or_b32 {s(sT+3)}, {s(sT+3)}, {s(sT+4)}"); k(f"s_lshl_b32 {s(sT+4)}, {s(sW)}, 4"); k(f"s_or_b32 {s(sT+3)}, {s(sT+3)}, {s(sT+4)}")
        k(f"s_cmp_lt_u32 {s(sT+3)}, 3"); k(f"s_cselect_b32 {s(sT+2)}, {s(sT+2)}, 0x7ff00000")
        k("v_lshrrev_b32 v2, 3, v1"); k("v_lshlrev_b32 v2, 14, v2"); k("v_and_b32 v3, 7, v1"); k("v_lshl_add_u32 v2, v3, 4, v2"); k(f"v_add_u32 v203, {s(sT+2)}, v2")
        k("v_lshrrev_b32 v2, 4, v1"); k("v_mul_u32_u24 v98, 1280, v2"); k("v_and_b32 v3, 15, v1"); k("v_lshl_add_u32 v98, v3, 4, v98")
        k(f"s_and_b32 {s(sT+4)}, {s(sW)}, 1"); k(f"s_mul_i32 {s(sT+5)}, {s(sT+4)}, 5120"); k(f"s_add_u32 {s(sT+5)}, {s(sT+5)}, {L_P0X}"); k(f"v_add_u32 v98, {s(sT+5)}, v98")
        k("v_lshlrev_b32 v99, 2, v2"); k("v_lshl_add_u32 v99, v3, 13, v99"); k("v_mov_b32 v97, 0x7ffff000"); k("v_cmp_gt_u32 vcc, 2, v3"); k("v_cndmask_b32 v99, v97, v99, vcc")
        k(f"s_and_b32 {s(sT+5)}, {s(sXG)}, 1"); k(f"s_xor_b32 {s(sT+5)}, {s(sT+5)}, {s(sSB)}"); k(f"s_lshl_b32 {s(sT+5)}, {s(sT+5)}, 4")
        k(f"s_lshl_b32 {s(sT+4)}, {s(sT+4)}, 12"); k(f"s_add_u32 {s(sT+5)}, {s(sT+5)}, {s(sT+4)}"); k(f"s_add_u32 {s(sT+6)}, {s(sT+5)}, {WS_STAT}")
        k.wait_lg0()
        k(f"s_and_b32 {s(sT+2)}, {s(sC0)}, 1"); k(f"s_lshl_b32 {s(sT+2)}, {s(sT+2)}, 4"); k(f"s_lshr_b64 {s(sDV,2)}, {s(sDV,2)}, {s(sT+2)}")
        k(f"s_lshl_b32 {s(sDV+2)}, {s(sDV+1)}, 16"); k(f"s_and_b32 {s(sDV+1)}, {s(sDV)}, 0xffff0000"); k(f"s_lshl_b32 {s(sDV)}, {s(sDV)}, 16")
        k.wait_vm("p0"); k("s_barrier")
        self.stamp()
        TB = 100
        def reads(i):
            b0 = TB + 16*i
            for b in range(3): k.lg(f"ds_read_b64_tr_b16 {v(b0+2*b,2)}, v{vTR} offset:{b*5120 + 512*i}", ("k", i))
            for b in range(2): k.lg(f"ds_read_b64_tr_b16 {v(b0+6+2*b,2)}, v{vTR} offset:{L_P0V-L_P0K + b*5120 + 512*i}", ("k", i))
            for b in range(2): k.lg(f"ds_read_b64_tr_b16 {v(b0+12+2*b,2)}, v{vTR} offset:{L_P0X-L_P0K + b*5120 + 512*i}", ("x", i))
        def task(i):
            P = TB + 16*i; Vv = P + 6; Xx = P + 12; Q = 150; W10, W32 = 155, 156; KS = 158; O = 168 + 4*i
            k(f"v_alignbit_b32 v{W10}, v{SH+2*i}, v{SH+2*i}, 16"); k(f"v_alignbit_b32 v{W32}, v{SH+2*i+1}, v{SH+2*i+1}, 16")
            k.wait_lg(("k", i))
            for j in range(5): k(f"v_alignbit_b32 v{Q+j}, v{P+j+1}, v{P+j}, 16")
            for j in range(4):
                k(f"v_dot2_f32_bf16 v{KS+2*j+1}, v{P+j+1}, v{W32}, 0"); k(f"v_dot2_f32_bf16 v{KS+2*j}, v{Q+j}, v{W32}, 0")
            for j in range(4):
                k(f"v_dot2_f32_bf16 v{KS+2*j+1}, v{P+j+2}, v{W10}, v{KS+2*j+1}"); k(f"v_dot2_f32_bf16 v{KS+2*j}, v{Q+j+1}, v{W10}, v{KS+2*j}")
            k.wait_lg(("x", i))
            k(f"buffer_store_dwordx4 {v(Xx,4)}, v{vT16}, {s(rWS,4)}, {s(sXS)} offen sc1 {OPT['st0']}")
            for j in range(4):
                k(f"v_lshlrev_b32 v{P+j}, 16, v{Vv+j}"); k(f"v_and_b32 v{Vv+j}, 0xffff0000, v{Vv+j}")
            for j in range(4):
                k(f"v_mul_f32 v{KS+2*j}, v{KS+2*j}, v{P+j}"); k(f"v_mul_f32 v{KS+2*j+1}, v{KS+2*j+1}, v{Vv+j}")
            for j in range(4): k(f"v_cvt_pk_bf16_f32 v{O+j}, v{KS+2*j}, v{KS+2*j+1}")
            k(f"buffer_store_dwordx4 {v(O,4)}, v{vT16}, {s(rWS,4)}, {s(sKS)} offen sc1 {OPT['st0']}")
            if i < 2: k(f"s_add_u32 {s(sKS)}, {s(sKS)}, 4096"); k(f"s_add_u32 {s(sXS)}, {s(sXS)}, 4096")
        reads(0); reads(1)
        k("v_mov_b32 v2, 0"); k(f"global_load_dword v{vPV}, v2, {s(sDBG,2)} sc1")
        k(f"buffer_store_dwordx4 v[204:207], v202, {s(rWS,4)}, 0 offen sc1")
        k(f"buffer_store_dwordx4 v[204:207], v203, {s(rWS,4)}, 0 offen sc1")
        if OPT["late"] == 1: self.other_loads(SS)
        Ls = k.newlabel("st"); Lj = k.newlabel("j")
        k(f"s_cmp_ge_u32 {s(sW)}, 2"); k(f"s_cbranch_scc1 {Ls}")
        q0 = list(k.lgq)
        task(0); reads(2); task(1); task(2)
        k(f"s_branch {Lj}")
        k.label(Ls); k.lgq = q0
        task(0)
        for j in range(5): k.lg(f"ds_read_b128 {v(180+4*j,4)}, v98 offset:{256*j}", "s")
        task(1)
        k(f"s_mov_b32 {s(sT+5)}, 0x3f803f80")
        k.wait_lg("s")
        for j in range(20):
            k(f"v_dot2_f32_bf16 v200, v{180+j}, {s(sT+5)}, {'0' if j==0 else 'v200'}"); k(f"v_dot2_f32_bf16 v201, v{180+j}, v{180+j}, {'0' if j==0 else 'v201'}")
        for r in (8, 4, 2, 1):
            k(f"v_add_f32_dpp v200, v200, v200 row_ror:{r} row_mask:0xf bank_mask:0xf"); k(f"v_add_f32_dpp v201, v201, v201 row_ror:{r} row_mask:0xf bank_mask:0xf")
        k(f"v_mul_f32 v200, {1.0/640!r}, v200"); k(f"v_mul_f32 v201, {1.0/640!r}, v201")
        k("v_fma_f32 v201, -v200, v200, v201"); k("v_max_f32 v201, 0, v201"); k(f"v_add_f32 v201, {1e-5!r}, v201"); k("v_rsq_f32 v201, v201")
        k("v_and_b32 v2, 15, v1"); k("v_cmp_eq_u32 vcc, 0, v2")
        k("v_mul_f32 v200, v200, v201"); k("v_sub_f32 v200, 0, v200")
        k("v_cndmask_b32 v200, v200, v201, vcc")
        if not OPT.get("nostat"): k(f"buffer_store_dword v200, v99, {s(rWS,4)}, {s(sT+6)} offen sc1")
        k.label(Lj); k.lgq = []
        self.stamp()
        Lw2 = k.newlabel("w2"); Lj = k.newlabel("j")
        k("v_bfe_u32 v2, v1, 2, 2"); k("v_lshrrev_b32 v3, 4, v1"); k("v_and_b32 v97, 3, v1")
        k(f"s_cmp_ge_u32 {s(sID)}, 160"); k(f"s_cbranch_scc1 {Lw2}")
        k("v_lshl_add_u32 v2, v3, 2, v2"); k("v_mul_u32_u24 v2, 384, v2")
        k(f"s_mul_i32 {s(sT+2)}, {s(sW)}, 48"); k(f"s_add_u32 {s(sT+2)}, {s(sT+2)}, {L_RP}"); k(f"v_add_u32 v2, {s(sT+2)}, v2")
        k("v_lshl_add_u32 v98, v97, 3, v2")
        k("v_and_b32 v3, 1, v97"); k("v_mul_u32_u24 v3, 12288, v3"); k("v_lshrrev_b32 v97, 1, v97"); k("v_lshl_add_u32 v3, v97, 3, v3")
        k("v_add3_u32 v99, v2, v3, 32")
        k(f"s_mul_i32 {s(sT+3)}, {s(sM)}, 52"); k(f"s_lshr_b32 {s(sT+3)}, {s(sT+3)}, 8"); k(f"s_sub_u32 {s(sT+4)}, {s(sT+3)}, {s(sW)}"); k(f"s_and_b32 {s(sT+4)}, {s(sT+4)}, 3")
        k(f"s_sub_u32 {s(sT+4)}, {s(sT+4)}, {s(sT+3)}"); k(f"s_mul_i32 {s(sT+4)}, {s(sT+4)}, 5"); k(f"s_add_u32 {s(sT+4)}, {s(sT+4)}, {s(sM)}")
        k(f"s_lshl_b32 {s(sT+2)}, {s(sXG)}, 3"); k(f"s_add_u32 {s(sT+2)}, {s(sT+2)}, {s(sW)}"); k(f"s_mul_i32 {s(sT+2)}, {s(sT+2)}, 20"); k(f"s_add_u32 {s(sT+2)}, {s(sT+2)}, {s(sT+4)}")
        k(f"s_mul_i32 {s(sT+2)}, {s(sT+2)}, 3072"); k(f"s_add_u32 {s(sT+2)}, {s(sT+2)}, {WS_W13}"); k(f"s_add_u32 {s(sT+3)}, {s(sT+2)}, {80*3072}")
        k(f"s_branch {Lj}")
        k.label(Lw2)
        k("v_lshl_add_u32 v2, v3, 3, v2"); k("v_mul_u32_u24 v2, 640, v2"); k("v_lshl_add_u32 v2, v97, 3, v2")
        k(f"s_mul_i32 {s(sT+2)}, {s(sW)}, 160"); k(f"s_add_u32 {s(sT+2)}, {s(sT+2)}, {L_RP}"); k(f"v_add_u32 v98, {s(sT+2)}, v2")
        k(f"s_sub_u32 {s(sT+4)}, {s(sID)}, 160"); k(f"s_and_b32 {s(sT+2)}, {s(sT+4)}, 1"); k(f"s_lshl_b32 {s(sT+2)}, {s(sT+2)}, 2"); k(f"s_add_u32 {s(sT+2)}, {s(sT+2)}, {s(sW)}")
        k(f"s_mul_i32 {s(sT+2)}, {s(sT+2)}, 48"); k(f"s_lshr_b32 {s(sT+4)}, {s(sT+4)}, 1"); k(f"s_add_u32 {s(sT+2)}, {s(sT+2)}, {s(sT+4)}")
        k(f"s_mul_i32 {s(sT+2)}, {s(sT+2)}, 5120"); k(f"s_add_u32 {s(sT+2)}, {s(sT+2)}, {WS_W2}"); k(f"s_add_u32 {s(sT+3)}, {s(sT+2)}, 4096")
        k.label(Lj)
        k.vmq = ["poll"]
        if OPT["late"] == 2:
            for i in range(2): k(f"s_mov_b32 {s(sX+i)}, {s(sT+2+i)}")
            self.other_loads(SS)
            for i in range(2): k(f"s_mov_b32 {s(sT+2+i)}, {s(sX+i)}")
        k("v_mov_b32 v2, 0")
        self.check(f"global_load_dword v{vPV}, v2, {s(sDBG,2)} sc1", f"v_cmp_gt_u32 vcc, 8, v{vPV}")
        k("s_barrier")
        self.arrive(S1)
        self.stamp()
        if OPT["late"] == 2: k.wait_vm(["rp", "ss"]); k("s_barrier")
        Lw2 = k.newlabel("w2"); Lj = k.newlabel("j")
        if OPT["norp"]: k(f"s_branch {Lj}")
        k(f"s_cmp_ge_u32 {s(sID)}, 160"); k(f"s_cbranch_scc1 {Lw2}")
        for ci in range(2):
            for t in range(3):
                O = 100 + 4*(3*ci + t)
                for h in range(2):
                    k(f"ds_read_b64_tr_b16 {v(O+2*h,2)}, v{99 if t==2 else 98} offset:{192*ci + 16*384*h + (12288 if t == 1 else 0)}")
        for ci in range(2):
            for t in range(3):
                k(f"s_waitcnt lgkmcnt({10 - 2*(3*ci+t)})")
                k(f"buffer_store_dwordx4 {v(100+4*(3*ci+t),4)}, v{vL16}, {s(rWS,4)}, {s(sT+2+ci)} offen offset:{1024*t} sc1 {OPT['st1']}")
        k(f"s_branch {Lj}")
        k.label(Lw2)
        for t in range(5):
            for h in range(2): k(f"ds_read_b64_tr_b16 {v(100+4*t+2*h,2)}, v98 offset:{32*t + 4*640*h}")
        for t in range(5):
            k(f"s_waitcnt lgkmcnt({8 - 2*t})")
            k(f"buffer_store_dwordx4 {v(100+4*t,4)}, v{vL16}, {s(rWS,4)}, {s(sT+2+(t>>2))} offen offset:{1024*(t&3)} sc1 {OPT['st1']}")
        k.label(Lj)
        k(f"s_mov_b32 {s(sT+2)}, 0xffff")
        k(f"v_sub_u32 v2, {255*16}, v{vT16}")
        for j in range(3):
            D = SS + 6*j
            k(f"v_lshlrev_b32 v3, 16, v{D+2}"); k(f"v_add_f32 v3, {s(sDV+j)}, v3"); k("v_cvt_pk_bf16_f32 v3, v3, v3")
            k(f"v_bfi_b32 v3, {s(sT+2)}, v3, v{D+2}"); k(f"v_cndmask_b32 v{D+2}, v{D+2}, v3, {s(sX+2,2)}")
            O = 128 + 16*j
            for c in range(4):
                for t in range(4):
                    hi = 5 - t - (c >> 1)
                    if c % 2 == 0: k(f"v_alignbit_b32 v{O+4*c+t}, v{D+hi}, v{D+hi}, 16")
                    else: k(f"v_bfi_b32 v{O+4*c+t}, {s(sT+2)}, v{D+hi}, v{D+hi-1}")
                k(f"ds_write_b128 v2, {v(O+4*c,4)} offset:{L_TOEP + (4*j+c)*CSTR}")
        self.stamp()
        L = k.newlabel("pol")
        if OPT["presleep"]: k(f"s_sleep {OPT['presleep']}")
        k(f"s_cmp_lg_u32 {s(sW)}, 0"); k(f"s_cbranch_scc1 {L}")
        k.vmq = []
        self.poll_issue(S1); self.poll_check(S1)
        k.label(L)
        k.wait_vm0(); k("s_barrier")

    def run_fill(self, fill, fi, credit, i):
        while fi < len(fill) and credit > 0 and fill[fi][2] <= i:
            c, fn, _ = fill[fi]; fn(); credit -= c; fi += 1
        return fi, credit

    def conv_stream(self, ops, FR, nslots, fill, LA=12, fs=0):
        k = self.k
        first = {}; last = {}
        for i, (_, _, A_, B_) in enumerate(ops):
            for key in (A_, B_):
                first.setdefault(key, i); last[key] = i
        order = sorted(first, key=lambda x: first[x])
        free = list(range(nslots)); slot = {}; st = dict(nxt=0)
        def issue(budget, upto):
            while st["nxt"] < len(order) and free and budget > 0 and first[order[st["nxt"]]] <= upto:
                key = order[st["nxt"]]; sl = free.pop(0); slot[key] = sl; r = FR + 4*sl
                if key[0] == "A":
                    k.lg(f"ds_read_b64 {v(r,2)}, v{key[1]} offset:{key[2]}", None); k.lg(f"ds_read_b64 {v(r+2,2)}, v{key[1]} offset:{key[2]+8}", key); budget -= 2
                else:
                    k.lg(f"ds_read_b128 {v(r,4)}, v{key[1]} offset:{key[2]}", key); budget -= 1
                st["nxt"] += 1
            return budget
        issue(12, LA)
        k.wait_lg([ops[0][2], ops[0][3]])
        fi = 0; credit = 0
        for i, (acc, fst, A_, B_) in enumerate(ops):
            k(f"{MF} {v(acc,4)}, {v(FR+4*slot[A_],4)}, {v(FR+4*slot[B_],4)}, {'0' if fst else v(acc,4)}")
            for key in {A_, B_}:
                if last[key] == i: free.append(slot[key])
            if i + 1 < len(ops):
                nA, nB = ops[i+1][2], ops[i+1][3]
                while nA not in slot or nB not in slot: issue(2, i+1)
                k.wait_lg([nA, nB])
            if fs and i % fs == 0: self.fstamp()
            credit = min(credit, 0) + 2
            credit = issue(credit, i + LA)
            fi, credit = self.run_fill(fill, fi, credit, i)
        while fi < len(fill): fill[fi][1](); fi += 1

    def conv_ops(self, tiles, nr, vA, vB, acc):
        ops = []
        for dr in range(nr):
            for m in range(max(tiles) + 1):
                for ti, T in reversed(list(enumerate(tiles))):
                    if T >= m:
                        ops.append((acc + 4*ti, dr == 0 and m == 0, ("A", vA, 64*(56 - 8*m + nr - 1 - dr)), ("B", vB, 192*(8*(T-m) + nr - 1 - dr))))
        return ops

    def w13_load(self, f):
        k = self.k
        k.vm(f"buffer_load_dwordx4 {a(4*f,4)}, v{vL16}, {s(rWS,4)}, {s(sW13)} offen offset:{1024*(f%4)} sc1", ("w", f//3))
        if f % 4 == 3: k(f"s_add_u32 {s(sW13)}, {s(sW13)}, 4096")

    def phase1(self):
        k = self.k
        ACF, ACH, FR = 56, 72, 80
        E = 144; X = E + 28; H = 184
        self.arrive(SW)
        self.stamp()
        for i in range(3):
            k(f"s_add_u32 m0, {s(sGL)}, {L_UD + 1024*i}"); k.vm(f"buffer_load_dwordx4 v{vGO+i}, {s(rWS,4)}, {s(sGK)} offen sc1 lds", "u")
        for i in range(3):
            k(f"s_add_u32 m0, {s(sGL)}, {L_XI + 1024*i}"); k.vm(f"buffer_load_dwordx4 v{vGO+i}, {s(rWS,4)}, {s(sGX)} offen sc1 lds", "x")
        k(f"s_mov_b32 m0, {s(sSTL)}")
        for i in range(4): k.vm(f"buffer_load_dwordx4 v{vL16}, {s(rWS,4)}, {s(sSTS)} offen offset:{1024*i} sc1 lds", "x")
        k.wait_vm("u"); k.wait_lg0(); k("s_barrier")
        self.stamp()
        def pre_reads(ps):
            PB = 128*ps; P = []
            P.append(lambda: k.lg(f"ds_read_b128 {v(E+8,4)}, v{vXF} offset:{48*PB}", "s"))
            for i in range(4): P.append(lambda i=i: k.lg(f"ds_read_b128 {v(E+12+4*i,4)}, v{vSF} offset:{16*PB+STP*i}", "s"))
            P.append(lambda: k.lg(f"ds_read_b32 v{H+8}, v{vXH} offset:{48*PB}", "s"))
            P.append(lambda: k.lg(f"ds_read_b64 {v(H+10,2)}, v{vSH} offset:{16*PB}", "s"))
            P.append(lambda: k.lg(f"ds_read_b64 {v(H+12,2)}, v{vSH} offset:{16*PB+2*STP}", "s"))
            return P
        def pre_math():
            P = []
            for i in range(4):
                P.append(f"v_lshlrev_b32 v{X+2*i}, 16, v{E+8+i}"); P.append(f"v_and_b32 v{X+2*i+1}, 0xffff0000, v{E+8+i}")
            for i in range(8): P.append(f"v_fma_f32 v{E+12+i}, v{X+i}, v{E+12+i}, v{E+20+i}")
            P.append(f"v_lshlrev_b32 v{H+14}, 16, v{H+8}"); P.append(f"v_and_b32 v{H+15}, 0xffff0000, v{H+8}")
            for r in range(2): P.append(f"v_fma_f32 v{H+10+r}, v{H+14+r}, v{H+10+r}, v{H+12+r}")
            return P
        wf = [0]
        for ps in range(2):
            PO = 16384*ps
            full = self.conv_ops([4*ps+t for t in range(4)], 4, vAF, vBF, ACF)
            nmf = len(full) + (10 if ps == 0 else 26)
            def mkfill():
                F = []
                if ps == 0:
                    F.append((1, lambda: self.poll_issue(SW), 26))
                else:
                    w = wf[0]; pos = 2
                    arr_at = 44
                    done_arr = False
                    while pos < nmf - 30:
                        if not done_arr and pos >= arr_at:
                            F.append((0, lambda: (k.wait_vm("h"), k("s_barrier")), arr_at)); F.append((1, lambda: self.arrive(S2A), arr_at)); done_arr = True
                        F.append((1, lambda w=w: self.w13_load(w), pos)); w += 1; pos += OPT["wrate"]
                    self.wf_next = w
                    for fn in pre_reads(1): F.append((1, fn, nmf - 30))
                    F.append((0, lambda: k.wait_lg("s"), nmf - 18))
                    for t in pre_math(): F.append((1, lambda t=t: k(t), nmf - 18))
                    F.append((1, lambda: self.poll_issue(S2A), nmf - 4))
                return F
            Le = k.newlabel("e"); Lj = k.newlabel("j")
            k(f"s_cmp_lg_u32 {s(sE)}, 0"); k(f"s_cbranch_scc1 {Le}")
            vq = list(k.vmq)
            fs = (5 if ps == 0 else 8) if self.fine == 5 + ps else 0
            self.conv_stream(self.conv_ops([4*ps, 4*ps+3], 2, vAH, vBH, ACH) + full, FR, 16, mkfill(), fs=fs)
            if fs: self.nf = 0
            vq1 = list(k.vmq)
            k(f"s_branch {Lj}"); k.label(Le); k.lgq = []; k.vmq = vq
            self.conv_stream(self.conv_ops([4*ps+1, 4*ps+2], 2, vAH, vBH, ACH) + full, FR, 16, mkfill(), fs=fs)
            assert k.vmq == vq1
            k.label(Lj); k.lgq = []
            if fs: self.fstamp()
            k(f"ds_write_b128 v{vPWH}, {v(ACH,4)} offset:{PO+8192}"); k(f"ds_write_b128 v{vPWH}, {v(ACH+4,4)} offset:{PO+8192+1024}")
            Lo = k.newlabel("o"); Lj = k.newlabel("j")
            k(f"s_bitcmp1_b32 {s(sW)}, 0"); k(f"s_cbranch_scc1 {Lo}")
            k(f"ds_write_b128 v{vPW}, {v(ACF+8,4)} offset:{PO}"); k(f"ds_write_b128 v{vPW}, {v(ACF+12,4)} offset:{PO+1024}")
            k(f"s_branch {Lj}"); k.label(Lo)
            k(f"ds_write_b128 v{vPW}, {v(ACF,4)} offset:{PO}"); k(f"ds_write_b128 v{vPW}, {v(ACF+4,4)} offset:{PO+1024}")
            k("s_waitcnt lgkmcnt(0)")
            for i in range(8): k(f"v_mov_b32 v{ACF+i}, v{ACF+8+i}")
            k.label(Lj)
            if ps == 0: k.wait_vm("x")
            k("s_waitcnt lgkmcnt(0)"); k("s_barrier")
            if fs: self.fstamp()
            if ps == 0:
                for fn in pre_reads(0): fn()
            k.lg(f"ds_read_b128 {v(E,4)}, v{vPR} offset:{PO}", "p"); k.lg(f"ds_read_b128 {v(E+4,4)}, v{vPR} offset:{PO+1024}", "p")
            for w_ in range(4): k.lg(f"ds_read_b64 {v(H+2*w_,2)}, v{vPH} offset:{PO+2048*w_}", "hp")
            if ps == 0:
                k.wait_lg("s")
                for t in pre_math(): k(t)
            k.wait_lg("p")
            for i in range(8): k(f"v_add_f32 v{ACF+i}, v{ACF+i}, v{E+i}")
            for i in range(4): k(f"v_permlane16_swap_b32 v{ACF+i}, v{ACF+4+i}")
            for i in range(8): k(f"v_fmac_f32 v{X+i}, v{E+12+i}, v{ACF+i}")
            for i in range(4): k(f"v_cvt_pk_bf16_f32 v{E+i}, v{X+2*i}, v{X+2*i+1}")
            k.vm(f"buffer_store_dwordx4 {v(E,4)}, v{vGF}, {s(rWS,4)}, {s(sHF)} offen sc1", "h")
            k.wait_lg("hp")
            for r in range(2):
                k(f"v_add_f32 v{H+r}, v{H+r}, v{H+2+r}"); k(f"v_add_f32 v{H+4+r}, v{H+4+r}, v{H+6+r}")
            for r in range(2): k(f"v_add_f32 v{H+r}, v{H+r}, v{H+4+r}")
            for r in range(2): k(f"v_fmac_f32 v{H+14+r}, v{H+10+r}, v{H+r}")
            k(f"v_cvt_pk_bf16_f32 v{H+8}, v{H+14}, v{H+15}")
            k.vm(f"buffer_store_dword v{H+8}, v{vGH}, {s(rWS,4)}, {s(sHH)} offen sc1", "h")
            if ps == 0:
                k(f"s_add_u32 {s(sHF)}, {s(sHF)}, {32*40960}"); k(f"s_add_u32 {s(sHH)}, {s(sHH)}, {32*40960}")
                if fs: self.fstamp()
                self.poll_check(SW)
            if fs: self.fstamp()
            self.stamp()

    def interleave(self, mf, fill, per=2):
        k = self.k; fi = 0; credit = 0
        def pre(m):
            if m.get("wait"): k.wait_lg(m["wait"])
            if m.get("vwait"): k.wait_vm(m["vwait"])
        pre(mf[0])
        for i, m in enumerate(mf):
            k(m["text"])
            if i + 1 < len(mf): pre(mf[i+1])
            for x in m.get("scal", []): x() if callable(x) else k(x)
            credit = min(credit, 0) + per
            for x in m.get("post", []):
                x(); credit -= 1
            fi, credit = self.run_fill(fill, fi, credit, i)
        while fi < len(fill): fill[fi][1](); fi += 1

    def g1_epilogue(self, AC, idx):
        k = self.k; P = []
        C1, C3, CG, CU = 56, 60, 64, 68
        ST = {"m": 9, 0: 12, 1: 15}; O4, O2 = 18, 54
        def add(t, c=1): P.append((c, (lambda t=t: k(t)), idx))
        def swi(G, U, cg, cu, st):
            nm, nl, ve = st, st+1, st+2
            for r in range(4): add(f"v_fmac_f32 v{G+r}, v{nm}, v{cg+r}")
            for r in range(4): add(f"v_fmac_f32 v{U+r}, v{nm}, v{cu+r}")
            for r in range(4): add(f"v_mul_f32 v{U+r}, v{G+r}, v{U+r}")
            for r in range(4): add(f"v_mul_f32 v{G+r}, v{G+r}, v{nl}")
            for r in range(4): add(f"v_exp_f32 v{G+r}, v{G+r}", 2)
            for r in range(4): add(f"v_fma_f32 v{G+r}, v{G+r}, v{ve}, v{ve}")
            for r in range(4): add(f"v_rcp_f32 v{G+r}, v{G+r}", 2)
            for r in range(4): add(f"v_mul_f32 v{U+r}, v{U+r}, v{G+r}")
        for a_ in range(2):
            swi(AC+12*a_, AC+12*a_+4, C1, C3, ST[a_])
            add(f"v_cvt_pk_bf16_f32 v{O4+2*a_}, v{AC+12*a_+4}, v{AC+12*a_+5}"); add(f"v_cvt_pk_bf16_f32 v{O4+2*a_+1}, v{AC+12*a_+6}, v{AC+12*a_+7}")
        for r in range(4): add(f"v_permlane16_swap_b32 v{AC+8+r}, v{AC+20+r}")
        add(f"v_permlane16_swap_b32 v{O4}, v{O4+2}"); add(f"v_permlane16_swap_b32 v{O4+1}, v{O4+3}")
        P.append((1, lambda: k.vm(f"buffer_store_dwordx4 {v(O4,4)}, v{vSP}, {s(rWS,4)}, {s(sHO)} offen sc1", "hh"), idx))
        swi(AC+8, AC+20, CG, CU, ST["m"])
        add(f"v_cvt_pk_bf16_f32 v{O2}, v{AC+20}, v{AC+21}"); add(f"v_cvt_pk_bf16_f32 v{O2+1}, v{AC+22}, v{AC+23}")
        P.append((1, lambda: k.vm(f"buffer_store_dwordx2 {v(O2,2)}, v{vSMX}, {s(rWS,4)}, {s(sHO)} offen sc1", "hh"), idx))
        return P
    def g1_stats(self, idx):
        k = self.k; T = 18
        return [(1, lambda: k.lg(f"ds_read2st64_b32 {v(T,2)}, v{vSR} offset0:0 offset1:2", "st"), idx),
                (1, lambda: k.lg(f"ds_read2st64_b32 {v(T+2,2)}, v{vSR} offset0:4 offset1:6", "st"), idx),
                (1, lambda: k.lg(f"ds_read2st64_b32 {v(T+4,2)}, v{vGR} offset0:0 offset1:8", "st"), idx),
                (1, lambda: k.lg(f"ds_read2st64_b32 {v(T+6,2)}, v{vGR} offset0:16 offset1:24", "st"), idx)]
    def g1_stats2(self, idx):
        k = self.k; P = []; T = 18
        def add(t, c=1): P.append((c, (lambda t=t: k(t)), idx))
        P.append((0, lambda: k.wait_lg("st"), idx))
        for i in range(4): add(f"v_add_f32 v{T+2*i}, v{T+2*i}, v{T+2*i+1}")
        add(f"v_add_f32 v{T}, v{T}, v{T+2}"); add(f"v_add_f32 v{T+4}, v{T+4}, v{T+6}")
        add(f"v_mul_f32 v9, {-1.0/640!r}, v{T}"); add(f"v_mul_f32 v11, {1.0/640!r}, v{T+4}")
        add(f"v_fma_f32 v11, -v9, v9, v11"); add("v_max_f32 v11, 0, v11"); add(f"v_add_f32 v11, {1e-5!r}, v11")
        add("v_rsq_f32 v10, v11", 2); add("v_mov_b32 v12, v9"); add(f"v_mul_f32 v10, {-1.4426950408889634!r}, v10")
        add("v_mov_b32 v15, v9"); add("v_mov_b32 v14, v11"); add("v_mov_b32 v17, v11"); add("v_mov_b32 v13, v10"); add("v_mov_b32 v16, v10")
        add("v_permlane16_swap_b32 v12, v15"); add("v_permlane16_swap_b32 v14, v17"); add("v_permlane16_swap_b32 v13, v16")
        return P
    def flag_set(self, n):
        k = self.k
        k.wait_vm("hh"); k(f"v_mov_b32 v3, {n}"); k.vm(f"buffer_store_dword v3, v{vFW}, {s(rWS,4)}, 0 offen sc1", "flag")

    def phase23(self):
        k = self.k
        SA = 72; AC0 = 88; HF = 136; CS = 56
        NV, NL = 28, 15
        def w2reg(f):
            if f < 24: return v(160+4*f, 4)
            if f < NV: return a(240+4*(f-24), 4)
            if f < NV+NL: return a(164+4*(f-NV), 4)
            return a(96+4*(f-NV-NL), 4)
        def w2_load(f):
            def fn():
                if NV <= f < NV+NL:
                    k(f"s_add_u32 m0, {s(sW2L)}, {1024*(f-NV-f%4)}")
                    k.vm(f"buffer_load_dwordx4 v{vL16}, {s(rWS,4)}, {s(sW2)} offen offset:{1024*(f%4)} sc1 lds", ("w2", f))
                else:
                    k.vm(f"buffer_load_dwordx4 {w2reg(f)}, v{vL16}, {s(rWS,4)}, {s(sW2)} offen offset:{1024*(f%4)} sc1", ("w2", f))
                if f % 4 == 3: k(f"s_add_u32 {s(sW2)}, {s(sW2)}, 4096")
            return fn
        assert NV % 4 == 0
        CH_STEP = [40960, 31*40960, 40960]; HO_STEP = [98304, 31*98304, 98304]
        def dma(c, i):
            def f():
                if i % 4 == 0:
                    k(f"s_add_u32 m0, {s(sHL)}, {(c&1)*40960 + 1024*i}")
                    if i: k(f"s_add_u32 {s(sHS)}, {s(sHS)}, 4096")
                k.vm(f"buffer_load_dwordx4 v{vL16}, {s(rWS,4)}, {s(sHS)} offen offset:{1024*(i%4)} sc1 lds", ("h", c, i//2))
                if i == 9 and c < 3: k(f"s_add_u32 {s(sHS)}, {s(sHS)}, {CH_STEP[c] - 8192}")
            return f
        def res_dma(i):
            def f():
                if i == 0: k(f"s_mov_b32 m0, {s(sHL)}")
                if i == 4: k("s_add_u32 m0, m0, 4096"); k(f"s_add_u32 {s(sRS)}, {s(sRS)}, 4096")
                k.vm(f"buffer_load_dwordx4 v{vL16}, {s(rWS,4)}, {s(sRS)} offen offset:{1024*(i%4)} sc1 lds", "res")
            return f
        def hh_load(i, kb):
            def f():
                k.vm(f"buffer_load_dwordx4 {a(48*(i&1)+4*kb,4)}, v{vL16}, {s(rWS,4)}, {s(sHI)} offen offset:{1024*(kb%4)} sc1", ("hi", i, kb))
                if kb % 4 == 3 and not (i == 3 and kb == 11): k(f"s_add_u32 {s(sHI)}, {s(sHI)}, {4096 if kb < 11 else HO_STEP[i]-8192}")
            return f
        def colsum(j): return [dict(text=f"{MF} {v(CS+4*t,4)}, {a(12*j+4*t,4)}, {v(ONES,4)}, {'0' if j==0 else v(CS+4*t,4)}", vwait=[("w", j)]) for t in range(3)]
        self.poll_check(S2A)
        self.stamp()
        for i in range(10): dma(0, i)()
        JW = self.wf_next // 3
        wn = [self.wf_next]
        mf = []
        for j in range(JW): mf += colsum(j)
        for x in range(2, len(mf), OPT.get("pace0", 3)):
            if wn[0] < 60: mf[x].setdefault("post", []).append(lambda f=wn[0]: self.w13_load(f)); wn[0] += 1
        self.interleave(mf, [])
        PF = 2
        def rd(c, j, a_, h):
            q, jj = divmod(j, 5); r = HF + 8*((20*c + j) % 3) + 4*a_ + 2*h
            return lambda: k.lg(f"ds_read_b64_tr_b16 {v(r,2)}, v{vHB+2*q+a_} offset:{(c&1)*40960 + jj*2048 + 1024*h}", ("f", c, j, a_))
        for j in range(PF):
            k.wait_vm(("h", 0, j))
            for a_ in range(2):
                for h in range(2): rd(0, j, a_, h)()
        self.stamp()
        w2n = [0]
        for c in range(4):
            AC = AC0 + 24*(c & 1); mf = []; n10 = None
            DJ = (OPT.get("dj1", 8), OPT.get("dj2", 6), 4, 4)[c]
            for j in range(20):
                grp = []
                for a_ in range(2):
                    hf = v(HF + 8*((20*c + j) % 3) + 4*a_, 4)
                    if j < 5:
                        grp.append(dict(text=f"{MF} {v(SA+4*a_,4)}, {v(ONES,4)}, {hf}, {'0' if j==0 else v(SA+4*a_,4)}", wait=[("f", c, j, a_)]))
                        grp.append(dict(text=f"{MF} {v(SA+8+4*a_,4)}, {hf}, {hf}, {'0' if j==0 else v(SA+8+4*a_,4)}"))
                    for t in range(3):
                        grp.append(dict(text=f"{MF} {v(AC+12*a_+4*t,4)}, {a(12*j+4*t,4)}, {hf}, {'0' if j==0 else v(AC+12*a_+4*t,4)}", wait=[("f", c, j, a_)]))
                if c == 0 and j >= JW:
                    grp[0]["vwait"] = [("w", j)]; grp += colsum(j)
                post = lambda x, fn: grp[x].setdefault("post", []).append(fn)
                scal = lambda x, fn: grp[x].setdefault("scal", []).append(fn)
                nc, nj = (c, j+PF) if j+PF < 20 else (c+1, j+PF-20)
                if nc < 4:
                    if nj < 5: scal(0, lambda nc=nc, nj=nj: k.wait_vm(("h", nc, nj)))
                    if nj == 5:
                        scal(0, "s_barrier")
                        if c == 0: post(2, lambda: self.arrive(S2B))
                    for x, r_ in zip((0, 1, 3, 4), [rd(nc, nj, a_, h) for a_ in range(2) for h in range(2)]): post(x, r_)
                if c == 0 and j == OPT.get("pb", 18): post(2, lambda: self.poll_issue(S2B))
                if c == 2 and j == 14: post(4, self.flag_issue)
                if c == 1 and j == DJ: post(1, lambda: self.poll_check(S2B))
                if c < 3 and DJ <= j < DJ + 10: post(2, dma(c+1, j-DJ))
                if j == 6:
                    for a_ in range(2): post(2+3*a_, lambda a_=a_: k.lg(f"ds_write_b128 v{vGW}, {v(SA+8+4*a_,4)} offset:{1024*a_}", "sw"))
                if j == 7:
                    for a_ in range(2): post(2+3*a_, lambda a_=a_: k.lg(f"ds_write_b32 v{vSWR}, v{SA+4*a_} offset:{256*a_}", "sw"))
                if j == 10: scal(5, lambda: k.wait_lg("sw")); scal(5, "s_barrier"); n10 = len(mf) + 6
                if c == 0:
                    for x in (2, 5, 8)[:3 if j < 5 else 2]:
                        if wn[0] < 60: post(x, lambda f=wn[0]: self.w13_load(f)); wn[0] += 1
                    assert wn[0] >= min(60, 3*(j+3)), (wn, j)
                pos = []
                if c in (1, 2):
                    if j < DJ or j >= DJ + 10: pos = [2, 5] if j >= 5 else [2, 7]
                    elif w2n[0] < NV and j % 2: pos = [5]
                for x in pos:
                    if w2n[0] < NV + NL: post(x, w2_load(w2n[0])); w2n[0] += 1
                if c >= 2 and j == 2: post(5, lambda c=c: self.flag_set(c-1))
                if c == 3:
                    if j == 4: post(1, lambda: self.flag_check(1))
                    if 4 <= j < 10:
                        post(2, hh_load(0, 2*(j-4))); post(5, hh_load(0, 2*(j-4)+1))
                    if 10 <= j:
                        for x in (2, 5):
                            if w2n[0] < 60: post(x, w2_load(w2n[0])); w2n[0] += 1
                    if j == OPT.get("p2", 11): post(4, self.flag_issue)
                if self.fine == c: scal(0, self.fstamp)
                mf += grp
            if c == 2: assert w2n[0] == NV + NL, w2n
            fill = []
            if c > 0:
                fill += self.g1_epilogue(AC0 + 24*((c-1) & 1), 3)
                fill.append((0, lambda c=c: k(f"s_add_u32 {s(sHO)}, {s(sHO)}, {HO_STEP[c-1]}"), 3))
            cut = max(0, len(fill) - 12)
            fill = fill[:cut] + self.g1_stats(n10) + fill[cut:] + self.g1_stats2(n10 + 4)
            self.interleave(mf, fill)
            if self.fine == c: self.fstamp()
            if c == 0:
                for r in range(4): k(f"v_mov_b32 v{68+r}, v{64+r}")
                for r in range(4): k(f"v_permlane16_swap_b32 v{64+r}, v{68+r}")
            self.stamp()
        assert w2n[0] == 60
        ACC = [88, 136, 88, 136]
        mf = []
        for i in range(4):
            for kb in range(12):
                for t in range(5):
                    f = 5*kb + t
                    d = dict(text=f"{MF} {v(ACC[i]+4*t,4)}, {w2reg(f)}, {a(48*(i&1)+4*kb,4)}, {'0' if kb==0 else v(ACC[i]+4*t,4)}")
                    vw = [("hi", i, kb)] if t == 0 else []
                    if i == 0:
                        if NV <= f < NV+NL: d["wait"] = [("w2l", f)]
                        else: vw.append(("w2", f))
                    if vw: d["vwait"] = vw
                    mf.append(d)
        post = lambda x, fn: mf[x].setdefault("post", []).append(fn)
        scal = lambda x, fn: mf[x].setdefault("scal", []).append(fn)
        k.wait_vm(("w2", NV+NL-1))
        for f in range(NV, NV+NL): post(f - NV + 2, lambda f=f: k.lg(f"ds_read_b128 {w2reg(f)}, v{vW2R} offset:{1024*(f-NV)}", ("w2l", f)))
        if self.fine == 4: self.fstamp()
        self.flag_check(2)
        ep = self.g1_epilogue(AC0 + 24, 0); nh = 0
        for n, (c_, fn, _) in enumerate(ep):
            fn()
            if n % 16 == 0 and nh < 6: hh_load(1, nh)(); nh += 1
            if n == 40: self.flag_set(3)
        for kb in range(nh, 12): post(1 + 4*(kb-nh), hh_load(1, kb))
        F4 = OPT.get("f4", 55); P3 = OPT.get("p3", 70); P4 = OPT.get("p4", 150); L3 = OPT.get("l3", 45); L4 = OPT.get("l4", 50)
        fill = []
        post(F4, lambda: self.flag_set(4))
        post(P3 - L3, self.flag_issue); post(P3, lambda: self.flag_check(3))
        for kb in range(12): post(P3 + 1 + 2*kb, hh_load(2, kb))
        for i in range(5): post(30 + 3*i, res_dma(i))
        post(P4 - L4, self.flag_issue); post(P4, lambda: self.flag_check(4))
        for kb in range(12): post(P4 + 1 + kb, hh_load(3, kb))
        if self.prof:
            for x in (59, 119, 179): scal(x, self.stamp)
        if self.fine == 4:
            for x in list(range(0, 240, 12)) + [239]: scal(x, self.fstamp)
        scal(59, "s_barrier")
        for i in range(3):
            for t in range(5):
                post(60*(i+1) + 26 + 2*t, lambda i=i, t=t: k.lg(f"ds_write_b128 v{vRW if i<2 else vRW2}, {v(ACC[i]+4*t,4)} offset:{(i%2)*20480 + 1024*t}", "red"))
        R = 10
        for t in range(5): post(200 + 2*t, lambda t=t: k.lg(f"ds_read_b64_tr_b16 {v(R+2*t,2)}, v{vRA} offset:{1024*t}", "red"))
        self.interleave(mf, fill)
        for t in range(5): k(f"ds_write_b128 v{vRW2}, {v(ACC[3]+4*t,4)} offset:{20480 + 1024*t}")
        self.stamp()
        k.wait_lg0(); k("s_barrier")
        AC = 56
        for t in range(5):
            for w_ in range(4): k.lg(f"ds_read_b128 {v(AC+16*t+4*w_,4)}, v{vRR} offset:{5120*w_ + 1024*t}", t)
        O = 20
        for t in range(5):
            k.wait_lg(t); B = AC + 16*t
            for r in range(4): k(f"v_add_f32 v{B+r}, v{B+r}, v{B+4+r}"); k(f"v_add_f32 v{B+8+r}, v{B+8+r}, v{B+12+r}")
            for h in range(2): k(f"v_lshlrev_b32 v{B+4+2*h}, 16, v{R+2*t+h}"); k(f"v_and_b32 v{B+5+2*h}, 0xffff0000, v{R+2*t+h}")
            for r in range(4): k(f"v_add_f32 v{B+r}, v{B+r}, v{B+8+r}")
            for r in range(4): k(f"v_add_f32 v{B+r}, v{B+r}, v{B+4+r}")
            k(f"v_cvt_pk_bf16_f32 v{O+2*t}, v{B}, v{B+1}"); k(f"v_cvt_pk_bf16_f32 v{O+2*t+1}, v{B+2}, v{B+3}")
            if t in (1, 3):
                b = O + 2*(t-1)
                k(f"v_permlane16_swap_b32 v{b}, v{b+2}"); k(f"v_permlane16_swap_b32 v{b+1}, v{b+3}")
                k(f"buffer_store_dwordx4 {v(b,4)}, v{vOP}, {s(rOUT,4)}, {s(sOO)} offen offset:{32*(t-1)}")
        k(f"buffer_store_dwordx2 {v(O+8,2)}, v{vO4}, {s(rOUT,4)}, {s(sOO)} offen")

    def finish(self):
        k = self.k
        if self.prof:
            self.stamp()
            k("s_memtime s[100:101]"); k.wait_lg0(); k(f"s_sub_u32 {s(sSTAMP+self.nst)}, s100, s98"); self.nst += 1
            assert self.nst <= 22
            L = k.newlabel("pf")
            k(f"s_cmp_lg_u32 {s(sW)}, 0"); k(f"s_cbranch_scc1 {L}")
            k(f"s_lshl_b32 {s(sT)}, {s(sID)}, 7"); k(f"s_add_u32 {s(sT)}, {s(sT)}, {WS_PROF}")
            k("s_mov_b64 exec, 1")
            for i in range(self.nst):
                k(f"v_mov_b32 v2, {4*i}"); k(f"v_mov_b32 v3, {s(sSTAMP+i)}")
                k(f"buffer_store_dword v3, v2, {s(rWS,4)}, {s(sT)} offen")
            k("s_mov_b64 exec, -1")
            k.label(L)
        if self.fine >= 0:
            pool = list(range(24, 44, 2)) + list(range(76, 100, 2))
            k("s_waitcnt lgkmcnt(0)")
            k(f"s_lshl_b32 {s(sT)}, {s(sID)}, 2"); k(f"s_add_u32 {s(sT)}, {s(sT)}, {s(sW)}"); k(f"s_lshl_b32 {s(sT)}, {s(sT)}, 7"); k(f"s_add_u32 {s(sT)}, {s(sT)}, {WS_FINE}")
            for i in range(self.nf):
                k(f"v_mov_b32 v2, {4*i}"); k(f"v_mov_b32 v3, {s(pool[i])}")
                k(f"buffer_store_dword v3, v2, {s(rWS,4)}, {s(sT)} offen")
        if self.prof and os.environ.get("SPIN"):
            b_, i_, m_ = [int(x) for x in os.environ["SPIN"].split(",")]
            k(f"s_sub_u32 {s(sT+1)}, {s(sSTAMP+i_)}, {s(sSTAMP)}"); k(f"s_mul_i32 {s(sT+1)}, {s(sT+1)}, {m_}"); k(f"s_add_u32 {s(sT+1)}, {s(sT+1)}, {b_}")
            k("L_SPIN:"); k("s_memrealtime s[100:101]"); k("s_waitcnt lgkmcnt(0)"); k(f"s_sub_u32 {s(sT)}, s100, {s(sSTAMP)}")
            k(f"s_cmp_lt_u32 {s(sT)}, {s(sT+1)}"); k("s_cbranch_scc1 L_SPIN")
        k("s_endpgm")
        self.emit_slow()
        k.label("L_END"); k("s_endpgm")

    def build(self):
        self.prologue()
        self.phase0()
        if self.stop >= 1: self.phase1()
        if self.stop >= 2: self.phase23()
        self.finish()
        self.k.pad()
        hdr = open(os.path.join(os.path.dirname(os.path.abspath(__file__)), "header.txt")).read()
        return (hdr + f"; @launch grid=(256,1,1) block=(256,1,1) lds={LDS_BYTES}\n"
            + '.amdgcn_target "amdgcn-amd-amdhsa--gfx950"\n.text\n'
            + f".globl {KNAME}\n.p2align 8\n.type {KNAME},@function\n{KNAME}:\n" + self.k.text()
            + f""".section .rodata,"a"
.p2align 6
.amdhsa_kernel {KNAME}
  .amdhsa_next_free_vgpr 512
  .amdhsa_next_free_sgpr 102
  .amdhsa_accum_offset 256
  .amdhsa_group_segment_fixed_size 0
  .amdhsa_kernarg_size 104
  .amdhsa_user_sgpr_count 2
  .amdhsa_user_sgpr_kernarg_segment_ptr 1
  .amdhsa_system_sgpr_workgroup_id_x 1
  .amdhsa_float_denorm_mode_32 3
.end_amdhsa_kernel
""")

if __name__ == "__main__":
    import argparse
    ap = argparse.ArgumentParser(); ap.add_argument("-o", default="k.s"); ap.add_argument("--stop", type=int, default=99); ap.add_argument("--prof", action="store_true")
    A = ap.parse_args()
    open(A.o, "w").write(Gen(A.stop, A.prof).build())
```

```python
import sys, os
sys.path.insert(0, os.path.dirname(os.path.abspath(__file__)))
from asmlib import *

KNAME = "sequential_preLN__ssm_conv_h3__glu_gated_swiglu__prompt_kernel"
OPT = dict(late=0, ssm=2, nt0="nt", nt1="nt", wrate=4, presleep=0, st0="", st1="", norp=0)
for kv_ in os.environ.get("OPT", "").split(","):
    if "=" in kv_:
        a_, b_ = kv_.split("="); OPT[a_] = int(b_) if b_.lstrip("-").isdigit() else b_
WS_SYNC = 0x0
WS_F3   = 0x80000
WS_PROF = 0x30000
WS_STAT = 0x40000
WS_FINE = 0x1800000
WS_KVT  = 0x100000
WS_XT   = 0x400000
WS_W13  = 0x800000
WS_W2   = 0xC00000
WS_HC   = 0xE00000
WS_HH   = 0x1100000
WS_SIZE = 0x2000000
NSH = 16
BST = 10240 + OPT.get('bpad', 128)
CST = 40960 + OPT.get('cpad', 128)
S1, SW, S2A, S2B = 0, 1, 2, 3
L_TOEP = 0; CSTR = 4160
L_U = 49920; L_UD = L_U + 1440
L_XI = L_U + 13728
L_ST = 75968
L_PART = 92416
L_P0 = L_PART; L_P0X = L_P0; L_P0K = L_P0 + 10240; L_P0V = L_P0 + 30720
L_RP = 133376
L_GR = 81920; L_SM = L_GR + 8192
L_W2 = 92160
LDS_BYTES = 163840
sID, sW = 2, 3
sDBG, sDP = 4, 6
rK, rV, rX, rWS, rSS, rSH, rW1, rW3, rW2, rOUT = 8, 12, 16, 20, 24, 28, 32, 36, 40, 44
sXG, sM, sSB, sC0, sE, sR, sC = 48, 49, 50, 51, 52, 53, 54
sT = 56
sX = 64
sDV = 70
sCNT = 73
sGK, sGX, sGL, sSTL, sSTS, sHF, sHH, sW13, sHS, sHL, sHO, sW2 = 8, 9, 10, 11, 12, 13, 14, 15, 16, 17, 18, 19
sHI, sOO, sRS, sW2L = 68, 69, 74, 75
sKS, sXS = 55, 63
sSTAMP = 76
vL16, vARR, vPOL, vONE, vPV = 4, 5, 6, 7, 8
vGO = 9
vAF, vBF, vAH, vBH = 12, 13, 14, 15
vXF, vSF, vGF = 16, 17, 18
vPH, vXH, vSH, vGH = 19, 20, 21, 22
vPW, vPR, vPWH = 23, 24, 25
vHB = 26
vSP, vSMX, vGW, vSWR, vGR, vSR = 34, 35, 36, 37, 38, 39
vFW, vFR = 40, 41
vRA, vOP, vO4 = 42, 43, 48
ONES = 44
vRW, vRW2, vRR, vW2R = 49, 50, 51, 52
vT16 = 53
vRL, vRA4, vRA2 = 240, 244, 248
sRP, sRP2, sRD, sRD2 = 0, 1, 28, 6
TIMER = "s_memtime" if os.environ.get("CYC") else "s_memrealtime"
MF = "v_mfma_f32_16x16x32_bf16"

class Gen:
    def __init__(self, stop=99, prof=False, dbgsel=None):
        self.dbgsel = dbgsel
        self.k = Asm(); self.stop = stop; self.prof = prof; self.nst = 0; self.slow = []; self.nf = 0; self.fine = int(os.environ.get('FINE', -1))
    def stamp(self):
        if self.prof:
            k = self.k
            k(f"{TIMER} s[100:101]"); k.wait_lg0(); k(f"s_mov_b32 {s(sSTAMP + self.nst)}, s100"); self.nst += 1
    def f7(self):
        if self.fine == 7: self.fstamp()
    def fstamp(self):
        pool = list(range(76, 100, 2)) + list(range(24, 44, 2))
        self.k(f"s_memtime {s(pool[self.nf], 2)}"); self.nf += 1
    def arrive(self, idx):
        self.k.vm(f"buffer_atomic_add v{vONE}, v{vARR}, {s(rWS,4)}, 0 offen offset:{256*idx} sc1", "arr")
    def poll_issue(self, idx):
        self.k.vm(f"buffer_load_dword v{vPV}, v{vPOL}, {s(rWS,4)}, 0 offen offset:{256*idx} sc1", "poll")
    def check(self, load, cmp):
        k = self.k; S = k.newlabel("slow"); B = k.newlabel("back")
        k.wait_vm("poll"); k(cmp); k(f"s_cbranch_vccnz {S}"); k.label(B)
        self.slow.append((S, B, load, cmp))
    def poll_check(self, idx):
        self.check(f"buffer_load_dword v{vPV}, v{vPOL}, {s(rWS,4)}, 0 offen offset:{256*idx} sc1", f"v_cmp_ne_u32 vcc, {256//NSH}, v{vPV}")
    def flag_issue(self): self.k.vm(f"buffer_load_dword v{vPV}, v{vFR}, {s(rWS,4)}, 0 offen sc1", "poll")
    def flag_check(self, n): self.check(f"buffer_load_dword v{vPV}, v{vFR}, {s(rWS,4)}, 0 offen sc1", f"v_cmp_gt_u32 vcc, {n}, v{vPV}")
    def emit_slow(self):
        k = self.k
        for S, B, load, cmp in self.slow:
            Lp = k.newlabel("sp")
            k.label(S); k(f"s_mov_b32 {s(sCNT)}, 0x40000"); k.label(Lp)
            k(load); k("s_waitcnt vmcnt(0)"); k(cmp); k(f"s_cbranch_vccz {B}")
            k("s_sleep 1"); k(f"s_sub_u32 {s(sCNT)}, {s(sCNT)}, 1"); k(f"s_cmp_lg_u32 {s(sCNT)}, 0"); k(f"s_cbranch_scc1 {Lp}")
            k(f"s_branch {B}")

    def prologue(self):
        k = self.k; sP = 8; sN = 10
        if self.prof: k(f"{TIMER} {s(sSTAMP,2)}"); k("s_memtime s[98:99]"); self.nst = 1
        self.f7()
        k(f"s_cmpk_ge_u32 {s(sID)}, 0x100"); k("s_cbranch_scc1 L_END")
        k(f"v_readfirstlane_b32 {s(sW)}, v0"); k(f"s_getpc_b64 {s(sT+2,2)}"); k.label("L_PC")
        k(f"s_lshr_b32 {s(sM)}, {s(sID)}, 3"); k(f"s_lshr_b32 {s(sT)}, {s(sW)}, 3")
        k(f"s_load_dwordx2 {s(sP,2)}, s[0:1], {s(sT)}"); k("s_load_dwordx4 s[12:15], s[0:1], 88")
        k(f"s_lshl_b32 {s(sT+1)}, {s(sM)}, 8"); k(f"v_add_lshl_u32 v2, v0, {s(sT+1)}, 3"); k("v_min_u32 v2, L_LAST-L_PC, v2")
        k(f"global_load_dword v254, v2, {s(sT+2,2)}")
        k(f"s_lshr_b32 {s(sW)}, {s(sW)}, 6"); k(f"s_and_b32 {s(sXG)}, {s(sID)}, 7")
        k("v_and_b32 v1, 63, v0"); k(f"s_lshl_b32 {s(sSB)}, {s(sXG)}, 5"); k(f"s_add_u32 {s(sSB)}, {s(sSB)}, {s(sM)}")
        k(f"v_lshlrev_b32 v{vL16}, 4, v1"); k("v_lshrrev_b32 v3, 3, v1")
        k(f"s_cmp_eq_u32 {s(sW)}, 3"); k("s_cbranch_scc1 L_W3")
        k("v_and_b32 v2, 6, v3")
        k(f"s_mov_b32 {s(sT)}, {0xEAA554 << 6}"); k(f"s_movk_i32 {s(sT+1)}, 0xc0"); k(f"v_lshrrev_b32_e64 v2, v2, {s(sT)}")
        k(f"v_bitop3_b32 v64, v2, {s(sT+1)}, v{vL16} bitop3:0x6a"); k("v_lshrrev_b32 v2, 8, v2")
        k(f"v_bitop3_b32 v65, v2, {s(sT+1)}, v{vL16} bitop3:0x6a"); k("v_lshrrev_b32 v2, 8, v2")
        k(f"v_bitop3_b32 v66, v2, {s(sT+1)}, v{vL16} bitop3:0x6a"); k(f"v_xor_b32 v67, 0x10c0, v{vL16}")
        k(f"s_min_u32 {s(sN)}, {s(sSB)}, 1"); k(f"s_and_b32 {s(sN)}, {s(sN)}, {s(sW)}")
        k(f"s_lshl_b32 {s(sT)}, {s(sSB)}, 1"); k(f"s_sub_u32 {s(sT)}, {s(sT)}, {s(sN)}")
        k(f"s_mul_i32 {s(sT+1)}, {s(sW)}, 3"); k(f"s_sub_u32 {s(sT+1)}, {s(sT+1)}, {s(sN)}")
        k(f"s_mulk_i32 {s(sT)}, 5120"); k(f"s_mulk_i32 {s(sT+1)}, 5120"); k(f"s_add_u32 m0, {s(sT+1)}, {L_P0}")
        k("s_waitcnt lgkmcnt(0)")
        k(f"s_add_u32 {s(sP)}, {s(sP)}, {s(sT)}"); k(f"s_addc_u32 {s(sP+1)}, {s(sP+1)}, 0")
        NT = OPT["nt0"]
        k.label("L_LD")
        k(f"global_load_lds_dwordx4 v{vL16}, {s(sP,2)} {NT}")
        for p in range(3): k(f"global_load_lds_dwordx4 v{64+p}, {s(sP,2)} offset:{1024*(p+1)} {NT}")
        k("s_addk_i32 m0, 0x1000"); k(f"s_addk_i32 {s(sN)}, -1")
        k(f"global_load_lds_dwordx4 v67, {s(sP,2)} {NT}")
        k("s_addk_i32 m0, 0x400"); k(f"s_add_u32 {s(sP)}, {s(sP)}, 5120"); k(f"s_addc_u32 {s(sP+1)}, {s(sP+1)}, 0")
        k(f"s_cmp_gt_i32 {s(sN)}, -2"); k("s_cbranch_scc1 L_LD")
        k("s_branch L_COMMON")
        k.label("L_W3")
        k(f"s_mov_b32 m0, {L_P0 + 25600}"); k(f"s_cmp_lg_u32 {s(sM)}, 0"); k("s_waitcnt lgkmcnt(0)"); k("s_cbranch_scc1 L_W3B")
        for i in range(4): k(f"v_mov_b32 v{204+i}, 0")
        k("v_lshlrev_b32 v3, 10, v3"); k(f"v_and_b32 v2, 0x70, v{vL16}"); k(f"s_lshl_b32 {s(sT+2)}, {s(sXG)}, 14"); k(f"v_add3_u32 v2, v2, v3, {s(sT+2)}"); k("v_add_u32 v3, 0x2000, v2")
        k("global_store_dwordx4 v2, v[204:207], s[14:15] sc1"); k("global_store_dwordx4 v3, v[204:207], s[14:15] sc1")
        k.label("L_W3B")
        for p in range(4): k(f"global_load_lds_dwordx4 v{vL16}, {s(sP,2)} offset:{1024*p}")
        k("s_addk_i32 m0, 0x1000"); k(f"v_add_u32 v2, 0x1000, v{vL16}"); k(f"global_load_lds_dwordx4 v2, {s(sP,2)}")
        k.label("L_COMMON")
        self.f7()
        for r, off in ((rSS, 32), (sDP, 40), (rW1, 56), (rW3, 64), (rW2, 72), (rOUT, 80)):
            k(f"s_load_dwordx2 {s(r,2)}, s[0:1], {off}")
        k(f"s_mov_b64 {s(sDBG,2)}, s[12:13]"); k(f"s_mov_b64 {s(rWS,2)}, s[14:15]")
        for r, n in ((rWS, WS_SIZE), (rSS, 2621440), (rW1, 1966080), (rW3, 1966080), (rW2, 1966080), (rOUT, 2621440)):
            k(f"s_mov_b32 {s(r+2)}, {n}"); k(f"s_mov_b32 {s(r+3)}, 0x20000")

    def roles(self):
        k = self.k
        k(f"s_and_b32 {s(sE)}, {s(sM)}, 1"); k(f"s_lshr_b32 {s(sT)}, {s(sM)}, 1"); k(f"s_mul_i32 {s(sT)}, {s(sT)}, 5")
        k(f"s_mul_i32 {s(sC0)}, {s(sXG)}, 80"); k(f"s_add_u32 {s(sC0)}, {s(sC0)}, {s(sT)}")
        k(f"s_lshl_b32 {s(sT)}, {s(sE)}, 1"); k(f"s_add_u32 {s(sC0)}, {s(sC0)}, {s(sT)}")
        k(f"s_lshr_b32 {s(sR)}, {s(sXG)}, 2"); k(f"s_lshl_b32 {s(sR)}, {s(sR)}, 3"); k(f"s_lshr_b32 {s(sT)}, {s(sM)}, 2"); k(f"s_add_u32 {s(sR)}, {s(sR)}, {s(sT)}")
        k(f"s_and_b32 {s(sC)}, {s(sXG)}, 3"); k(f"s_lshl_b32 {s(sC)}, {s(sC)}, 2"); k(f"s_and_b32 {s(sT)}, {s(sM)}, 3"); k(f"s_add_u32 {s(sC)}, {s(sC)}, {s(sT)}")

    def consts(self):
        k = self.k; t0, t1, t2, t3 = 56, 57, 58, 59; vN, vG, vG1 = 60, 61, 62
        S = lambda i: s(sT+i)
        k(f"v_lshlrev_b32 v{vL16}, 4, v1"); k(f"v_mov_b32 v{vONE}, 1")
        k(f"s_and_b32 {S(0)}, {s(sM)}, {NSH-1}"); k(f"s_lshl_b32 {S(0)}, {S(0)}, 10"); k(f"v_lshlrev_b32 v{t0}, 14, v0"); k(f"v_add_u32 v{t0}, {S(0)}, v{t0}"); k(f"v_mov_b32 v{t1}, 0x7ffff000")
        k(f"v_cmp_gt_u32 vcc, 8, v0"); k(f"v_cndmask_b32 v{vARR}, v{t1}, v{t0}, vcc")
        k(f"v_and_b32 v{vN}, 15, v1"); k(f"v_lshrrev_b32 v{vG}, 4, v1"); k(f"v_and_b32 v{vG1}, 1, v{vG}")
        k(f"v_lshlrev_b32 v{vPOL}, 10, v{vN}"); k(f"s_lshl_b32 {S(0)}, {s(sXG)}, 14"); k(f"v_add_u32 v{vPOL}, {S(0)}, v{vPOL}")
        for i in range(3):
            k(f"v_add_u32 v{t0}, {64*i}, v1"); k(f"v_mul_u32_u24 v{t1}, 21846, v{t0}"); k(f"v_lshrrev_b32 v{t1}, 16, v{t1}")
            k(f"v_mul_u32_u24 v{t1}, {BST-48}, v{t1}"); k(f"v_lshl_add_u32 v{vGO+i}, v{t0}, 4, v{t1}")
        k(f"s_mul_i32 {S(0)}, {s(sW)}, {64*BST}"); k(f"s_lshl_b32 {S(1)}, {s(sC0)}, 4"); k(f"s_add_u32 {S(0)}, {S(0)}, {S(1)}")
        k(f"s_add_u32 {s(sGX)}, {S(0)}, {WS_XT}"); k(f"s_add_u32 {s(sGK)}, {S(0)}, {WS_KVT}")
        k(f"s_mul_i32 {s(sGL)}, {s(sW)}, 3072"); k(f"s_lshl_b32 {s(sSTL)}, {s(sW)}, 12"); k(f"s_add_u32 {s(sSTL)}, {s(sSTL)}, {L_ST}")
        k(f"s_lshl_b32 {s(sSTS)}, {s(sW)}, 12"); k(f"s_add_u32 {s(sSTS)}, {s(sSTS)}, {WS_STAT}")
        k(f"v_lshl_add_u32 v{t2}, v{vN}, 1, v{vG}"); k(f"v_mul_u32_u24 v{t2}, 48, v{t2}")
        k(f"v_sub_u32 v{t3}, 15, v{vN}"); k(f"v_lshl_add_u32 v{t3}, v{vG}, 3, v{t3}")
        k(f"v_and_b32 v{t0}, 3, v{t3}"); k(f"v_mul_u32_u24 v{t0}, {CSTR}, v{t0}"); k(f"v_and_b32 v{t3}, 0xfc, v{t3}"); k(f"v_lshl_add_u32 v{t3}, v{t3}, 1, v{t0}")
        sCF, sCH = S(4), S(5)
        k(f"s_lshr_b32 {sCF}, {s(sW)}, 1"); k(f"s_add_u32 {sCF}, {sCF}, {s(sE)}"); k(f"s_lshl_b32 {sCH}, {s(sE)}, 1"); k(f"s_sub_u32 {sCH}, 2, {sCH}")
        for ch, vA, vB, full in ((sCF, vAF, vBF, True), (sCH, vAH, vBH, False)):
            if full: k(f"s_and_b32 {S(0)}, {s(sW)}, 1"); k(f"s_lshl_b32 {S(0)}, {S(0)}, 2"); k(f"s_sub_u32 {S(0)}, 4, {S(0)}")
            else: k(f"s_lshl_b32 {S(0)}, {s(sW)}, 1"); k(f"s_sub_u32 {S(0)}, 6, {S(0)}")
            k(f"s_mul_i32 {S(1)}, {ch}, {4*CSTR}"); k(f"s_lshl_b32 {S(2)}, {S(0)}, 6"); k(f"s_add_u32 {S(1)}, {S(1)}, {S(2)}"); k(f"v_add_u32 v{vA}, {S(1)}, v{t3}")
            k(f"s_lshl_b32 {S(1)}, {ch}, 4"); k(f"s_mul_i32 {S(2)}, {S(0)}, 192"); k(f"s_add_u32 {S(1)}, {S(1)}, {S(2)}"); k(f"s_add_u32 {S(1)}, {S(1)}, {L_U}"); k(f"v_add_u32 v{vB}, {S(1)}, v{t2}")
        k(f"v_lshlrev_b32 v{t0}, 5, v{vG1}"); k(f"v_lshl_add_u32 v{t0}, v{vN}, 1, v{t0}"); k(f"v_lshrrev_b32 v{t1}, 1, v{vG}"); k(f"v_add_u32 v{t0}, v{t0}, v{t1}")
        k(f"s_and_b32 {S(0)}, {s(sW)}, 1"); k(f"s_lshl_b32 {S(0)}, {S(0)}, 6"); k(f"v_add_u32 v{t0}, {S(0)}, v{t0}")
        k(f"s_lshl_b32 {S(0)}, {sCF}, 4"); k(f"s_add_u32 {S(0)}, {S(0)}, {L_XI}"); k(f"v_mul_u32_u24 v{t1}, 48, v{t0}"); k(f"v_add_u32 v{vXF}, {S(0)}, v{t1}")
        k(f"v_xor_b32 v{t1}, v{t0}, v{vG1}"); k(f"v_lshlrev_b32 v{t1}, 6, v{t1}"); k(f"v_bfe_u32 v{vSF}, v{t0}, 2, 2"); k(f"v_lshl_add_u32 v{t1}, v{vSF}, 4, v{t1}"); k(f"v_add_u32 v{vSF}, {L_ST}, v{t1}")
        k(f"s_add_u32 {S(0)}, {s(sC0)}, {sCF}"); k(f"s_lshr_b32 {S(1)}, {S(0)}, 1"); k(f"s_and_b32 {S(1)}, {S(1)}, 2")
        k(f"s_lshl_b32 {s(sHF)}, {S(0)}, 6"); k(f"s_add_u32 {s(sHF)}, {s(sHF)}, {WS_HC}")
        k(f"v_lshrrev_b32 v{t1}, 2, v{t0}"); k(f"v_mul_u32_u24 v{t1}, {CST}, v{t1}"); k(f"v_and_b32 v{t0}, 3, v{t0}"); k(f"v_xor_b32 v{t0}, {S(1)}, v{t0}"); k(f"v_lshl_add_u32 v{vGF}, v{t0}, 4, v{t1}")
        k(f"v_and_b32 v{t0}, 127, v0"); k(f"v_lshrrev_b32 v{t1}, 3, v{t0}"); k(f"v_bfe_u32 v{t2}, v{t0}, 1, 2")
        k(f"v_lshl_add_u32 v{t1}, v{t2}, 2, v{t1}"); k(f"v_and_b32 v{t1}, 15, v{t1}"); k(f"v_lshl_add_u32 v{t1}, v{t2}, 4, v{t1}"); k(f"v_lshlrev_b32 v{t1}, 4, v{t1}")
        k(f"v_and_b32 v{t2}, 1, v{t0}"); k(f"v_lshl_add_u32 v{t1}, v{t2}, 3, v{t1}")
        k(f"s_lshr_b32 {S(0)}, {s(sW)}, 1"); k(f"s_lshl_b32 {S(1)}, {S(0)}, 10"); k(f"s_add_u32 {S(1)}, {S(1)}, {L_PART + 8192}"); k(f"v_add_u32 v{vPH}, {S(1)}, v{t1}")
        k(f"s_mul_i32 {S(1)}, {S(0)}, 3"); k(f"s_add_u32 {S(0)}, {S(0)}, 1"); k(f"s_cmp_eq_u32 {s(sE)}, 0"); k(f"s_cselect_b32 {S(0)}, {S(1)}, {S(0)}")
        k(f"s_and_b32 {S(2)}, {S(0)}, 1"); k(f"s_lshl_b32 {S(0)}, {S(0)}, 5")
        k(f"v_lshrrev_b32 v{t1}, 2, v{t0}"); k(f"v_add_u32 v{t1}, {S(0)}, v{t1}")
        k(f"v_and_b32 v{t3}, 3, v{t0}")
        k(f"s_lshl_b32 {S(0)}, {sCH}, 4"); k(f"s_add_u32 {S(0)}, {S(0)}, {L_XI}"); k(f"v_mul_u32_u24 v{vXH}, 48, v{t1}"); k(f"v_lshl_add_u32 v{vXH}, v{t3}, 2, v{vXH}"); k(f"v_add_u32 v{vXH}, {S(0)}, v{vXH}")
        k(f"v_xor_b32 v{vSH}, {S(2)}, v{t1}"); k(f"v_lshlrev_b32 v{vSH}, 6, v{vSH}"); k(f"v_lshl_add_u32 v{vSH}, v{t2}, 3, v{vSH}")
        k(f"v_bfe_u32 v{t0}, v{t0}, 1, 1"); k(f"v_bfe_u32 v{t2}, v{t1}, 2, 2"); k(f"v_xor_b32 v{t0}, v{t0}, v{t2}"); k(f"v_lshl_add_u32 v{vSH}, v{t0}, 4, v{vSH}"); k(f"v_add_u32 v{vSH}, {L_ST}, v{vSH}")
        k(f"s_add_u32 {S(0)}, {s(sC0)}, {sCH}"); k(f"s_lshr_b32 {S(1)}, {S(0)}, 1"); k(f"s_and_b32 {S(1)}, {S(1)}, 2")
        k(f"s_lshl_b32 {s(sHH)}, {S(0)}, 6"); k(f"s_add_u32 {s(sHH)}, {s(sHH)}, {WS_HC}")
        k(f"v_lshrrev_b32 v{t0}, 2, v{t1}"); k(f"v_mul_u32_u24 v{t0}, {CST}, v{t0}"); k(f"v_lshl_add_u32 v{t0}, v{t3}, 2, v{t0}"); k(f"v_and_b32 v{t1}, 3, v{t1}"); k(f"v_xor_b32 v{t1}, {S(1)}, v{t1}"); k(f"v_lshl_add_u32 v{vGH}, v{t1}, 4, v{t0}")
        k(f"s_lshl_b32 {S(0)}, {s(sW)}, 11"); k(f"s_add_u32 {S(1)}, {S(0)}, {L_PART}"); k(f"v_add_u32 v{vPW}, {S(1)}, v{vL16}")
        k(f"v_lshl_add_u32 v{t0}, v{vG}, 2, v{vN}"); k(f"v_and_b32 v{t0}, 15, v{t0}"); k(f"v_lshl_add_u32 v{t0}, v{vG}, 4, v{t0}"); k(f"v_lshlrev_b32 v{t0}, 4, v{t0}"); k(f"v_add_u32 v{vPWH}, {S(1)}, v{t0}")
        k(f"s_xor_b32 {S(0)}, {S(0)}, 2048"); k(f"s_add_u32 {S(1)}, {S(0)}, {L_PART}"); k(f"v_add_u32 v{vPR}, {S(1)}, v{vL16}")
        k(f"s_lshl_b32 {S(6)}, {s(sC)}, 2"); k(f"s_add_u32 {S(6)}, {S(6)}, {s(sW)}")
        k(f"s_mul_i32 {s(sW13)}, {S(6)}, {20*3072}"); k(f"s_add_u32 {s(sW13)}, {s(sW13)}, {WS_W13}")
        k(f"v_lshrrev_b32 v{t0}, 2, v1"); k(f"v_lshlrev_b32 v{t0}, 6, v{t0}"); k(f"v_and_b32 v{t1}, 3, v1"); k(f"v_lshl_add_u32 v{t0}, v{t1}, 3, v{t0}")
        k(f"v_lshl_add_u32 v{t2}, v{vG1}, 5, v{t0}")
        for q in range(4):
            k(f"s_add_u32 {S(1)}, {s(sW)}, {q}"); k(f"s_and_b32 {S(1)}, {S(1)}, 3"); k(f"s_mul_i32 {S(1)}, {S(1)}, 10240")
            k(f"v_add_u32 v{vHB+2*q}, {S(1)}, v{t2}"); k(f"v_xor_b32 v{vHB+2*q+1}, 32, v{vHB+2*q}")
        k(f"v_mul_u32_u24 v{t2}, 49152, v{vG1}"); k(f"v_lshl_add_u32 v{t2}, v{vN}, 4, v{t2}"); k(f"v_lshrrev_b32 v{t3}, 1, v{vG}")
        k(f"v_lshl_add_u32 v{vSP}, v{t3}, 8, v{t2}"); k(f"v_lshl_add_u32 v{vSMX}, v{t3}, 3, v{t2}")
        k(f"s_and_b32 {S(1)}, {S(6)}, 15"); k(f"s_lshl_b32 {S(2)}, {S(1)}, 9"); k(f"v_add_u32 v{vSP}, {S(2)}, v{vSP}"); k(f"s_lshl_b32 {S(2)}, {S(1)}, 8"); k(f"s_add_u32 {S(2)}, {S(2)}, 8192"); k(f"v_add_u32 v{vSMX}, {S(2)}, v{vSMX}")
        k(f"s_lshl_b32 {S(1)}, {s(sW)}, 11"); k(f"s_add_u32 {S(1)}, {S(1)}, {L_GR}"); k(f"v_add_u32 v{vGW}, {S(1)}, v{vL16}")
        k(f"s_lshl_b32 {S(1)}, {s(sW)}, 9"); k(f"s_add_u32 {S(1)}, {S(1)}, {L_SM}"); k(f"v_lshlrev_b32 v{vSWR}, 2, v1"); k(f"v_add_u32 v{vSWR}, {S(1)}, v{vSWR}")
        k(f"v_lshrrev_b32 v{t2}, 2, v{vN}"); k(f"v_lshl_add_u32 v{t2}, v{t2}, 4, v{vN}"); k(f"v_lshlrev_b32 v{t2}, 4, v{t2}"); k(f"v_lshl_add_u32 v{t2}, v{t1}, 2, v{t2}")
        k(f"v_lshl_add_u32 v{t2}, v{vG1}, 10, v{t2}"); k(f"v_add_u32 v{vGR}, {L_GR}, v{t2}")
        k(f"v_lshlrev_b32 v{t2}, 2, v{vN}"); k(f"v_lshl_add_u32 v{t2}, v{vG1}, 8, v{t2}"); k(f"v_add_u32 v{vSR}, {L_SM}, v{t2}")
        for i in range(4): k(f"v_mov_b32 v{ONES+i}, 0x3f803f80")
        k(f"s_mul_i32 {s(sHS)}, {s(sR)}, {2*CST}"); k(f"s_mul_i32 {s(sHL)}, {s(sW)}, 10240"); k(f"s_add_u32 {s(sHS)}, {s(sHS)}, {s(sHL)}"); k(f"s_add_u32 {s(sHS)}, {s(sHS)}, {WS_HC}")
        k(f"s_mul_i32 {s(sHO)}, {s(sR)}, {2*98304}"); k(f"s_lshr_b32 {S(1)}, {s(sC)}, 2"); k(f"s_mul_i32 {S(1)}, {S(1)}, 12288"); k(f"s_add_u32 {s(sHO)}, {s(sHO)}, {S(1)}"); k(f"s_add_u32 {s(sHO)}, {s(sHO)}, {WS_HH}")
        k(f"s_lshl_b32 {S(0)}, {s(sR)}, 6"); k(f"s_add_u32 {S(1)}, {S(0)}, {S(6)}"); k(f"s_lshl_b32 {S(1)}, {S(1)}, 9"); k(f"s_add_u32 {S(1)}, {S(1)}, {WS_F3}")
        k(f"v_lshlrev_b32 v{vFW}, 7, v{t1}"); k(f"v_add_u32 v{vFW}, {S(1)}, v{vFW}")
        k(f"s_lshl_b32 {S(2)}, {s(sW)}, 4"); k(f"s_add_u32 {S(0)}, {S(0)}, {S(2)}"); k(f"s_lshl_b32 {S(0)}, {S(0)}, 9"); k(f"s_lshr_b32 {S(2)}, {s(sC)}, 2"); k(f"s_lshl_b32 {S(2)}, {S(2)}, 7")
        k(f"s_add_u32 {S(0)}, {S(0)}, {S(2)}"); k(f"s_add_u32 {S(0)}, {S(0)}, {WS_F3}"); k(f"v_lshlrev_b32 v{vFR}, 9, v{vN}"); k(f"v_add_u32 v{vFR}, {S(0)}, v{vFR}")
        sDT, sHf, sCK = S(3), S(4), S(5)
        k(f"s_and_b32 {sDT}, {s(sC)}, 7"); k(f"s_lshr_b32 {sHf}, {s(sC)}, 3")
        k(f"s_lshl_b32 {sCK}, {s(sR)}, 1"); k(f"s_and_b32 {S(1)}, {s(sW)}, 1"); k(f"s_add_u32 {sCK}, {sCK}, {S(1)}")
        k(f"s_lshr_b32 {S(1)}, {s(sW)}, 1"); k(f"s_lshl_b32 {S(1)}, {S(1)}, 5"); k(f"s_add_u32 {sCK}, {sCK}, {S(1)}")
        k(f"s_mul_i32 {S(1)}, {sDT}, 48"); k(f"s_mul_i32 {S(2)}, {s(sW)}, 12"); k(f"s_add_u32 {S(1)}, {S(1)}, {S(2)}"); k(f"s_mul_i32 {s(sW2)}, {S(1)}, 5120"); k(f"s_add_u32 {s(sW2)}, {s(sW2)}, {WS_W2}")
        k(f"s_mul_i32 {s(sRS)}, {sCK}, {CST}"); k(f"s_mul_i32 {S(2)}, {sDT}, 5120"); k(f"s_add_u32 {s(sRS)}, {s(sRS)}, {S(2)}"); k(f"s_add_u32 {s(sRS)}, {s(sRS)}, {WS_HC}")
        k(f"v_xor_b32 v{t2}, {sHf}, v{vG1}"); k(f"v_lshl_add_u32 v{t2}, v{t2}, 5, v{t0}"); k(f"v_add_u32 v{vRA}, {s(sHL)}, v{t2}")
        k(f"v_mul_u32_u24 v{t2}, 1280, v{vN}"); k(f"v_lshl_add_u32 v{vO4}, v{vG}, 3, v{t2}"); k(f"v_add_u32 v{vO4}, 128, v{vO4}")
        k(f"v_lshl_add_u32 v{t2}, v{vG1}, 5, v{t2}"); k(f"v_lshl_add_u32 v{vOP}, v{t3}, 4, v{t2}")
        L_RED = 40960
        k(f"s_mul_i32 {S(1)}, {s(sW)}, 5120"); k(f"s_add_u32 {S(1)}, {S(1)}, {L_RED}"); k(f"v_add_u32 v{vRW}, {S(1)}, v{vL16}"); k(f"v_add_u32 v{vRW2}, {2*20480}, v{vRW}")
        k(f"s_mul_i32 {S(1)}, {s(sW)}, 20480"); k(f"s_add_u32 {S(1)}, {S(1)}, {L_RED}"); k(f"v_add_u32 v{vRR}, {S(1)}, v{vL16}")
        k(f"s_mul_i32 {s(sW2L)}, {s(sW)}, 15360"); k(f"s_add_u32 {s(sW2L)}, {s(sW2L)}, {L_W2}"); k(f"v_add_u32 v{vW2R}, {s(sW2L)}, v{vL16}")
        k(f"s_lshl_b32 {s(sOO)}, {sCK}, 1"); k(f"s_add_u32 {s(sOO)}, {s(sOO)}, {sHf}"); k(f"s_mul_i32 {s(sOO)}, {s(sOO)}, {16*1280}"); k(f"s_mul_i32 {S(1)}, {sDT}, 160"); k(f"s_add_u32 {s(sOO)}, {s(sOO)}, {S(1)}")
        k(f"s_lshl_b32 {s(sHI)}, {s(sR)}, 2"); k(f"s_add_u32 {s(sHI)}, {s(sHI)}, {sHf}"); k(f"s_mul_i32 {s(sHI)}, {s(sHI)}, 49152"); k(f"s_mul_i32 {S(1)}, {s(sW)}, 12288")
        k(f"s_add_u32 {s(sHI)}, {s(sHI)}, {S(1)}"); k(f"s_add_u32 {s(sHI)}, {s(sHI)}, {WS_HH}")

    def ssm_loads(self, SS):
        k = self.k; NT = OPT["nt1"]
        k(f"v_subrev_u32 v2, 8, v{vT16}"); k("v_mov_b32 v3, 0x7ffffff0"); k(f"v_cndmask_b32 v2, v2, v3, {s(sX+2,2)}")
        k(f"s_lshl_b32 {s(sT+2)}, {s(sC0)}, 12")
        for j in range(3):
            k.vm(f"buffer_load_dwordx4 {v(SS+6*j+2,4)}, v{vT16}, {s(rSS,4)}, {s(sT+2)} offen {NT}", "ss")
            k.vm(f"buffer_load_dwordx2 {v(SS+6*j,2)}, v2, {s(rSS,4)}, {s(sT+2)} offen {NT}", "ss")
            if j < 2: k(f"s_add_u32 {s(sT+2)}, {s(sT+2)}, 4096")
    def rp_consts(self):
        k = self.k; S = lambda i: s(sT+i); OOB = 0x7ff00000
        k("v_lshrrev_b32 v2, 4, v1"); k("v_and_b32 v3, 15, v1")
        k("v_lshlrev_b32 v56, 1, v2"); k("v_xor_b32 v56, v56, v3"); k("v_lshlrev_b32 v56, 4, v56")
        k("v_mul_u32_u24 v57, 3072, v2"); k(f"v_add_u32 v{vRL}, v56, v57"); k(f"v_xor_b32 v{vRL+1}, 128, v{vRL}"); k(f"v_add_u32 v{vRL+1}, {4*3072 - 1024}, v{vRL+1}")
        k(f"s_and_b32 {S(0)}, {s(sW)}, 1"); k(f"s_lshl_b32 {S(0)}, {S(0)}, 7"); k(f"v_xor_b32 v56, {S(0)}, v56")
        k("v_mul_u32_u24 v57, 1280, v2"); k(f"v_add_u32 v{vRL+2}, v56, v57"); k(f"v_add_u32 v{vRL+3}, {4*1280 - 1024}, v{vRL+2}")
        k(f"s_mul_i32 {S(0)}, {s(sID)}, 171"); k(f"s_lshr_b32 {S(1)}, {S(0)}, 9"); k(f"s_lshr_b32 {S(0)}, {S(0)}, 11")
        k(f"s_mul_i32 {S(2)}, {S(1)}, 3"); k(f"s_sub_u32 {S(2)}, {s(sID)}, {S(2)}"); k(f"s_and_b32 {S(1)}, {S(1)}, 3")
        k(f"s_lshl_b32 {S(3)}, {S(0)}, 2"); k(f"s_add_u32 {S(3)}, {S(3)}, {s(sW)}"); k(f"s_mul_i32 {S(3)}, {S(3)}, {8*3072}")
        k(f"s_mul_i32 {S(4)}, {S(1)}, 768"); k(f"s_add_u32 {S(3)}, {S(3)}, {S(4)}"); k(f"s_lshl_b32 {S(4)}, {S(2)}, 8"); k(f"s_add_u32 {S(3)}, {S(3)}, {S(4)}")
        k(f"s_cmp_lt_u32 {s(sID)}, 240"); k(f"s_cselect_b32 {s(sRP)}, {S(3)}, {OOB}"); k(f"s_cselect_b32 {S(6)}, 0, {OOB}"); k(f"s_add_u32 {S(6)}, {S(6)}, {WS_W13}")
        k(f"s_mul_i32 {S(3)}, {S(0)}, 52"); k(f"s_lshr_b32 {S(3)}, {S(3)}, 8")
        k(f"s_mul_i32 {S(4)}, {S(3)}, 5"); k(f"s_sub_u32 {S(0)}, {S(0)}, {S(4)}"); k(f"s_mul_i32 {S(4)}, {S(1)}, 320"); k(f"s_add_u32 {S(0)}, {S(0)}, {S(4)}")
        k("v_bfe_u32 v56, v1, 2, 3"); k("v_lshlrev_b32 v56, 5, v56")
        k("v_lshrrev_b32 v57, 2, v1"); k("v_lshlrev_b32 v57, 8, v57"); k(f"v_add_u32 v57, {L_RP}, v57")
        k("v_and_b32 v58, 1, v1"); k("v_bfe_u32 v59, v1, 1, 1"); k(f"s_lshl_b32 {S(1)}, {s(sW)}, 6"); k(f"v_xor_b32 v56, {S(1)}, v56")
        def dest(x, u, t):
            k(f"s_sub_u32 {S(4)}, {S(3)}, {u}"); k(f"s_and_b32 {S(4)}, {S(4)}, 3"); k(f"s_lshl2_add_u32 {S(4)}, {u}, {S(4)}"); k(f"s_mul_i32 {S(4)}, {S(4)}, 5")
            k(f"s_add_u32 {S(4)}, {S(4)}, {S(0)}"); k(f"s_mul_i32 {S(4)}, {S(4)}, 3072"); k(f"s_add_u32 {S(4)}, {S(4)}, {S(6)}"); k(f"s_add_u32 {s(sRD+x)}, {S(4)}, {1024*t}")
        Lm = k.newlabel("mx"); Lj = k.newlabel("j")
        k(f"s_cmp_eq_u32 {S(2)}, 2"); k(f"s_cbranch_scc1 {Lm}")
        k("v_lshl_add_u32 v56, v59, 4, v56"); k("v_lshl_add_u32 v56, v58, 3, v56")
        k(f"v_add_u32 v{vRA4}, v56, v57"); k(f"v_xor_b32 v{vRA4+2}, 32, v{vRA4}"); k(f"v_add_u32 v{vRA4+1}, 8192, v{vRA4}"); k(f"v_add_u32 v{vRA4+3}, 8192, v{vRA4+2}")
        k(f"s_lshl_b32 {S(5)}, {S(2)}, 2"); k(f"s_add_u32 {S(5)}, {S(5)}, {s(sW)}"); k(f"s_lshl_b32 {S(5)}, {S(5)}, 1")
        dest(0, S(5), 0); k(f"s_add_u32 {s(sRD+1)}, {s(sRD)}, 1024"); k(f"s_add_u32 {S(5)}, {S(5)}, 1"); dest(2, S(5), 0); k(f"s_add_u32 {s(sRD+3)}, {s(sRD+2)}, 1024")
        k(f"s_branch {Lj}"); k.label(Lm)
        k("v_lshl_add_u32 v56, v59, 3, v56"); k("v_lshl_add_u32 v56, v58, 13, v56"); k(f"v_add_u32 v{vRA4}, v56, v57")
        for x in range(1, 4): k(f"v_xor_b32 v{vRA4+x}, {16*x}, v{vRA4}")
        k(f"s_lshl_b32 {S(5)}, {s(sW)}, 2")
        for x in range(4):
            dest(x, S(5), 2)
            if x < 3: k(f"s_add_u32 {S(5)}, {S(5)}, 1")
        k.label(Lj)
        k(f"s_mul_i32 {S(0)}, {s(sID)}, 205"); k(f"s_lshr_b32 {S(0)}, {S(0)}, 10"); k(f"s_mul_i32 {S(1)}, {S(0)}, 5"); k(f"s_sub_u32 {S(1)}, {s(sID)}, {S(1)}")
        k(f"s_lshl_b32 {S(3)}, {S(0)}, 2"); k(f"s_add_u32 {S(3)}, {S(3)}, {s(sW)}"); k(f"s_mul_i32 {S(3)}, {S(3)}, {8*1280}"); k(f"s_lshl_b32 {S(4)}, {S(1)}, 8"); k(f"s_add_u32 {S(3)}, {S(3)}, {S(4)}")
        k(f"s_cmp_lt_u32 {s(sID)}, 240"); k(f"s_cselect_b32 {s(sRP2)}, {S(3)}, {OOB}"); k(f"s_cselect_b32 {S(6)}, 0, {OOB}"); k(f"s_add_u32 {S(6)}, {S(6)}, {WS_W2}")
        k(f"s_mul_i32 {S(0)}, {S(0)}, 5120"); k(f"s_add_u32 {S(6)}, {S(6)}, {S(0)}")
        k(f"s_lshl_b32 {S(1)}, {S(1)}, 2"); k(f"s_add_u32 {S(1)}, {S(1)}, {s(sW)}"); k(f"s_lshl_b32 {S(1)}, {S(1)}, 1")
        for x in range(2):
            k(f"s_mul_i32 {S(3)}, {S(1)}, 52"); k(f"s_lshr_b32 {S(3)}, {S(3)}, 8"); k(f"s_mul_i32 {S(3)}, {S(3)}, {47*5120}"); k(f"s_lshl_b32 {S(4)}, {S(1)}, 10")
            k(f"s_add_u32 {S(3)}, {S(3)}, {S(4)}"); k(f"s_add_u32 {s(sRD2+x)}, {S(3)}, {S(6)}")
            if x == 0: k(f"s_add_u32 {S(1)}, {S(1)}, 1")
        k("v_bfe_u32 v56, v1, 2, 3"); k("v_lshlrev_b32 v56, 5, v56"); k(f"s_lshl_b32 {S(1)}, {s(sW)}, 6"); k(f"v_xor_b32 v56, {S(1)}, v56")
        k("v_lshl_add_u32 v56, v59, 4, v56"); k("v_lshl_add_u32 v56, v58, 3, v56")
        k("v_bfe_u32 v57, v1, 2, 2"); k("v_lshl_add_u32 v57, v2, 3, v57"); k("v_lshlrev_b32 v57, 8, v57"); k(f"v_add_u32 v57, {L_RP}, v57")
        k(f"v_add_u32 v{vRA2}, v56, v57"); k(f"v_xor_b32 v{vRA2+1}, 32, v{vRA2}")
    def rp_loads(self):
        k = self.k; NT = OPT["nt1"]
        k(f"s_lshl_b32 {s(sT)}, {s(sW)}, 11")
        for mat, srd in ((0, rW1), (1, rW3)):
            k(f"s_add_u32 m0, {s(sT)}, {L_RP + 8192*mat}")
            for i in range(2): k.vm(f"buffer_load_dwordx4 v{vRL+i}, {s(srd,4)}, {s(sRP)} offen offset:{1024*i} {NT} lds", "rp")
    def rp2_loads(self):
        k = self.k; NT = OPT["nt1"]
        k(f"s_lshl_b32 {s(sT)}, {s(sW)}, 11"); k(f"s_add_u32 m0, {s(sT)}, {L_RP}")
        for i in range(2): k.vm(f"buffer_load_dwordx4 v{vRL+2+i}, {s(rW2,4)}, {s(sRP2)} offen offset:{1024*i} {NT} lds", "rp2")
    def repack(self):
        k = self.k
        for x in range(4):
            for h in range(2): k.lg(f"ds_read_b64_tr_b16 {v(100+4*x+2*h,2)}, v{vRA4+x} offset:{4096*h}", ("r", x))
        for x in range(4):
            k.wait_lg(("r", x)); k.vm(f"buffer_store_dwordx4 {v(100+4*x,4)}, v{vL16}, {s(rWS,4)}, {s(sRD+x)} offen sc1", "rs")
    def toeplitz(self, SS):
        k = self.k
        k(f"s_mov_b32 {s(sT+4)}, 0xffff")
        k(f"v_sub_u32 v2, {255*16}, v{vT16}")
        for j in range(3):
            D = SS + 6*j
            k(f"v_lshlrev_b32 v3, 16, v{D+2}"); k(f"v_add_f32 v3, {s(sDV+j)}, v3"); k("v_cvt_pk_bf16_f32 v3, v3, v3")
            k(f"v_bfi_b32 v3, {s(sT+4)}, v3, v{D+2}"); k(f"v_cndmask_b32 v{D+2}, v{D+2}, v3, {s(sX+2,2)}")
            O = 128 + 16*j
            for c in range(4):
                for t in range(4):
                    hi = 5 - t - (c >> 1)
                    if c % 2 == 0: k(f"v_alignbit_b32 v{O+4*c+t}, v{D+hi}, v{D+hi}, 16")
                    else: k(f"v_bfi_b32 v{O+4*c+t}, {s(sT+4)}, v{D+hi}, v{D+hi-1}")
                k(f"ds_write_b128 v2, {v(O+4*c,4)} offset:{L_TOEP + (4*j+c)*CSTR}")

    def phase0(self):
        k = self.k
        SH = 72
        SS = 78
        vTR, vTR2 = 96, 97
        sStep = 73
        k(f"v_lshlrev_b32 v{vT16}, 4, v0")
        for i in range(4): k(f"v_mov_b32 v{204+i}, 0")
        self.roles()
        k(f"v_cmp_eq_u32 {s(sX+2,2)}, 0, v0")
        k.wait_lg0()
        k(f"s_lshr_b32 {s(sT+2)}, {s(sC0)}, 1"); k(f"s_lshl_b32 {s(sT+2)}, {s(sT+2)}, 2")
        k(f"s_load_dwordx2 {s(sDV,2)}, {s(sDP,2)}, {s(sT+2)}")
        self.f7()
        k(f"s_mul_i32 {s(sT)}, {s(sSB)}, {BST}"); k(f"s_add_u32 {s(sXS)}, {s(sT)}, {WS_XT}"); k(f"s_add_u32 {s(sKS)}, {s(sT)}, {WS_KVT}")
        k(f"v_cmp_gt_u32 vcc, 90, v0"); k(f"s_and_saveexec_b64 {s(sX,2)}, vcc")
        k(f"ds_write_b128 v{vT16}, v[204:207] offset:{L_U}")
        k(f"s_mov_b64 exec, {s(sX,2)}")
        k("v_lshrrev_b32 v2, 1, v0"); k(f"v_mul_u32_u24 v2, {CSTR}, v2"); k("v_and_b32 v3, 1, v0"); k("v_lshl_add_u32 v2, v3, 4, v2")
        k(f"v_cmp_gt_u32 vcc, 24, v0"); k(f"s_and_saveexec_b64 {s(sX,2)}, vcc")
        k(f"ds_write_b128 v2, v[204:207] offset:{L_TOEP + 4096}")
        k(f"s_mov_b64 exec, {s(sX,2)}")
        Lz = k.newlabel("z")
        k(f"s_cmp_lg_u32 {s(sSB)}, 0"); k(f"s_cbranch_scc1 {Lz}")
        k(f"v_add_u32 v2, {L_P0K}, v{vT16}"); k("ds_write_b128 v2, v[204:207]"); k("ds_write_b128 v2, v[204:207] offset:1024")
        k.label(Lz)
        k("v_bfe_u32 v2, v1, 2, 2")
        k("v_lshrrev_b32 v3, 4, v1"); k("v_lshlrev_b32 v3, 1, v3")
        k("v_bfe_u32 v98, v1, 1, 1"); k("v_add_u32 v3, v3, v98")
        k("v_bfe_u32 v98, v0, 6, 1"); k("v_lshl_add_u32 v3, v98, 3, v3")
        k("v_lshlrev_b32 v98, 2, v2"); k("v_xor_b32 v3, v3, v98"); k("v_lshlrev_b32 v3, 4, v3")
        k("v_mul_u32_u24 v2, 1280, v2"); k("v_add_u32 v3, v3, v2")
        k("v_and_b32 v2, 1, v1"); k("v_lshl_add_u32 v3, v2, 3, v3")
        k("v_lshrrev_b32 v2, 7, v0"); k("v_lshl_add_u32 v3, v2, 8, v3")
        k(f"v_add_u32 v{vTR}, {L_P0}, v3")
        k(f"s_cmp_eq_u32 {s(sW)}, 2"); k(f"s_cselect_b32 {s(sT+2)}, 128, 0"); k(f"s_movk_i32 {s(sT+3)}, 1024"); k(f"s_cselect_b32 {s(sT+3)}, 512, {s(sT+3)}")
        k(f"v_xor_b32 v{vTR2}, {s(sT+2)}, v{vTR}"); k(f"v_add_u32 v{vTR2}, {s(sT+3)}, v{vTR2}")
        self.consts()
        k(f"v_and_b32 v202, 0xfffffe00, v{vFW}"); k("v_and_b32 v2, 31, v1"); k("v_lshl_add_u32 v202, v2, 4, v202")
        k(f"s_lshl_b32 {s(sT+2)}, {s(sXG)}, 8"); k(f"s_lshl_b32 {s(sT+4)}, {s(sM)}, 10"); k(f"s_add_u32 {s(sT+2)}, {s(sT+2)}, {s(sT+4)}")
        k(f"s_sub_u32 {s(sT+3)}, {s(sXG)}, 1"); k(f"s_and_b32 {s(sT+4)}, {s(sM)}, 16"); k(f"s_or_b32 {s(sT+3)}, {s(sT+3)}, {s(sT+4)}"); k(f"s_lshl_b32 {s(sT+4)}, {s(sW)}, 4"); k(f"s_or_b32 {s(sT+3)}, {s(sT+3)}, {s(sT+4)}")
        k(f"s_cmp_lt_u32 {s(sT+3)}, 3"); k(f"s_cselect_b32 {s(sT+2)}, {s(sT+2)}, 0x7ff00000")
        k("v_lshrrev_b32 v2, 3, v1"); k("v_lshlrev_b32 v98, 14, v2"); k("v_and_b32 v3, 7, v1"); k("v_lshl_add_u32 v98, v3, 4, v98"); k(f"v_add_u32 v203, {s(sT+2)}, v98")
        k("v_mul_u32_u24 v98, 1280, v2"); k("v_lshl_add_u32 v98, v3, 4, v98"); k("v_bfe_u32 v99, v1, 4, 1"); k("v_lshl_add_u32 v98, v99, 7, v98"); k(f"v_add_u32 v98, {L_P0X}, v98"); k("v_xor_b32 v208, 128, v98")
        k(f"s_and_b32 {s(sT+5)}, {s(sXG)}, 1"); k(f"s_xor_b32 {s(sT+5)}, {s(sT+5)}, {s(sSB)}"); k(f"s_bfe_u32 {s(sT+4)}, {s(sT+5)}, 0x20002")
        k("v_lshrrev_b32 v99, 2, v2"); k("v_lshl_add_u32 v99, v3, 1, v99"); k(f"v_xor_b32 v99, {s(sT+4)}, v99"); k("v_lshlrev_b32 v99, 4, v99"); k("v_and_b32 v2, 3, v2"); k("v_lshl_add_u32 v99, v2, 2, v99")
        k("v_mov_b32 v2, 0x7ffff000"); k("v_cmp_gt_u32 vcc, 2, v3"); k("v_cndmask_b32 v99, v2, v99, vcc")
        k(f"s_lshl_b32 {s(sT+5)}, {s(sT+5)}, 6"); k(f"s_add_u32 {s(sT+6)}, {s(sT+5)}, {WS_STAT}")
        k.wait_lg0()
        k(f"s_and_b32 {s(sT+2)}, {s(sC0)}, 1"); k(f"s_lshl_b32 {s(sT+2)}, {s(sT+2)}, 4"); k(f"s_lshr_b64 {s(sDV,2)}, {s(sDV,2)}, {s(sT+2)}")
        k(f"s_lshl_b32 {s(sDV+2)}, {s(sDV+1)}, 16"); k(f"s_and_b32 {s(sDV+1)}, {s(sDV)}, 0xffff0000"); k(f"s_lshl_b32 {s(sDV)}, {s(sDV)}, 16")
        k(f"s_mov_b32 {s(sStep)}, {s(sT+6)}"); self.rp_consts(); k(f"s_mov_b32 {s(sT+6)}, {s(sStep)}")
        k(f"s_cmp_eq_u32 {s(sW)}, 2"); k(f"s_movk_i32 {s(sStep)}, 0x1000"); k(f"s_cselect_b32 {s(sStep)}, 1024, {s(sStep)}")
        self.f7()
        k(f"s_cmp_eq_u32 {s(sW)}, 2"); k(f"s_movk_i32 {s(sT+2)}, 4096"); k(f"s_cselect_b32 {s(sT+2)}, 2560, {s(sT+2)}")
        k("v_lshlrev_b32 v209, 3, v0"); k(f"v_add_u32 v209, {L_P0 + 25600}, v209"); k("v_add_u32 v210, 2048, v209"); k(f"v_add_u32 v211, {s(sT+2)}, v209")
        Lz = k.newlabel("z")
        k(f"s_xor_b32 {s(sT+5)}, {s(sW)}, 3"); k(f"s_or_b32 {s(sT+4)}, {s(sT+5)}, {s(sM)}"); k(f"s_cbranch_scc1 {Lz}")
        k("v_mov_b32 v2, 0"); k("s_waitcnt vmcnt(5)")
        k("s_mov_b64 exec, 1"); k(f"global_atomic_add v2, v{vONE}, {s(sDBG,2)} sc1"); k("s_mov_b64 exec, -1")
        k.label(Lz)
        k.vmq = ["p0"]
        if OPT["late"] == 0: self.rp_loads()
        if OPT["ssm"] == 0: self.ssm_loads(SS)
        k.vm(f"buffer_store_dwordx4 v[204:207], v202, {s(rWS,4)}, 0 offen sc1", "z")
        k.vm(f"buffer_store_dwordx4 v[204:207], v203, {s(rWS,4)}, 0 offen sc1", "z")
        k.wait_vm("p0")
        self.f7(); k("s_barrier"); self.f7()
        self.stamp()
        TB = 100
        def reads(i):
            b0 = TB + 16*i; vb = vTR2 if i == 2 else vTR; o = 0 if i == 2 else 512*i
            k.lg(f"ds_read_b64 {v(SH+2*i,2)}, v{209+i}", ("k", i))
            for b in range(3): k.lg(f"ds_read_b64_tr_b16 {v(b0+2*b,2)}, v{vb} offset:{L_P0K-L_P0 + b*5120 + o}", ("k", i))
            for b in range(2): k.lg(f"ds_read_b64_tr_b16 {v(b0+6+2*b,2)}, v{vb} offset:{L_P0V-L_P0 + b*5120 + o}", ("k", i))
            for b in range(2): k.lg(f"ds_read_b64_tr_b16 {v(b0+12+2*b,2)}, v{vb} offset:{b*5120 + o}", ("x", i))
        def task(i):
            P = TB + 16*i; Vv = P + 6; Xx = P + 12; Q = 150; W10, W32 = SH+2*i, SH+2*i+1; KS = 158; U = 212; O = 168 + 4*i
            k.wait_lg(("k", i))
            for j in range(2): k(f"v_alignbit_b32 v{W10+j}, v{W10+j}, v{W10+j}, 16")
            for j in range(5): k(f"v_alignbit_b32 v{Q+j}, v{P+j+1}, v{P+j}, 16")
            for j in range(4):
                k(f"v_dot2_f32_bf16 v{KS+2*j+1}, v{P+j+1}, v{W32}, 0"); k(f"v_dot2_f32_bf16 v{KS+2*j}, v{Q+j}, v{W32}, 0")
            for j in range(4):
                k(f"v_dot2_f32_bf16 v{KS+2*j+1}, v{P+j+2}, v{W10}, v{KS+2*j+1}"); k(f"v_dot2_f32_bf16 v{KS+2*j}, v{Q+j+1}, v{W10}, v{KS+2*j}")
            k.wait_lg(("x", i))
            k(f"buffer_store_dwordx4 {v(Xx,4)}, v{vT16}, {s(rWS,4)}, {s(sXS)} offen sc1")
            for j in range(4):
                k(f"v_lshlrev_b32 v{U+2*j}, 16, v{Vv+j}"); k(f"v_and_b32 v{U+2*j+1}, 0xffff0000, v{Vv+j}")
            for j in range(4): k(f"v_pk_mul_f32 {v(KS+2*j,2)}, {v(KS+2*j,2)}, {v(U+2*j,2)}")
            for j in range(4): k(f"v_cvt_pk_bf16_f32 v{O+j}, v{KS+2*j}, v{KS+2*j+1}")
            k(f"buffer_store_dwordx4 {v(O,4)}, v{vT16}, {s(rWS,4)}, {s(sKS)} offen sc1")
            if i == 0: k(f"s_add_u32 {s(sKS)}, {s(sKS)}, 4096"); k(f"s_add_u32 {s(sXS)}, {s(sXS)}, 4096")
            if i == 1: k(f"s_add_u32 {s(sKS)}, {s(sKS)}, {s(sStep)}"); k(f"s_add_u32 {s(sXS)}, {s(sXS)}, {s(sStep)}")
        reads(0)
        if OPT["ssm"] == 1: self.ssm_loads(SS)
        Ls = k.newlabel("st"); Lj = k.newlabel("j")
        k(f"s_cmp_eq_u32 {s(sW)}, 3"); k(f"s_cbranch_scc1 {Ls}")
        q0 = list(k.lgq)
        reads(1); task(0); reads(2); task(1); task(2)
        k(f"s_branch {Lj}")
        k.label(Ls); k.lgq = q0
        SR = [116 + 4*j for j in range(8)] + [220, 224]
        for j in range(6): k.lg(f"ds_read_b128 {v(SR[j],4)}, v{208 if j&1 else 98} offset:{256*(j>>1)}", ("s", j))
        task(0)
        for j in range(6, 10): k.lg(f"ds_read_b128 {v(SR[j],4)}, v{208 if j&1 else 98} offset:{256*(j>>1)}", ("s", j))
        k(f"s_mov_b32 {s(sT+5)}, 0x3f803f80")
        for j in range(10):
            k.wait_lg(("s", j))
            for d in range(4):
                z = j == 0 and d == 0
                k(f"v_dot2_f32_bf16 v200, v{SR[j]+d}, {s(sT+5)}, {'0' if z else 'v200'}"); k(f"v_dot2_f32_bf16 v201, v{SR[j]+d}, v{SR[j]+d}, {'0' if z else 'v201'}")
        for m_ in ("quad_perm:[1,0,3,2]", "quad_perm:[2,3,0,1]", "row_half_mirror"):
            k(f"v_add_f32_dpp v200, v200, v200 {m_} row_mask:0xf bank_mask:0xf"); k(f"v_add_f32_dpp v201, v201, v201 {m_} row_mask:0xf bank_mask:0xf")
        k(f"v_mul_f32 v200, {1.0/640!r}, v200"); k(f"v_mul_f32 v201, {1.0/640!r}, v201")
        k("v_fma_f32 v201, -v200, v200, v201"); k("v_max_f32 v201, 0, v201"); k(f"v_add_f32 v201, {1e-5!r}, v201"); k("v_rsq_f32 v201, v201")
        k("v_and_b32 v2, 7, v1"); k("v_cmp_eq_u32 vcc, 0, v2")
        k("v_mul_f32_e64 v200, -v200, v201")
        k("v_cndmask_b32 v200, v200, v201, vcc")
        k(f"buffer_store_dword v200, v99, {s(rWS,4)}, {s(sT+6)} offen sc1")
        k.label(Lj); k.lgq = []
        self.f7()
        self.stamp()
        k("v_mov_b32 v2, 0"); k(f"global_load_dword v{vPV}, v2, {s(sDBG,2)} sc1")
        k.vmq = ["poll"]
        if OPT["ssm"] == 2: self.ssm_loads(SS)
        if OPT["late"] == 2: self.rp_loads()
        k("v_mov_b32 v2, 0")
        self.check(f"global_load_dword v{vPV}, v2, {s(sDBG,2)} sc1", f"v_cmp_gt_u32 vcc, 8, v{vPV}")
        self.f7(); k("s_barrier"); self.f7()
        self.arrive(S1)
        self.stamp()
        if OPT["late"] == 0: self.repack()
        k.wait_vm("ss")
        self.toeplitz(SS)
        self.stamp()
        L = k.newlabel("pol")
        k(f"s_cmp_lg_u32 {s(sW)}, 0"); k(f"s_cbranch_scc1 {L}")
        k.vmq = []
        self.poll_issue(S1); self.poll_check(S1)
        k.label(L)
        k.wait_vm0(); k("s_barrier")
        self.arrive(SW)

    def run_fill(self, fill, fi, credit, i):
        while fi < len(fill) and credit > 0 and fill[fi][2] <= i:
            c, fn, _ = fill[fi]; fn(); credit -= c; fi += 1
        return fi, credit

    def conv_stream(self, ops, FR, nslots, fill, LA=12, fs=0):
        k = self.k
        first = {}; last = {}
        for i, (_, _, A_, B_) in enumerate(ops):
            for key in (A_, B_):
                first.setdefault(key, i); last[key] = i
        order = sorted(first, key=lambda x: first[x])
        free = list(range(nslots)); slot = {}; st = dict(nxt=0)
        def issue(budget, upto):
            while st["nxt"] < len(order) and free and budget > 0 and first[order[st["nxt"]]] <= upto:
                key = order[st["nxt"]]; sl = free.pop(0); slot[key] = sl; r = FR + 4*sl
                if key[0] == "A":
                    k.lg(f"ds_read_b64 {v(r,2)}, v{key[1]} offset:{key[2]}", None); k.lg(f"ds_read_b64 {v(r+2,2)}, v{key[1]} offset:{key[2]+8}", key); budget -= 2
                else:
                    k.lg(f"ds_read_b128 {v(r,4)}, v{key[1]} offset:{key[2]}", key); budget -= 1
                st["nxt"] += 1
            return budget
        issue(12, LA)
        k.wait_lg([ops[0][2], ops[0][3]])
        fi = 0; credit = 0
        for i, (acc, fst, A_, B_) in enumerate(ops):
            k(f"{MF} {v(acc,4)}, {v(FR+4*slot[A_],4)}, {v(FR+4*slot[B_],4)}, {'0' if fst else v(acc,4)}")
            for key in {A_, B_}:
                if last[key] == i: free.append(slot[key])
            if i + 1 < len(ops):
                nA, nB = ops[i+1][2], ops[i+1][3]
                while nA not in slot or nB not in slot: issue(2, i+1)
                k.wait_lg([nA, nB])
            if fs and i % fs == 0: self.fstamp()
            credit = min(credit, 0) + 2
            credit = issue(credit, i + LA)
            fi, credit = self.run_fill(fill, fi, credit, i)
        while fi < len(fill): fill[fi][1](); fi += 1

    def conv_ops(self, tiles, nr, vA, vB, acc):
        ops = []
        for dr in range(nr):
            for m in range(max(tiles) + 1):
                for ti, T in reversed(list(enumerate(tiles))):
                    if T >= m:
                        ops.append((acc + 4*ti, dr == 0 and m == 0, ("A", vA, 64*(56 - 8*m + nr - 1 - dr)), ("B", vB, 192*(8*(T-m) + nr - 1 - dr))))
        return ops

    def w13_load(self, f):
        k = self.k
        k.vm(f"buffer_load_dwordx4 {a(4*f,4)}, v{vL16}, {s(rWS,4)}, {s(sW13)} offen offset:{1024*(f%4)} sc1", ("w", f//3))
        if f % 4 == 3: k(f"s_add_u32 {s(sW13)}, {s(sW13)}, 4096")

    def phase1(self):
        k = self.k
        ACF, ACH, FR = 56, 72, 80
        E = 144; X = E + 28; H = 184; AX = 200
        self.stamp()
        for i in range(3):
            k(f"s_add_u32 m0, {s(sGL)}, {L_UD + 1024*i}"); k.vm(f"buffer_load_dwordx4 v{vGO+i}, {s(rWS,4)}, {s(sGK)} offen sc1 lds", "u")
        for i in range(3):
            k(f"s_add_u32 m0, {s(sGL)}, {L_XI + 1024*i}"); k.vm(f"buffer_load_dwordx4 v{vGO+i}, {s(rWS,4)}, {s(sGX)} offen sc1 lds", "x")
        k(f"s_mov_b32 m0, {s(sSTL)}")
        for i in range(4): k.vm(f"buffer_load_dwordx4 v{vL16}, {s(rWS,4)}, {s(sSTS)} offen offset:{1024*i} sc1 lds", "x")
        self.rp2_loads()
        for i in range(3): k(f"v_xor_b32 v{AX+i}, {16*(i+1)}, v{vSF}")
        k(f"v_xor_b32 v{AX+3}, 32, v{vSH}")
        k.wait_vm("u"); k.wait_lg0(); k("s_barrier")
        self.stamp()
        for ps in range(2):
            PO = 16384*ps; PB = 128*ps
            full = self.conv_ops([4*ps+t for t in range(4)], 4, vAF, vBF, ACF)
            nh = 10 if ps == 0 else 26; nmf = len(full) + nh
            BM = OPT.get("bm1", 30) if ps == 0 else OPT.get("bm2", 44)
            def mkfill():
                F = []; add = lambda t, i, c=1: F.append((c, (lambda t=t: k(t)) if isinstance(t, str) else t, i))
                lg = lambda t, tag, i: F.append((1, lambda: k.lg(t, tag), i))
                if ps == 0: add(lambda: self.poll_issue(SW), 0)
                if ps == 1:
                    for n, pos in enumerate(range(1, nh + 3, OPT["wrate"])): add(lambda n=n: self.w13_load(n), pos)
                    w0 = n + 1
                lg(f"ds_write_b128 v{vPWH}, {v(ACH,4)} offset:{PO+8192}", "aw", nh + 3); lg(f"ds_write_b128 v{vPWH}, {v(ACH+4,4)} offset:{PO+8192+1024}", "aw", nh + 4)
                if ps == 1:
                    for n, pos in enumerate(range(nh + 5, BM, OPT["wrate"])): add(lambda n=w0+n: self.w13_load(n), pos)
                    w0 += n + 1
                add(lambda: (k.wait_vm("x" if ps == 0 else "h"), k.wait_lg("aw"), k("s_barrier")), BM, 0)
                if ps == 1: add(lambda: self.arrive(S2A), BM)
                G = []
                lg2 = lambda t, tag: G.append((1, lambda: k.lg(t, tag)))
                ad2 = lambda t, c=1: G.append((c, (lambda t=t: k(t)) if isinstance(t, str) else t))
                for w_ in range(4): lg2(f"ds_read_b64 {v(H+2*w_,2)}, v{vPH} offset:{PO+2048*w_}", "hp")
                lg2(f"ds_read_b32 v{H+8}, v{vXH} offset:{48*PB}", "hp"); lg2(f"ds_read_b64 {v(H+10,2)}, v{vSH} offset:{64*PB}", "hp"); lg2(f"ds_read_b64 {v(H+12,2)}, v{AX+3} offset:{64*PB}", "hp")
                lg2(f"ds_read_b128 {v(E+8,4)}, v{vXF} offset:{48*PB}", "s")
                for i in range(4): lg2(f"ds_read_b128 {v(E+12+4*i,4)}, v{vSF if i==0 else AX+i-1} offset:{64*PB}", "s")
                ad2(lambda: k.wait_lg("hp"), 0)
                for r in range(2): ad2(f"v_add_f32 v{H+r}, v{H+r}, v{H+2+r}"); ad2(f"v_add_f32 v{H+4+r}, v{H+4+r}, v{H+6+r}")
                ad2(f"v_lshlrev_b32 v{H+14}, 16, v{H+8}"); ad2(f"v_and_b32 v{H+15}, 0xffff0000, v{H+8}")
                for r in range(2): ad2(f"v_add_f32 v{H+r}, v{H+r}, v{H+4+r}"); ad2(f"v_fma_f32 v{H+10+r}, v{H+14+r}, v{H+10+r}, v{H+12+r}")
                for r in range(2): ad2(f"v_fmac_f32 v{H+14+r}, v{H+10+r}, v{H+r}")
                ad2(f"v_cvt_pk_bf16_f32 v{H+8}, v{H+14}, v{H+15}")
                ad2(lambda: k.vm(f"buffer_store_dword v{H+8}, v{vGH}, {s(rWS,4)}, {s(sHH)} offen sc1", "h"))
                ad2(lambda: k.wait_lg("s"), 0)
                for i in range(4): ad2(f"v_lshlrev_b32 v{X+2*i}, 16, v{E+8+i}"); ad2(f"v_and_b32 v{X+2*i+1}, 0xffff0000, v{E+8+i}")
                for i in range(8): ad2(f"v_fma_f32 v{E+12+i}, v{X+i}, v{E+12+i}, v{E+20+i}")
                if ps == 1:
                    for x in range(2):
                        for h in range(2): lg2(f"ds_read_b64_tr_b16 {v(208+4*x+2*h,2)}, v{vRA2+x} offset:{1024*h}", "r2")
                    G[-12:] = G[-4:] + G[-12:-4]
                    ad2(lambda: k.wait_lg("r2"), 0)
                    for x in range(2): ad2(lambda x=x: k.vm(f"buffer_store_dwordx4 {v(208+4*x,4)}, v{vL16}, {s(rWS,4)}, {s(sRD2+x)} offen sc1", "rs"))
                if ps == 0:
                    for c_, fn in G: F.append((c_, fn, BM))
                else:
                    w = w0; pos = BM + 1; per = max(1, len(G) * OPT["wrate"] // (nmf - 12 - BM) + 1)
                    while pos < nmf - 2:
                        F.append((1, lambda w=w: self.w13_load(w), pos)); w += 1
                        for c_, fn in G[:per]: F.append((c_, fn, pos))
                        G = G[per:]
                        if pos <= nmf - OPT.get("pa", 20) < pos + OPT["wrate"]: add(lambda: self.poll_issue(S2A), pos)
                        pos += OPT["wrate"]
                    assert not G
                    self.wf_next = w
                return F
            Le = k.newlabel("e"); Lj = k.newlabel("j")
            k(f"s_cmp_lg_u32 {s(sE)}, 0"); k(f"s_cbranch_scc1 {Le}")
            vq = list(k.vmq)
            fs = (5 if ps == 0 else 8) if self.fine == 5 + ps else 0
            self.conv_stream(self.conv_ops([4*ps, 4*ps+3], 2, vAH, vBH, ACH) + full, FR, 16, mkfill(), fs=fs)
            if fs: self.nf = 0
            vq1 = list(k.vmq)
            k(f"s_branch {Lj}"); k.label(Le); k.lgq = []; k.vmq = vq
            self.conv_stream(self.conv_ops([4*ps+1, 4*ps+2], 2, vAH, vBH, ACH) + full, FR, 16, mkfill(), fs=fs)
            assert k.vmq == vq1
            k.label(Lj); k.lgq = []
            if fs: self.fstamp()
            Lo = k.newlabel("o"); Lj = k.newlabel("j")
            k(f"s_bitcmp1_b32 {s(sW)}, 0"); k(f"s_cbranch_scc1 {Lo}")
            k(f"ds_write_b128 v{vPW}, {v(ACF+8,4)} offset:{PO}"); k(f"ds_write_b128 v{vPW}, {v(ACF+12,4)} offset:{PO+1024}")
            k("s_waitcnt lgkmcnt(0)"); k("s_barrier")
            k(f"ds_read_b128 {v(ACF+8,4)}, v{vPR} offset:{PO}"); k(f"ds_read_b128 {v(ACF+12,4)}, v{vPR} offset:{PO+1024}")
            k(f"s_branch {Lj}"); k.label(Lo)
            k(f"ds_write_b128 v{vPW}, {v(ACF,4)} offset:{PO}"); k(f"ds_write_b128 v{vPW}, {v(ACF+4,4)} offset:{PO+1024}")
            k("s_waitcnt lgkmcnt(0)"); k("s_barrier")
            k(f"ds_read_b128 {v(ACF,4)}, v{vPR} offset:{PO}"); k(f"ds_read_b128 {v(ACF+4,4)}, v{vPR} offset:{PO+1024}")
            k.label(Lj)
            if fs: self.fstamp()
            k("s_waitcnt lgkmcnt(0)")
            for i in range(4): k(f"v_pk_add_f32 {v(ACF+2*i,2)}, {v(ACF+2*i,2)}, {v(ACF+8+2*i,2)}")
            for i in range(4): k(f"v_permlane16_swap_b32 v{ACF+i}, v{ACF+4+i}")
            for i in range(4): k(f"v_pk_fma_f32 {v(X+2*i,2)}, {v(E+12+2*i,2)}, {v(ACF+2*i,2)}, {v(X+2*i,2)}")
            for i in range(4): k(f"v_cvt_pk_bf16_f32 v{E+i}, v{X+2*i}, v{X+2*i+1}")
            k.vm(f"buffer_store_dwordx4 {v(E,4)}, v{vGF}, {s(rWS,4)}, {s(sHF)} offen sc1", "h")
            if ps == 0:
                k(f"s_add_u32 {s(sHF)}, {s(sHF)}, {32*CST}"); k(f"s_add_u32 {s(sHH)}, {s(sHH)}, {32*CST}")
                self.poll_check(SW)
            if fs: self.fstamp()
            self.stamp()

    def interleave(self, mf, fill, per=2):
        k = self.k; fi = 0; credit = 0
        def pre(m):
            if m.get("wait"): k.wait_lg(m["wait"])
            if m.get("vwait"): k.wait_vm(m["vwait"])
        pre(mf[0])
        for i, m in enumerate(mf):
            k(m["text"])
            if i + 1 < len(mf): pre(mf[i+1])
            for x in m.get("scal", []): x() if callable(x) else k(x)
            credit = min(credit, 0) + per
            for x in m.get("post", []):
                x(); credit -= 1
            fi, credit = self.run_fill(fill, fi, credit, i)
        while fi < len(fill): fill[fi][1](); fi += 1

    def g1_epilogue(self, AC, idx):
        k = self.k; P = []
        C1, C3, CG, CU = 56, 60, 64, 68
        ST = {"m": 9, 0: 12, 1: 15}; O4, O2 = 18, 54
        def add(t, c=1): P.append((c, (lambda t=t: k(t)), idx))
        def swi(G, U, cg, cu, st):
            nm, nl, ve = st, st+1, st+2
            for r in range(4): add(f"v_fmac_f32 v{G+r}, v{nm}, v{cg+r}")
            for r in range(4): add(f"v_fmac_f32 v{U+r}, v{nm}, v{cu+r}")
            for r in range(4): add(f"v_mul_f32 v{U+r}, v{G+r}, v{U+r}")
            for r in range(4): add(f"v_mul_f32 v{G+r}, v{G+r}, v{nl}")
            for r in range(4): add(f"v_exp_f32 v{G+r}, v{G+r}", 2)
            for r in range(4): add(f"v_fma_f32 v{G+r}, v{G+r}, v{ve}, v{ve}")
            for r in range(4): add(f"v_rcp_f32 v{G+r}, v{G+r}", 2)
            for r in range(4): add(f"v_mul_f32 v{U+r}, v{U+r}, v{G+r}")
        for a_ in range(2):
            swi(AC+12*a_, AC+12*a_+4, C1, C3, ST[a_])
            add(f"v_cvt_pk_bf16_f32 v{O4+2*a_}, v{AC+12*a_+4}, v{AC+12*a_+5}"); add(f"v_cvt_pk_bf16_f32 v{O4+2*a_+1}, v{AC+12*a_+6}, v{AC+12*a_+7}")
        for r in range(4): add(f"v_permlane16_swap_b32 v{AC+8+r}, v{AC+20+r}")
        add(f"v_permlane16_swap_b32 v{O4}, v{O4+2}"); add(f"v_permlane16_swap_b32 v{O4+1}, v{O4+3}")
        P.append((1, lambda: k.vm(f"buffer_store_dwordx4 {v(O4,4)}, v{vSP}, {s(rWS,4)}, {s(sHO)} offen sc1", "hh"), idx))
        swi(AC+8, AC+20, CG, CU, ST["m"])
        add(f"v_cvt_pk_bf16_f32 v{O2}, v{AC+20}, v{AC+21}"); add(f"v_cvt_pk_bf16_f32 v{O2+1}, v{AC+22}, v{AC+23}")
        P.append((1, lambda: k.vm(f"buffer_store_dwordx2 {v(O2,2)}, v{vSMX}, {s(rWS,4)}, {s(sHO)} offen sc1", "hh"), idx))
        return P
    def g1_stats(self, idx):
        k = self.k; T = 18
        return [(1, lambda: k.lg(f"ds_read2st64_b32 {v(T,2)}, v{vSR} offset0:0 offset1:2", "st"), idx),
                (1, lambda: k.lg(f"ds_read2st64_b32 {v(T+2,2)}, v{vSR} offset0:4 offset1:6", "st"), idx),
                (1, lambda: k.lg(f"ds_read2st64_b32 {v(T+4,2)}, v{vGR} offset0:0 offset1:8", "st"), idx),
                (1, lambda: k.lg(f"ds_read2st64_b32 {v(T+6,2)}, v{vGR} offset0:16 offset1:24", "st"), idx)]
    def g1_stats2(self, idx):
        k = self.k; P = []; T = 18
        def add(t, c=1): P.append((c, (lambda t=t: k(t)), idx))
        P.append((0, lambda: k.wait_lg("st"), idx))
        for i in range(4): add(f"v_add_f32 v{T+2*i}, v{T+2*i}, v{T+2*i+1}")
        add(f"v_add_f32 v{T}, v{T}, v{T+2}"); add(f"v_add_f32 v{T+4}, v{T+4}, v{T+6}")
        add(f"v_mul_f32 v9, {-1.0/640!r}, v{T}"); add(f"v_mul_f32 v11, {1.0/640!r}, v{T+4}")
        add(f"v_fma_f32 v11, -v9, v9, v11"); add("v_max_f32 v11, 0, v11"); add(f"v_add_f32 v11, {1e-5!r}, v11")
        add("v_rsq_f32 v10, v11", 2); add("v_mov_b32 v12, v9"); add(f"v_mul_f32 v10, {-1.4426950408889634!r}, v10")
        add("v_mov_b32 v15, v9"); add("v_mov_b32 v14, v11"); add("v_mov_b32 v17, v11"); add("v_mov_b32 v13, v10"); add("v_mov_b32 v16, v10")
        add("v_permlane16_swap_b32 v12, v15"); add("v_permlane16_swap_b32 v14, v17"); add("v_permlane16_swap_b32 v13, v16")
        return P
    def flag_set(self, n):
        k = self.k
        k.wait_vm("hh"); k(f"v_mov_b32 v3, {n}"); k.vm(f"buffer_store_dword v3, v{vFW}, {s(rWS,4)}, 0 offen sc1", "flag")

    def phase23(self):
        k = self.k
        SA = 72; AC0 = 88; HF = 136; CS = 56
        NV, NL = 28, 15
        def w2reg(f):
            if f < 24: return v(160+4*f, 4)
            if f < NV: return a(240+4*(f-24), 4)
            if f < NV+NL: return a(164+4*(f-NV), 4)
            return a(96+4*(f-NV-NL), 4)
        def w2_load(f):
            def fn():
                if NV <= f < NV+NL:
                    k(f"s_add_u32 m0, {s(sW2L)}, {1024*(f-NV-f%4)}")
                    k.vm(f"buffer_load_dwordx4 v{vL16}, {s(rWS,4)}, {s(sW2)} offen offset:{1024*(f%4)} sc1 lds", ("w2", f))
                else:
                    k.vm(f"buffer_load_dwordx4 {w2reg(f)}, v{vL16}, {s(rWS,4)}, {s(sW2)} offen offset:{1024*(f%4)} sc1", ("w2", f))
                if f % 4 == 3: k(f"s_add_u32 {s(sW2)}, {s(sW2)}, 4096")
            return fn
        assert NV % 4 == 0
        CH_STEP = [CST, 31*CST, CST]; HO_STEP = [98304, 31*98304, 98304]
        def dma(c, i):
            def f():
                if i % 4 == 0:
                    k(f"s_add_u32 m0, {s(sHL)}, {(c&1)*40960 + 1024*i}")
                    if i: k(f"s_add_u32 {s(sHS)}, {s(sHS)}, 4096")
                k.vm(f"buffer_load_dwordx4 v{vL16}, {s(rWS,4)}, {s(sHS)} offen offset:{1024*(i%4)} sc1 lds", ("h", c, i//2))
                if i == 9 and c < 3: k(f"s_add_u32 {s(sHS)}, {s(sHS)}, {CH_STEP[c] - 8192}")
            return f
        def res_dma(i):
            def f():
                if i == 0: k(f"s_mov_b32 m0, {s(sHL)}")
                if i == 4: k("s_add_u32 m0, m0, 4096"); k(f"s_add_u32 {s(sRS)}, {s(sRS)}, 4096")
                k.vm(f"buffer_load_dwordx4 v{vL16}, {s(rWS,4)}, {s(sRS)} offen offset:{1024*(i%4)} sc1 lds", "res")
            return f
        def hh_load(i, kb):
            def f():
                k.vm(f"buffer_load_dwordx4 {a(48*(i&1)+4*kb,4)}, v{vL16}, {s(rWS,4)}, {s(sHI)} offen offset:{1024*(kb%4)} sc1", ("hi", i, kb))
                if kb % 4 == 3 and not (i == 3 and kb == 11): k(f"s_add_u32 {s(sHI)}, {s(sHI)}, {4096 if kb < 11 else HO_STEP[i]-8192}")
            return f
        def colsum(j): return [dict(text=f"{MF} {v(CS+4*t,4)}, {a(12*j+4*t,4)}, {v(ONES,4)}, {'0' if j==0 else v(CS+4*t,4)}", vwait=[("w", j)]) for t in range(3)]
        self.poll_check(S2A)
        self.stamp()
        for i in range(10): dma(0, i)()
        JW = self.wf_next // 3
        wn = [self.wf_next]
        mf = []
        for j in range(JW): mf += colsum(j)
        for x in range(2, len(mf), OPT.get("pace0", 3)):
            if wn[0] < 60: mf[x].setdefault("post", []).append(lambda f=wn[0]: self.w13_load(f)); wn[0] += 1
        self.interleave(mf, [])
        PF = 2
        def rd(c, j, a_, h):
            q, jj = divmod(j, 5); r = HF + 8*((20*c + j) % 3) + 4*a_ + 2*h
            return lambda: k.lg(f"ds_read_b64_tr_b16 {v(r,2)}, v{vHB+2*q+a_} offset:{(c&1)*40960 + jj*2048 + 1024*h}", ("f", c, j, a_))
        for j in range(PF):
            k.wait_vm(("h", 0, j))
            for a_ in range(2):
                for h in range(2): rd(0, j, a_, h)()
        self.stamp()
        w2n = [0]
        for c in range(4):
            AC = AC0 + 24*(c & 1); mf = []; n10 = None
            DJ = (OPT.get("dj1", 8), OPT.get("dj2", 6), 4, 4)[c]
            for j in range(20):
                grp = []
                for a_ in range(2):
                    hf = v(HF + 8*((20*c + j) % 3) + 4*a_, 4)
                    if j < 5:
                        grp.append(dict(text=f"{MF} {v(SA+4*a_,4)}, {v(ONES,4)}, {hf}, {'0' if j==0 else v(SA+4*a_,4)}", wait=[("f", c, j, a_)]))
                        grp.append(dict(text=f"{MF} {v(SA+8+4*a_,4)}, {hf}, {hf}, {'0' if j==0 else v(SA+8+4*a_,4)}"))
                    for t in range(3):
                        grp.append(dict(text=f"{MF} {v(AC+12*a_+4*t,4)}, {a(12*j+4*t,4)}, {hf}, {'0' if j==0 else v(AC+12*a_+4*t,4)}", wait=[("f", c, j, a_)]))
                if c == 0 and j >= JW:
                    grp[0]["vwait"] = [("w", j)]; grp += colsum(j)
                post = lambda x, fn: grp[x].setdefault("post", []).append(fn)
                scal = lambda x, fn: grp[x].setdefault("scal", []).append(fn)
                nc, nj = (c, j+PF) if j+PF < 20 else (c+1, j+PF-20)
                if nc < 4:
                    if nj < 5: scal(0, lambda nc=nc, nj=nj: k.wait_vm(("h", nc, nj)))
                    if nj == 5:
                        scal(0, "s_barrier")
                        if c == 0: post(2, lambda: self.arrive(S2B))
                    for x, r_ in zip((0, 1, 3, 4), [rd(nc, nj, a_, h) for a_ in range(2) for h in range(2)]): post(x, r_)
                if c == 0 and j == OPT.get("pb", 18): post(2, lambda: self.poll_issue(S2B))
                if c == 2 and j == 14: post(4, self.flag_issue)
                if c == 1 and j == DJ: post(1, lambda: self.poll_check(S2B))
                if c < 3 and DJ <= j < DJ + 10: post(2, dma(c+1, j-DJ))
                if j == 6:
                    for a_ in range(2): post(2+3*a_, lambda a_=a_: k.lg(f"ds_write_b128 v{vGW}, {v(SA+8+4*a_,4)} offset:{1024*a_}", "sw"))
                if j == 7:
                    for a_ in range(2): post(2+3*a_, lambda a_=a_: k.lg(f"ds_write_b32 v{vSWR}, v{SA+4*a_} offset:{256*a_}", "sw"))
                if j == 10: scal(5, lambda: k.wait_lg("sw")); scal(5, "s_barrier"); n10 = len(mf) + 6
                if c == 0:
                    for x in (2, 5, 8)[:3 if j < 5 else 2]:
                        if wn[0] < 60: post(x, lambda f=wn[0]: self.w13_load(f)); wn[0] += 1
                    assert wn[0] >= min(60, 3*(j+3)), (wn, j)
                pos = []
                if c == 2 or (c == 1 and j >= DJ):
                    if j < DJ or j >= DJ + 10: pos = [2, 5] if j >= 5 else [2, 7]
                    elif w2n[0] < NV: pos = [5]
                if c == 3 and j < 4: pos = [2, 7]
                for x in pos:
                    if w2n[0] < NV + NL: post(x, w2_load(w2n[0])); w2n[0] += 1
                if c >= 2 and j == 2: post(5, lambda c=c: self.flag_set(c-1))
                if c == 3:
                    if j == 4: post(1, lambda: self.flag_check(1))
                    if 4 <= j < 10:
                        post(2, hh_load(0, 2*(j-4))); post(5, hh_load(0, 2*(j-4)+1))
                    if j == 4: assert w2n[0] == NV + NL, w2n
                    if 10 <= j:
                        for x in (2, 5):
                            if w2n[0] < 60: post(x, w2_load(w2n[0])); w2n[0] += 1
                    if j == OPT.get("p2", 11): post(4, self.flag_issue)
                if self.fine == c: scal(0, self.fstamp)
                mf += grp
            fill = []
            if c > 0:
                fill += self.g1_epilogue(AC0 + 24*((c-1) & 1), 3)
                fill.append((0, lambda c=c: k(f"s_add_u32 {s(sHO)}, {s(sHO)}, {HO_STEP[c-1]}"), 3))
            cut = max(0, len(fill) - 12)
            fill = fill[:cut] + self.g1_stats(n10) + fill[cut:] + self.g1_stats2(n10 + 4)
            self.interleave(mf, fill)
            if self.fine == c: self.fstamp()
            if c == 0:
                for r in range(4): k(f"v_mov_b32 v{68+r}, v{64+r}")
                for r in range(4): k(f"v_permlane16_swap_b32 v{64+r}, v{68+r}")
            self.stamp()
        assert w2n[0] == 60
        ACC = [88, 136, 88, 136]
        mf = []
        for i in range(4):
            for kb in range(12):
                for t in range(5):
                    f = 5*kb + t
                    d = dict(text=f"{MF} {v(ACC[i]+4*t,4)}, {w2reg(f)}, {a(48*(i&1)+4*kb,4)}, {'0' if kb==0 else v(ACC[i]+4*t,4)}")
                    vw = [("hi", i, kb)] if t == 0 else []
                    if i == 0:
                        if NV <= f < NV+NL: d["wait"] = [("w2l", f)]
                        else: vw.append(("w2", f))
                    if vw: d["vwait"] = vw
                    mf.append(d)
        post = lambda x, fn: mf[x].setdefault("post", []).append(fn)
        scal = lambda x, fn: mf[x].setdefault("scal", []).append(fn)
        k.wait_vm(("w2", NV+NL-1))
        for f in range(NV, NV+NL): post(f - NV + 2, lambda f=f: k.lg(f"ds_read_b128 {w2reg(f)}, v{vW2R} offset:{1024*(f-NV)}", ("w2l", f)))
        if self.fine == 4: self.fstamp()
        self.flag_check(2)
        ep = self.g1_epilogue(AC0 + 24, 0); nh = 0
        for n, (c_, fn, _) in enumerate(ep):
            fn()
            if n % 16 == 0 and nh < 6: hh_load(1, nh)(); nh += 1
            if n == 40: self.flag_set(3)
        for kb in range(nh, 12): post(1 + 4*(kb-nh), hh_load(1, kb))
        F4 = OPT.get("f4", 55); P3 = OPT.get("p3", 70); P4 = OPT.get("p4", 150); L3 = OPT.get("l3", 45); L4 = OPT.get("l4", 50)
        fill = []
        post(F4, lambda: self.flag_set(4))
        post(P3 - L3, self.flag_issue); post(P3, lambda: self.flag_check(3))
        for kb in range(12): post(P3 + 1 + 2*kb, hh_load(2, kb))
        for i in range(5): post(30 + 3*i, res_dma(i))
        post(P4 - L4, self.flag_issue); post(P4, lambda: self.flag_check(4))
        for kb in range(12): post(P4 + 1 + kb, hh_load(3, kb))
        if self.prof:
            for x in (59, 119, 179): scal(x, self.stamp)
        if self.fine == 4:
            for x in list(range(0, 240, 12)) + [239]: scal(x, self.fstamp)
        scal(59, "s_barrier")
        for i in range(3):
            for t in range(5):
                post(60*(i+1) + 26 + 2*t, lambda i=i, t=t: k.lg(f"ds_write_b128 v{vRW if i<2 else vRW2}, {v(ACC[i]+4*t,4)} offset:{(i%2)*20480 + 1024*t}", "red"))
        R = 10
        for t in range(5): post(200 + 2*t, lambda t=t: k.lg(f"ds_read_b64_tr_b16 {v(R+2*t,2)}, v{vRA} offset:{1024*t}", "red"))
        self.interleave(mf, fill)
        for t in range(5): k(f"ds_write_b128 v{vRW2}, {v(ACC[3]+4*t,4)} offset:{20480 + 1024*t}")
        self.stamp()
        k.wait_lg0(); k("s_barrier")
        AC = 56
        for t in range(5):
            for w_ in range(4): k.lg(f"ds_read_b128 {v(AC+16*t+4*w_,4)}, v{vRR} offset:{5120*w_ + 1024*t}", t)
        O = 20
        for t in range(5):
            k.wait_lg(t); B = AC + 16*t
            for r in range(4): k(f"v_add_f32 v{B+r}, v{B+r}, v{B+4+r}"); k(f"v_add_f32 v{B+8+r}, v{B+8+r}, v{B+12+r}")
            for h in range(2): k(f"v_lshlrev_b32 v{B+4+2*h}, 16, v{R+2*t+h}"); k(f"v_and_b32 v{B+5+2*h}, 0xffff0000, v{R+2*t+h}")
            for r in range(4): k(f"v_add_f32 v{B+r}, v{B+r}, v{B+8+r}")
            for r in range(4): k(f"v_add_f32 v{B+r}, v{B+r}, v{B+4+r}")
            k(f"v_cvt_pk_bf16_f32 v{O+2*t}, v{B}, v{B+1}"); k(f"v_cvt_pk_bf16_f32 v{O+2*t+1}, v{B+2}, v{B+3}")
            if t in (1, 3):
                b = O + 2*(t-1)
                k(f"v_permlane16_swap_b32 v{b}, v{b+2}"); k(f"v_permlane16_swap_b32 v{b+1}, v{b+3}")
                k(f"buffer_store_dwordx4 {v(b,4)}, v{vOP}, {s(rOUT,4)}, {s(sOO)} offen offset:{32*(t-1)}")
        k(f"buffer_store_dwordx2 {v(O+8,2)}, v{vO4}, {s(rOUT,4)}, {s(sOO)} offen")

    def finish(self):
        k = self.k
        if self.prof:
            self.stamp()
            k("s_memtime s[100:101]"); k.wait_lg0(); k(f"s_sub_u32 {s(sSTAMP+self.nst)}, s100, s98"); self.nst += 1
            assert self.nst <= 22
            L = k.newlabel("pf")
            k(f"s_cmp_lg_u32 {s(sW)}, 0"); k(f"s_cbranch_scc1 {L}")
            k(f"s_lshl_b32 {s(sT)}, {s(sID)}, 7"); k(f"s_add_u32 {s(sT)}, {s(sT)}, {WS_PROF}")
            k("s_mov_b64 exec, 1")
            for i in range(self.nst):
                k(f"v_mov_b32 v2, {4*i}"); k(f"v_mov_b32 v3, {s(sSTAMP+i)}")
                k(f"buffer_store_dword v3, v2, {s(rWS,4)}, {s(sT)} offen")
            k("s_mov_b64 exec, -1")
            k.label(L)
        if self.fine >= 0:
            pool = list(range(76, 100, 2)) + list(range(24, 44, 2))
            k("s_waitcnt lgkmcnt(0)")
            k(f"s_lshl_b32 {s(sT)}, {s(sID)}, 2"); k(f"s_add_u32 {s(sT)}, {s(sT)}, {s(sW)}"); k(f"s_lshl_b32 {s(sT)}, {s(sT)}, 7"); k(f"s_add_u32 {s(sT)}, {s(sT)}, {WS_FINE}")
            for i in range(self.nf):
                k(f"v_mov_b32 v2, {4*i}"); k(f"v_mov_b32 v3, {s(pool[i])}")
                k(f"buffer_store_dword v3, v2, {s(rWS,4)}, {s(sT)} offen")
        if self.prof and os.environ.get("SPIN"):
            b_, i_, m_ = [int(x) for x in os.environ["SPIN"].split(",")]
            k(f"s_sub_u32 {s(sT+1)}, {s(sSTAMP+i_)}, {s(sSTAMP)}"); k(f"s_mul_i32 {s(sT+1)}, {s(sT+1)}, {m_}"); k(f"s_add_u32 {s(sT+1)}, {s(sT+1)}, {b_}")
            k("L_SPIN:"); k("s_memrealtime s[100:101]"); k("s_waitcnt lgkmcnt(0)"); k(f"s_sub_u32 {s(sT)}, s100, {s(sSTAMP)}")
            k(f"s_cmp_lt_u32 {s(sT)}, {s(sT+1)}"); k("s_cbranch_scc1 L_SPIN")
        k("s_endpgm")
        k.label("L_LAST")
        self.emit_slow()
        k.label("L_END"); k("s_endpgm")

    def build(self):
        self.prologue()
        self.phase0()
        if self.stop >= 1: self.phase1()
        if self.stop >= 2: self.phase23()
        self.finish()
        self.k.pad()
        hdr = open(os.path.join(os.path.dirname(os.path.abspath(__file__)), "header.txt")).read()
        return (hdr + f"; @launch grid=(256,1,1) block=(256,1,1) lds={LDS_BYTES}\n"
            + '.amdgcn_target "amdgcn-amd-amdhsa--gfx950"\n.text\n'
            + f".globl {KNAME}\n.p2align 8\n.type {KNAME},@function\n{KNAME}:\n" + self.k.text()
            + f""".section .rodata,"a"
.p2align 6
.amdhsa_kernel {KNAME}
  .amdhsa_next_free_vgpr 512
  .amdhsa_next_free_sgpr 102
  .amdhsa_accum_offset 256
  .amdhsa_group_segment_fixed_size 0
  .amdhsa_kernarg_size 104
  .amdhsa_user_sgpr_count 2
  .amdhsa_user_sgpr_kernarg_segment_ptr 1
  .amdhsa_system_sgpr_workgroup_id_x 1
  .amdhsa_float_denorm_mode_32 3
.end_amdhsa_kernel
""")

if __name__ == "__main__":
    import argparse
    ap = argparse.ArgumentParser(); ap.add_argument("-o", default="k.s"); ap.add_argument("--stop", type=int, default=99); ap.add_argument("--prof", action="store_true")
    A = ap.parse_args()
    open(A.o, "w").write(Gen(A.stop, A.prof).build())
```

```python
import re

def v(i, n=1): return f"v{i}" if n == 1 else f"v[{i}:{i+n-1}]"
def a(i, n=1): return f"a{i}" if n == 1 else f"a[{i}:{i+n-1}]"
def s(i, n=1): return f"s{i}" if n == 1 else f"s[{i}:{i+n-1}]"

_REG = re.compile(r"^-?(?:abs\()?\|?([vas])(?:(\d+)|\[(\d+):(\d+)\])\|?\)?$")
TRANS = re.compile(r"^v_(exp|log|rcp|rsq|sqrt|sin|cos)_")

def regs_of(tok):
    tok = tok.strip()
    if tok in ("vcc", "vcc_lo", "vcc_hi"): return {("vcc", 0)}
    if tok in ("exec", "exec_lo", "exec_hi"): return {("exec", 0)}
    if tok == "m0": return {("m0", 0)}
    m = _REG.match(tok)
    if not m: return set()
    k = m.group(1)
    if m.group(2) is not None: return {(k, int(m.group(2)))}
    return {(k, i) for i in range(int(m.group(3)), int(m.group(4)) + 1)}

class Ins:
    def __init__(self, text):
        self.text = text
        t = text.split(";")[0].strip()
        self.label = None; self.mn = ""; self.defs = set(); self.uses = set(); self.ops = []
        self.kind = "other"; self.states = 1; self.target = None
        if not t or t.startswith("."):
            self.kind = "dir"; self.states = 0; return
        if t.endswith(":"):
            self.label = t[:-1]; self.kind = "label"; self.states = 0; return
        p = t.split(None, 1); self.mn = mn = p[0]
        rest = p[1] if len(p) > 1 else ""
        ops = []; depth = 0; cur = ""
        for ch in rest + ",":
            if ch in "[(": depth += 1
            elif ch in "])": depth -= 1
            if ch == "," and depth == 0:
                w = cur.split()
                if w: ops.append(w[0])
                cur = ""
            else: cur += ch
        self.ops = ops
        R = [regs_of(o) for o in ops]
        allr = lambda xs: set().union(*xs) if xs else set()
        self.islds = bool(re.search(r"\blds\b", rest)) or "_lds_" in mn
        self.dpp = ("_dpp" in mn) or ("row_" in rest) or ("quad_perm" in rest)
        if mn == "s_nop":
            self.states = int(rest.strip(), 0) + 1; self.kind = "salu"
        elif mn.startswith("v_mfma"):
            self.kind = "mfma"; self.defs = R[0]; self.uses = allr(R[1:]); self.srcc = R[3]; self.srcab = R[1] | R[2]
            self.passes = 8 if "32x32" in mn else 4
        elif mn.startswith("v_"):
            self.kind = "valu"
            if mn.startswith("v_cmp"):
                self.defs = R[0]; self.uses = allr(R[1:])
            elif mn.startswith("v_permlane") and "swap" in mn:
                self.defs = R[0] | R[1]; self.uses = R[0] | R[1]
            elif re.match(r"v_(add|sub|subrev)_co_|v_(addc|subb)_co_", mn):
                self.defs = R[0] | R[1]; self.uses = allr(R[2:])
            else:
                self.defs = R[0]; self.uses = allr(R[1:])
                if re.match(r"v_(fmac|dot2c|mac|pk_fmac)", mn) or self.dpp: self.uses |= R[0]
                if mn.startswith("v_cndmask") and len(ops) == 3: self.uses |= {("vcc", 0)}
            self.trans = bool(TRANS.match(mn)); self.dot = mn.startswith("v_dot")
        elif mn.startswith("ds_"):
            self.kind = "ds"
            if re.match(r"ds_(read|bpermute|permute|swizzle)", mn): self.defs = R[0]; self.uses = allr(R[1:])
            else: self.uses = allr(R)
        elif re.match(r"(buffer|global|flat)_", mn):
            self.kind = "vmem"
            if "load" in mn and not self.islds: self.defs = R[0]; self.uses = allr(R[1:])
            elif "atomic" in mn and re.search(r"\bsc0\b", rest): self.defs = R[0]; self.uses = allr(R)
            else: self.uses = allr(R)
            if self.islds: self.uses |= {("m0", 0)}
            self.wide_store = ("store" in mn) and ("x3" in mn or "x4" in mn)
            if self.wide_store: self.sdata = R[0] if mn.startswith("buffer") else R[1]
        elif mn.startswith("s_"):
            self.kind = "salu"
            if mn.startswith(("s_branch", "s_cbranch")): self.kind = "branch"; self.target = ops[0]
            elif mn.startswith(("s_cmp", "s_waitcnt", "s_barrier", "s_sleep", "s_endpgm", "s_setprio", "s_bitcmp")): self.uses = allr(R)
            elif mn.startswith(("s_load", "s_memtime", "s_memrealtime")): self.kind = "smem"; self.defs = R[0]; self.uses = allr(R[1:])
            else:
                self.defs = R[0] if R else set(); self.uses = allr(R[1:])
                if mn.startswith(("s_addk", "s_mulk")): self.uses |= R[0]
                if "saveexec" in mn: self.defs |= {("exec", 0)}

def need(p, c):
    n = 0
    vec = lambda S: {r for r in S if r[0] in "va" and r[0] != "vcc"}
    sca = lambda S: {r for r in S if r[0] in ("s", "vcc")}
    if p.kind == "valu":
        raw = vec(p.defs) & c.uses
        if raw:
            if c.kind == "mfma": n = max(n, 2)
            if c.kind == "valu":
                if c.mn.startswith("v_permlane") or c.dpp: n = max(n, 2)
                if c.mn.startswith(("v_readlane", "v_readfirstlane")): n = max(n, 1)
                if p.trans: n = max(n, 1)
        if p.dot and (vec(p.defs) & (c.uses | c.defs)):
            same_c = c.mn == p.mn and len(c.ops) >= 3 and not (vec(p.defs) & (regs_of(c.ops[1]) | regs_of(c.ops[2])))
            if not same_c: n = max(n, 3)
        sw = sca(p.defs) & c.uses
        if sw:
            if c.kind == "valu": n = max(n, 4 if c.mn.startswith(("v_readlane", "v_writelane")) else 2)
            if c.kind == "vmem": n = max(n, 5)
            if c.kind in ("salu", "smem"): n = max(n, 1)
        if ("exec", 0) in p.defs: n = max(n, 5)
    if p.kind == "mfma":
        big = {4: 8, 8: 12}[p.passes]
        if c.kind == "mfma":
            if p.defs & c.srcab: n = max(n, big)
            if (p.defs & c.srcc) and not (p.defs == c.srcc and p.passes == c.passes): n = max(n, big - 2)
            if (p.defs & c.defs) and not (p.defs & c.srcc): n = max(n, big)
        elif p.defs & (c.uses | c.defs): n = max(n, big)
        if c.kind == "valu" and (p.srcc & c.defs): n = max(n, {4: 3, 8: 7}[p.passes])
    if p.kind == "salu" and ("m0", 0) in p.defs and c.kind == "vmem" and c.islds: n = max(n, 1)
    if p.kind == "vmem" and getattr(p, "wide_store", False) and (p.sdata & c.defs): n = max(n, 2)
    return n

class Asm:
    def __init__(self):
        self.L = []
        self.vmq = []; self.lgq = []
        self.uid = 0; self.seen = {'p0', 'poll'}
    def __call__(self, text):
        for line in text.split("\n"):
            line = line.strip()
            if line: self.L.append(Ins(line))
    def label(self, name): self(name + ":")
    def newlabel(self, p="L"):
        self.uid += 1; return f"{p}_{self.uid}"
    def vm(self, text, tag=None): assert tag not in getattr(self, 'waited', ()), tag; self(text); self.vmq.append(tag); self.seen.add(tag)
    def lg(self, text, tag=None): assert tag not in getattr(self, 'waited', ()), tag; self(text); self.lgq.append(tag); self.seen.add(tag)
    def _cnt(self, q, tags):
        if not isinstance(tags, list): tags = [tags]
        for t in tags: assert t in self.seen, f'wait on unissued {t}'
        self.waited = getattr(self, 'waited', set()) | {t for t in tags if isinstance(t, tuple) and t[0] in ('w', 'h', 'f', 'hi', 'w2', 'w2l', 'tr', 'tw')}
        idx = max([i for i, t in enumerate(q) if t in tags], default=-1)
        return None if idx < 0 else len(q) - 1 - idx
    def wait_vm(self, tags):
        n = self._cnt(self.vmq, tags)
        if n is None: return
        n = min(n, 62); self(f"s_waitcnt vmcnt({n})"); self.vmq = self.vmq[len(self.vmq) - n:] if n else []
    def wait_lg(self, tags):
        n = self._cnt(self.lgq, tags)
        if n is None: return
        n = min(n, 14); self(f"s_waitcnt lgkmcnt({n})"); self.lgq = self.lgq[len(self.lgq) - n:] if n else []
    def wait_vm0(self): self("s_waitcnt vmcnt(0)"); self.vmq = []
    def wait_lg0(self): self("s_waitcnt lgkmcnt(0)"); self.lgq = []
    def pad(self):
        L = self.L
        srcs = {}
        for ins in L:
            if ins.kind == "branch": srcs.setdefault(ins.target, []).append(ins)
        out = []; pos = {}
        orig = {id(x): i for i, x in enumerate(L)}
        def back(lst, i, dist, c, seen):
            req = 0
            while i >= 0 and dist < 12:
                p = lst[i]
                if p.kind == "label":
                    for b in srcs.get(p.label, []):
                        key = (id(b), dist)
                        if key in seen: continue
                        seen.add(key)
                        if id(b) in pos: req = max(req, back(out, pos[id(b)] - 1, dist + 1, c, seen))
                        else: req = max(req, back(L, orig[id(b)] - 1, dist + 1, c, seen))
                elif p.mn in ("s_branch", "s_endpgm"):
                    return req
                elif p.kind != "dir":
                    req = max(req, need(p, c) - dist)
                dist += p.states; i -= 1
            return req
        nn = 0
        for c in L:
            if c.kind not in ("label", "dir"):
                r = back(out, len(out) - 1, 0, c, set())
                if r > 0:
                    out.append(Ins(f"s_nop {r-1}")); nn += 1
            pos[id(c)] = len(out); out.append(c)
        self.L = out
        return nn
    def text(self):
        return "\n".join((x.text if x.kind in ("label",) else "  " + x.text) for x in self.L) + "\n"

class It:
    def __init__(self, text=None, q=None, tag=None, pre=(), rel=0, dl=10**9, fn=None, cost=None, fence=False):
        self.text = text; self.q = q; self.tag = tag; self.pre = list(pre); self.rel = rel; self.dl = dl; self.fn = fn; self.fence = fence
        self.ins = Ins(text) if text else None
        if cost is None:
            cost = 0 if text is None else 2 if (getattr(self.ins, "trans", False) or self.ins.mn.startswith("buffer_") or "store" in self.ins.mn or "write" in self.ins.mn) else 1
        self.cost = cost
    def emit_pre(self, k):
        for p in self.pre: p() if callable(p) else k(p)
    def emit(self, k):
        if self.fn: self.fn()
        elif self.text:
            if self.q == "vm": k.vm(self.text, self.tag)
            elif self.q == "lg": k.lg(self.text, self.tag)
            else: k(self.text)

def dep(a, b):
    if a.fence or b.fence or a.ins is None or b.ins is None: return True
    if a.q and a.q == b.q: return True
    A, B = a.ins, b.ins
    return bool((A.defs & (B.uses | B.defs)) or (A.uses & B.defs))

def schedule(k, mf, RQ, LQ, FQ, window=24, PQ=None, pace=5, base=0, plast=-99, boost=None):
    RQ = list(RQ); LQ = list(LQ); FQ = list(FQ); over = 0; quiet = -1
    if PQ is None: PQ = []
    def pre(m):
        if m.get("wait"): k.wait_lg(m["wait"])
        if m.get("vwait"): k.wait_vm(m["vwait"])
    pre(mf[0])
    last = []
    for i, m in enumerate(mf):
        k(m["text"])
        n0 = len(k.L)
        if i + 1 < len(mf): pre(mf[i+1])
        for x in m.get("scal", []): x() if callable(x) else k(x)
        ns = sum(1 for x in k.L[n0:] if x.kind not in ("label", "dir"))
        cap = [2 - max(0, ns - 1)]; free = [1 if ns == 0 else 0]; pick = []
        def price(it): return it.cost + max(0, len(it.pre) - free[0])
        def take(Q, idx=0):
            it = Q.pop(idx); cap[0] -= price(it); free[0] = max(0, free[0] - len(it.pre)); pick.append(it)
        def ready(maxcost, exact=None):
            for idx, it in enumerate(FQ[:window]):
                if it.rel > i:
                    if it.fence: return None
                    continue
                if any(dep(p, it) for p in FQ[:idx]):
                    if it.fence: return None
                    continue
                if it.pre and any(p.fence or p.q or p.fn for p in pick):
                    if it.fence: return None
                    continue
                if it.q == "lg" and i <= quiet: continue
                c = price(it)
                if c <= maxcost and (exact is None or c == exact):
                    if it.ins is not None and any(p.ins is not None and need(p.ins, it.ins) > 0 for p in pick): continue
                    if it.ins is not None and any(p.ins is not None and need(p.ins, it.ins) > 1 + ns for p in last): continue
                    return idx
                if it.fence: return None
            return None
        while LQ and LQ[0].dl <= i: take(LQ)
        dyn = min([pace] + [(x[1] - max(plast, base - 1)) / (n_ + 1) for n_, x in enumerate(PQ[:80])])
        while PQ and (PQ[0][1] <= base + i or (PQ[0][0] <= base + i and base + i - plast >= dyn - 0.3 and plast < base + i and cap[0] == 2 and not pick)):
            its = PQ.pop(0)[2]()
            if any(x.q == "vm" for x in its): plast = base + i
            while its: take(its)
        while RQ and RQ[0].dl <= i:
            assert RQ[0].rel <= i
            take(RQ)
        while RQ and RQ[0].rel <= i and cap[0] > 0 and any(n_ + 1 > 2*(x.dl - i) for n_, x in enumerate(RQ[:16])): take(RQ)
        while True:
            z = ready(0, 0)
            if z is None: break
            take(FQ, z)
        if cap[0] == 2:
            z = ready(2, 2)
            if z is not None and not (LQ and LQ[0].rel <= i and LQ[0].dl - i <= 1): take(FQ, z)
        while cap[0] > 0:
            if LQ and LQ[0].rel <= i and price(LQ[0]) <= cap[0] and not (LQ[0].pre and any(p.q == "vm" or p.fn for p in pick)): take(LQ); continue
            if RQ and RQ[0].rel <= i and i > quiet: take(RQ); continue
            z = ready(cap[0])
            if z is None: break
            take(FQ, z)
        if boost and boost[0] <= i < boost[1]:
            cap[0] += boost[2]
            while cap[0] > 0:
                z = ready(cap[0])
                if z is None: break
                take(FQ, z)
        over += max(0, -cap[0])
        done = set()
        for n_, it in enumerate(pick):
            if it.pre and not any(p.q == "vm" or p.fn or p.fence for p in pick[:n_]): it.emit_pre(k); done.add(n_)
        for n_, it in enumerate(pick):
            if n_ not in done: it.emit_pre(k)
            it.emit(k)
        last = pick[-1:]
        if any(p.ins is not None and p.ins.mn == "ds_write_b128" for p in pick): quiet = i + 2
    left = sum(x.cost for x in RQ + LQ + FQ)
    for Q in (LQ, RQ, FQ):
        for it in Q: it.emit_pre(k); it.emit(k)
    return over, left, plast
```

```python
import sys, os
sys.path.insert(0, os.path.dirname(os.path.abspath(__file__)))
from asmlib import *

KNAME = "sequential_preLN__ssm_conv_h3__glu_gated_swiglu__prompt_kernel"
OPT = dict(ssm=0, nt0="", nt1="", wrate=4, presleep=0, st0="", st1="", norp=0)
for kv_ in os.environ.get("OPT", "").split(","):
    if "=" in kv_:
        a_, b_ = kv_.split("="); OPT[a_] = int(b_) if b_.lstrip("-").isdigit() else b_
WS_SYNC = 0x0
WS_F3   = 0x80000
WS_PROF = 0x30000
WS_STAT = 0x40000
WS_FINE = 0x1800000
WS_CS   = 0x700000
WS_KVT  = 0x100000
WS_XT   = 0x400000
WS_W13  = 0x800000
WS_W2   = 0xC00000
WS_HC   = 0xE00000
WS_HH   = 0x1100000
WS_SIZE = 0x2000000
NSH = 16
BST = 10240 + OPT.get('bpad', 128)
CST = 40960 + OPT.get('cpad', 128)
S1, SW, S2A, S2B = 0, 1, 2, 3
L_TOEP = 0; CSTR = 4160
L_U = 49920; L_UD = L_U + 1440
L_XI = L_U + 13728
L_ST = 75968
L_PART = 92416
L_P0 = L_PART; L_P0X = L_P0; L_P0K = L_P0 + 10240; L_P0V = L_P0 + 30720
L_RP = 133376
L_GR = 81920; L_SM = L_GR + 8192
L_W2 = 92160
LDS_BYTES = 163840
sID, sW = 2, 3
sDBG, sDP = 4, 6
rK, rV, rX, rWS, rSS, rSH, rW1, rW3, rW2, rOUT = 8, 12, 16, 20, 24, 28, 32, 36, 40, 44
sXG, sM, sSB, sC0, sE, sR, sC = 48, 49, 50, 51, 52, 53, 54
sT = 56
sX = 64
sDV = 70
sCNT = 73
sGK, sGX, sGL, sSTL, sSTS, sHF, sHH, sW13, sHS, sHL, sHO, sW2 = 8, 9, 10, 11, 12, 13, 14, 15, 16, 17, 18, 19
sHI, sOO, sRS, sW2L = 68, 69, 74, 75
sKS, sXS = 55, 63
sSTAMP = 76
vL16, vARR, vPOL, vONE, vPV = 4, 5, 6, 7, 8
vGO = 9
vAF, vBF, vAH, vBH = 12, 13, 14, 15
vXF, vSF, vGF = 16, 17, 18
vPH, vXH, vSH, vGH = 19, 20, 21, 22
vPW, vPR, vPWH = 23, 24, 25
vHB = 26
vSP, vSMX, vGW, vSWR, vGR, vSR = 34, 35, 36, 37, 38, 39
vFW, vFR = 40, 41
vRA, vOP, vO4 = 42, 43, 48
ONES = 44
vRW, vRW2, vRR, vW2R = 49, 50, 51, 52
vT16 = 53
vWA, vHA, vIA = 53, 0, 2
vRL, vRA4, vRA2 = 240, 244, 248
sCD, sCS = 32, 36
vP1, vCS1, vCS2 = 250, 251, 252
sRP, sRP2, sRD, sRD2 = 0, 1, 28, 6
TIMER = "s_memtime" if os.environ.get("CYC") else "s_memrealtime"
MF = "v_mfma_f32_16x16x32_bf16"

class Gen:
    def __init__(self, stop=99, prof=False, dbgsel=None):
        self.dbgsel = dbgsel
        self.k = Asm(); self.stop = stop; self.prof = prof; self.nst = 0; self.slow = []; self.nf = 0; self.cur = {}; self.fine = int(os.environ.get('FINE', -1))
    def stamp(self):
        if self.prof:
            k = self.k
            k(f"{TIMER} s[100:101]"); k.wait_lg0(); k(f"s_mov_b32 {s(sSTAMP + self.nst)}, s100"); self.nst += 1
    def f7(self):
        if self.fine == 7: self.fstamp()
    def fstamp(self):
        pool = list(range(76, 100, 2)) + [24, 26, 32, 34, 36, 38, 64, 66, 70, 4]
        self.k(f"s_memtime {s(pool[self.nf], 2)}"); self.nf += 1
    def arrive(self, idx):
        self.k.vm(f"buffer_atomic_add v{vONE}, v{vARR}, {s(rWS,4)}, 0 offen offset:{256*idx} sc1", "arr")
    def poll_issue(self, idx):
        self.k.vm(f"buffer_load_dword v{vPV}, v{vPOL}, {s(rWS,4)}, 0 offen offset:{256*idx} sc1", "poll")
    def check(self, load, cmp):
        k = self.k; S = k.newlabel("slow"); B = k.newlabel("back")
        k.wait_vm("poll"); k(cmp); k(f"s_cbranch_vccnz {S}"); k.label(B)
        self.slow.append((S, B, load, cmp))
    def poll_check(self, idx):
        self.check(f"buffer_load_dword v{vPV}, v{vPOL}, {s(rWS,4)}, 0 offen offset:{256*idx} sc1", f"v_cmp_ne_u32 vcc, {256//NSH}, v{vPV}")
    def flag_issue(self): self.k.vm(f"buffer_load_dword v{vPV}, v{vFR}, {s(rWS,4)}, 0 offen sc1", "poll")
    def flag_check(self, n): self.check(f"buffer_load_dword v{vPV}, v{vFR}, {s(rWS,4)}, 0 offen sc1", f"v_cmp_gt_u32 vcc, {n}, v{vPV}")
    def emit_slow(self):
        k = self.k
        for S, B, load, cmp in self.slow:
            Lp = k.newlabel("sp")
            k.label(S); k(f"s_mov_b32 {s(sCNT)}, 0x40000"); k.label(Lp)
            k(load); k("s_waitcnt vmcnt(0)"); k(cmp); k(f"s_cbranch_vccz {B}")
            k("s_sleep 1"); k(f"s_sub_u32 {s(sCNT)}, {s(sCNT)}, 1"); k(f"s_cmp_lg_u32 {s(sCNT)}, 0"); k(f"s_cbranch_scc1 {Lp}")
            k(f"s_branch {B}")

    def prologue(self):
        k = self.k; sP = 8; sN = 10
        if self.prof: k(f"{TIMER} {s(sSTAMP,2)}"); k("s_memtime s[98:99]"); self.nst = 1
        self.f7()
        k(f"s_cmpk_ge_u32 {s(sID)}, 0x100"); k("s_cbranch_scc1 L_END")
        k(f"v_readfirstlane_b32 {s(sW)}, v0"); k(f"s_getpc_b64 {s(sT+2,2)}"); k.label("L_PC")
        k(f"s_lshr_b32 {s(sM)}, {s(sID)}, 3"); k(f"s_lshr_b32 {s(sT)}, {s(sW)}, 3")
        k(f"s_load_dwordx2 {s(sP,2)}, s[0:1], {s(sT)}"); k("s_load_dwordx4 s[12:15], s[0:1], 88")
        k(f"s_lshl_b32 {s(sT+1)}, {s(sM)}, 8"); k(f"v_add_lshl_u32 v2, v0, {s(sT+1)}, 3"); k("v_min_u32 v2, L_LAST-L_PC, v2")
        k(f"global_load_dword v254, v2, {s(sT+2,2)}")
        k(f"s_lshr_b32 {s(sW)}, {s(sW)}, 6"); k(f"s_and_b32 {s(sXG)}, {s(sID)}, 7")
        k("v_and_b32 v1, 63, v0"); k(f"s_lshl_b32 {s(sSB)}, {s(sXG)}, 5"); k(f"s_add_u32 {s(sSB)}, {s(sSB)}, {s(sM)}")
        k(f"v_lshlrev_b32 v{vL16}, 4, v1"); k("v_lshrrev_b32 v3, 3, v1")
        k(f"s_cmp_eq_u32 {s(sW)}, 3"); k("s_cbranch_scc1 L_W3")
        k("v_and_b32 v2, 6, v3")
        k(f"s_mov_b32 {s(sT)}, {0xEAA554 << 6}"); k(f"s_movk_i32 {s(sT+1)}, 0xc0"); k(f"v_lshrrev_b32_e64 v2, v2, {s(sT)}")
        k(f"v_bitop3_b32 v64, v2, {s(sT+1)}, v{vL16} bitop3:0x6a"); k("v_lshrrev_b32 v2, 8, v2")
        k(f"v_bitop3_b32 v65, v2, {s(sT+1)}, v{vL16} bitop3:0x6a"); k("v_lshrrev_b32 v2, 8, v2")
        k(f"v_bitop3_b32 v66, v2, {s(sT+1)}, v{vL16} bitop3:0x6a"); k(f"v_xor_b32 v67, 0x10c0, v{vL16}")
        k(f"s_min_u32 {s(sN)}, {s(sSB)}, 1"); k(f"s_and_b32 {s(sN)}, {s(sN)}, {s(sW)}")
        k(f"s_lshl_b32 {s(sT)}, {s(sSB)}, 1"); k(f"s_sub_u32 {s(sT)}, {s(sT)}, {s(sN)}")
        k(f"s_mul_i32 {s(sT+1)}, {s(sW)}, 3"); k(f"s_sub_u32 {s(sT+1)}, {s(sT+1)}, {s(sN)}")
        k(f"s_mulk_i32 {s(sT)}, 5120"); k(f"s_mulk_i32 {s(sT+1)}, 5120"); k(f"s_add_u32 m0, {s(sT+1)}, {L_P0}")
        k("s_waitcnt lgkmcnt(0)")
        k(f"s_add_u32 {s(sP)}, {s(sP)}, {s(sT)}"); k(f"s_addc_u32 {s(sP+1)}, {s(sP+1)}, 0")
        NT = OPT["nt0"]
        k.label("L_LD")
        k(f"global_load_lds_dwordx4 v{vL16}, {s(sP,2)} {NT}")
        for p in range(3): k(f"global_load_lds_dwordx4 v{64+p}, {s(sP,2)} offset:{1024*(p+1)} {NT}")
        k("s_addk_i32 m0, 0x1000"); k(f"s_addk_i32 {s(sN)}, -1")
        k(f"global_load_lds_dwordx4 v67, {s(sP,2)} {NT}")
        k("s_addk_i32 m0, 0x400"); k(f"s_add_u32 {s(sP)}, {s(sP)}, 5120"); k(f"s_addc_u32 {s(sP+1)}, {s(sP+1)}, 0")
        k(f"s_cmp_gt_i32 {s(sN)}, -2"); k("s_cbranch_scc1 L_LD")
        k("s_branch L_COMMON")
        k.label("L_W3")
        k(f"s_mov_b32 m0, {L_P0 + 25600}"); k(f"s_cmp_lg_u32 {s(sM)}, 0"); k("s_waitcnt lgkmcnt(0)"); k("s_cbranch_scc1 L_W3B")
        for i in range(4): k(f"v_mov_b32 v{204+i}, 0")
        k("v_lshlrev_b32 v3, 10, v3"); k(f"v_and_b32 v2, 0x70, v{vL16}"); k(f"s_lshl_b32 {s(sT+2)}, {s(sXG)}, 14"); k(f"v_add3_u32 v2, v2, v3, {s(sT+2)}"); k("v_add_u32 v3, 0x2000, v2")
        k("global_store_dwordx4 v2, v[204:207], s[14:15] sc1"); k("global_store_dwordx4 v3, v[204:207], s[14:15] sc1")
        k.label("L_W3B")
        for p in range(4): k(f"global_load_lds_dwordx4 v{vL16}, {s(sP,2)} offset:{1024*p}")
        k("s_addk_i32 m0, 0x1000"); k(f"v_add_u32 v2, 0x1000, v{vL16}"); k(f"global_load_lds_dwordx4 v2, {s(sP,2)}")
        k.label("L_COMMON")
        self.f7()
        for r, off in ((rSS, 32), (sDP, 40), (rW1, 56), (rW3, 64), (rW2, 72), (rOUT, 80)):
            k(f"s_load_dwordx2 {s(r,2)}, s[0:1], {off}")
        k(f"s_mov_b64 {s(sDBG,2)}, s[12:13]"); k(f"s_mov_b64 {s(rWS,2)}, s[14:15]")
        for r, n in ((rWS, WS_SIZE), (rSS, 2621440), (rW1, 1966080), (rW3, 1966080), (rW2, 1966080), (rOUT, 2621440)):
            k(f"s_mov_b32 {s(r+2)}, {n}"); k(f"s_mov_b32 {s(r+3)}, 0x20000")

    def roles(self):
        k = self.k
        k(f"s_and_b32 {s(sE)}, {s(sM)}, 1"); k(f"s_lshr_b32 {s(sT)}, {s(sM)}, 1"); k(f"s_mul_i32 {s(sT)}, {s(sT)}, 5")
        k(f"s_mul_i32 {s(sC0)}, {s(sXG)}, 80"); k(f"s_add_u32 {s(sC0)}, {s(sC0)}, {s(sT)}")
        k(f"s_lshl_b32 {s(sT)}, {s(sE)}, 1"); k(f"s_add_u32 {s(sC0)}, {s(sC0)}, {s(sT)}")
        k(f"s_lshr_b32 {s(sR)}, {s(sXG)}, 2"); k(f"s_lshl_b32 {s(sR)}, {s(sR)}, 3"); k(f"s_lshr_b32 {s(sT)}, {s(sM)}, 2"); k(f"s_add_u32 {s(sR)}, {s(sR)}, {s(sT)}")
        k(f"s_and_b32 {s(sC)}, {s(sXG)}, 3"); k(f"s_lshl_b32 {s(sC)}, {s(sC)}, 2"); k(f"s_and_b32 {s(sT)}, {s(sM)}, 3"); k(f"s_add_u32 {s(sC)}, {s(sC)}, {s(sT)}")

    def consts1(self):
        k = self.k; t0, t1, t2, t3 = 56, 57, 58, 59; vN, vG, vG1 = 60, 61, 62
        S = lambda i: s(sT+i)
        k(f"s_and_b32 {S(0)}, {s(sM)}, {NSH-1}"); k(f"s_lshl_b32 {S(0)}, {S(0)}, 10"); k(f"v_lshlrev_b32 v{t0}, 14, v0"); k(f"v_add_u32 v{t0}, {S(0)}, v{t0}"); k(f"v_mov_b32 v{t1}, 0x7ffff000")
        k(f"v_cmp_gt_u32 vcc, 8, v0"); k(f"v_cndmask_b32 v{vARR}, v{t1}, v{t0}, vcc")
        k(f"v_and_b32 v{vN}, 15, v1"); k(f"v_lshrrev_b32 v{vG}, 4, v1"); k(f"v_and_b32 v{vG1}, 1, v{vG}")
        k(f"v_and_b32 v{vPOL}, 3, v1"); k(f"v_lshlrev_b32 v{vPOL}, 10, v{vPOL}"); k(f"s_lshl2_add_u32 {S(0)}, {s(sXG)}, {s(sW)}"); k(f"s_lshl_b32 {S(0)}, {S(0)}, 12"); k(f"v_add_u32 v{vPOL}, {S(0)}, v{vPOL}")
        for i in range(3):
            k(f"v_add_u32 v{t0}, {64*i}, v1"); k(f"v_mul_u32_u24 v{t1}, 21846, v{t0}"); k(f"v_lshrrev_b32 v{t1}, 16, v{t1}")
            k(f"v_mul_u32_u24 v{t1}, {BST-48}, v{t1}"); k(f"v_lshl_add_u32 v{vGO+i}, v{t0}, 4, v{t1}")
        k(f"s_mul_i32 {S(0)}, {s(sW)}, {64*BST}"); k(f"s_lshl_b32 {S(1)}, {s(sC0)}, 4"); k(f"s_add_u32 {S(0)}, {S(0)}, {S(1)}")
        k(f"s_add_u32 {s(sGX)}, {S(0)}, {WS_XT}"); k(f"s_add_u32 {s(sGK)}, {S(0)}, {WS_KVT}")
        k(f"s_mul_i32 {s(sGL)}, {s(sW)}, 3072"); k(f"s_lshl_b32 {s(sSTL)}, {s(sW)}, 12"); k(f"s_add_u32 {s(sSTL)}, {s(sSTL)}, {L_ST}")
        k(f"s_lshl_b32 {s(sSTS)}, {s(sW)}, 12"); k(f"s_add_u32 {s(sSTS)}, {s(sSTS)}, {WS_STAT}")
        k(f"v_lshl_add_u32 v{t2}, v{vN}, 1, v{vG}"); k(f"v_mul_u32_u24 v{t2}, 48, v{t2}")
        k(f"v_sub_u32 v{t3}, 15, v{vN}"); k(f"v_lshl_add_u32 v{t3}, v{vG}, 3, v{t3}")
        k(f"v_and_b32 v{t0}, 3, v{t3}"); k(f"v_mul_u32_u24 v{t0}, {CSTR}, v{t0}"); k(f"v_and_b32 v{t3}, 0xfc, v{t3}"); k(f"v_lshl_add_u32 v{t3}, v{t3}, 1, v{t0}")
        sCF, sCH = S(4), S(5)
        k(f"s_lshr_b32 {sCF}, {s(sW)}, 1"); k(f"s_add_u32 {sCF}, {sCF}, {s(sE)}"); k(f"s_lshl_b32 {sCH}, {s(sE)}, 1"); k(f"s_sub_u32 {sCH}, 2, {sCH}")
        for ch, vA, vB, full in ((sCF, vAF, vBF, True), (sCH, vAH, vBH, False)):
            if full: k(f"s_and_b32 {S(0)}, {s(sW)}, 1"); k(f"s_lshl_b32 {S(0)}, {S(0)}, 2"); k(f"s_sub_u32 {S(0)}, 4, {S(0)}")
            else: k(f"s_lshl_b32 {S(0)}, {s(sW)}, 1"); k(f"s_sub_u32 {S(0)}, 6, {S(0)}")
            k(f"s_mul_i32 {S(1)}, {ch}, {4*CSTR}"); k(f"s_lshl_b32 {S(2)}, {S(0)}, 6"); k(f"s_add_u32 {S(1)}, {S(1)}, {S(2)}"); k(f"v_add_u32 v{vA}, {S(1)}, v{t3}")
            k(f"s_lshl_b32 {S(1)}, {ch}, 4"); k(f"s_mul_i32 {S(2)}, {S(0)}, 192"); k(f"s_add_u32 {S(1)}, {S(1)}, {S(2)}"); k(f"s_add_u32 {S(1)}, {S(1)}, {L_U}"); k(f"v_add_u32 v{vB}, {S(1)}, v{t2}")
        k(f"v_lshlrev_b32 v{t0}, 5, v{vG1}"); k(f"v_lshl_add_u32 v{t0}, v{vN}, 1, v{t0}"); k(f"v_lshrrev_b32 v{t1}, 1, v{vG}"); k(f"v_add_u32 v{t0}, v{t0}, v{t1}")
        k(f"s_and_b32 {S(0)}, {s(sW)}, 1"); k(f"s_lshl_b32 {S(0)}, {S(0)}, 6"); k(f"v_add_u32 v{t0}, {S(0)}, v{t0}")
        k(f"s_lshl_b32 {S(0)}, {sCF}, 4"); k(f"s_add_u32 {S(0)}, {S(0)}, {L_XI}"); k(f"v_mul_u32_u24 v{t1}, 48, v{t0}"); k(f"v_add_u32 v{vXF}, {S(0)}, v{t1}")
        k(f"v_xor_b32 v{t1}, v{t0}, v{vG1}"); k(f"v_lshlrev_b32 v{t1}, 6, v{t1}"); k(f"v_bfe_u32 v{vSF}, v{t0}, 2, 2"); k(f"v_lshl_add_u32 v{t1}, v{vSF}, 4, v{t1}"); k(f"v_add_u32 v{vSF}, {L_ST}, v{t1}")
        k(f"s_add_u32 {S(0)}, {s(sC0)}, {sCF}"); k(f"s_lshr_b32 {S(1)}, {S(0)}, 1"); k(f"s_and_b32 {S(1)}, {S(1)}, 2")
        k(f"s_lshl_b32 {s(sHF)}, {S(0)}, 6"); k(f"s_add_u32 {s(sHF)}, {s(sHF)}, {WS_HC}")
        k(f"v_lshrrev_b32 v{t1}, 2, v{t0}"); k(f"v_mul_u32_u24 v{t1}, {CST}, v{t1}"); k(f"v_and_b32 v{t0}, 3, v{t0}"); k(f"v_xor_b32 v{t0}, {S(1)}, v{t0}"); k(f"v_lshl_add_u32 v{vGF}, v{t0}, 4, v{t1}")
        k(f"v_and_b32 v{t0}, 127, v0"); k(f"v_lshrrev_b32 v{t1}, 3, v{t0}"); k(f"v_bfe_u32 v{t2}, v{t0}, 1, 2")
        k(f"v_lshl_add_u32 v{t1}, v{t2}, 2, v{t1}"); k(f"v_and_b32 v{t1}, 15, v{t1}"); k(f"v_lshl_add_u32 v{t1}, v{t2}, 4, v{t1}"); k(f"v_lshlrev_b32 v{t1}, 4, v{t1}")
        k(f"v_and_b32 v{t2}, 1, v{t0}"); k(f"v_lshl_add_u32 v{t1}, v{t2}, 3, v{t1}")
        k(f"s_lshr_b32 {S(0)}, {s(sW)}, 1"); k(f"s_lshl_b32 {S(1)}, {S(0)}, 10"); k(f"s_add_u32 {S(1)}, {S(1)}, {L_PART + 16384}"); k(f"v_add_u32 v{vPH}, {S(1)}, v{t1}")
        k(f"s_mul_i32 {S(1)}, {S(0)}, 3"); k(f"s_add_u32 {S(0)}, {S(0)}, 1"); k(f"s_cmp_eq_u32 {s(sE)}, 0"); k(f"s_cselect_b32 {S(0)}, {S(1)}, {S(0)}")
        k(f"s_and_b32 {S(2)}, {S(0)}, 1"); k(f"s_lshl_b32 {S(0)}, {S(0)}, 5")
        k(f"v_lshrrev_b32 v{t1}, 2, v{t0}"); k(f"v_add_u32 v{t1}, {S(0)}, v{t1}")
        k(f"v_and_b32 v{t3}, 3, v{t0}")
        k(f"s_lshl_b32 {S(0)}, {sCH}, 4"); k(f"s_add_u32 {S(0)}, {S(0)}, {L_XI}"); k(f"v_mul_u32_u24 v{vXH}, 48, v{t1}"); k(f"v_lshl_add_u32 v{vXH}, v{t3}, 2, v{vXH}"); k(f"v_add_u32 v{vXH}, {S(0)}, v{vXH}")
        k(f"v_xor_b32 v{vSH}, {S(2)}, v{t1}"); k(f"v_lshlrev_b32 v{vSH}, 6, v{vSH}"); k(f"v_lshl_add_u32 v{vSH}, v{t2}, 3, v{vSH}")
        k(f"v_bfe_u32 v{t0}, v{t0}, 1, 1"); k(f"v_bfe_u32 v{t2}, v{t1}, 2, 2"); k(f"v_xor_b32 v{t0}, v{t0}, v{t2}"); k(f"v_lshl_add_u32 v{vSH}, v{t0}, 4, v{vSH}"); k(f"v_add_u32 v{vSH}, {L_ST}, v{vSH}")
        k(f"s_add_u32 {S(0)}, {s(sC0)}, {sCH}"); k(f"s_lshr_b32 {S(1)}, {S(0)}, 1"); k(f"s_and_b32 {S(1)}, {S(1)}, 2")
        k(f"s_lshl_b32 {s(sHH)}, {S(0)}, 6"); k(f"s_add_u32 {s(sHH)}, {s(sHH)}, {WS_HC}")
        k(f"v_lshrrev_b32 v{t0}, 2, v{t1}"); k(f"v_mul_u32_u24 v{t0}, {CST}, v{t0}"); k(f"v_lshl_add_u32 v{t0}, v{t3}, 2, v{t0}"); k(f"v_and_b32 v{t1}, 3, v{t1}"); k(f"v_xor_b32 v{t1}, {S(1)}, v{t1}"); k(f"v_lshl_add_u32 v{vGH}, v{t1}, 4, v{t0}")
        k(f"s_lshl_b32 {S(0)}, {s(sW)}, 11"); k(f"s_add_u32 {S(1)}, {S(0)}, {L_PART}"); k(f"v_add_u32 v{vPW}, {S(1)}, v{vL16}")
        k(f"v_lshl_add_u32 v{t0}, v{vG}, 2, v{vN}"); k(f"v_and_b32 v{t0}, 15, v{t0}"); k(f"v_lshl_add_u32 v{t0}, v{vG}, 4, v{t0}"); k(f"v_lshlrev_b32 v{t0}, 4, v{t0}"); k(f"v_add_u32 v{vPWH}, {S(1)}, v{t0}")
        k(f"s_xor_b32 {S(0)}, {S(0)}, 2048"); k(f"s_add_u32 {S(1)}, {S(0)}, {L_PART}"); k(f"v_add_u32 v{vPR}, {S(1)}, v{vL16}")
        k(f"s_lshl_b32 {S(0)}, {s(sW)}, 12"); k(f"s_add_u32 {S(0)}, {S(0)}, {L_PART}"); k(f"v_add_u32 v{vP1+3}, {S(0)}, v{vL16}")
        k(f"s_lshr_b32 {S(0)}, {s(sW)}, 1"); k(f"s_lshl_b32 {S(0)}, {S(0)}, 13"); k(f"s_and_b32 {S(1)}, {s(sW)}, 1"); k(f"s_lshl_b32 {S(1)}, {S(1)}, 11"); k(f"s_add_u32 {S(0)}, {S(0)}, {S(1)}"); k(f"s_add_u32 {S(0)}, {S(0)}, {L_PART}")
        k(f"v_lshlrev_b32 v{t0}, 10, v{vG1}"); k(f"v_lshrrev_b32 v{t1}, 1, v{vG}"); k(f"v_lshl_add_u32 v{t0}, v{t1}, 9, v{t0}"); k(f"v_lshl_add_u32 v{t0}, v{vN}, 4, v{t0}"); k(f"v_add_u32 v{vP1}, {S(0)}, v{t0}")
        k(f"v_lshlrev_b32 v{t0}, 6, v{vN}"); k(f"v_lshl_add_u32 v{vCS1}, v{vG}, 4, v{t0}"); k(f"v_mov_b32 v{t1}, 0x7ffff000"); k(f"v_cmp_gt_u32 vcc, 4, v{vN}"); k(f"v_cndmask_b32 v{vCS2}, v{t1}, v{vCS1}, vcc")
        k(f"v_cmp_eq_u32 vcc, 0, v{vN}"); k(f"v_cndmask_b32 v{vP1+4}, v{t1}, v{vCS1}, vcc")
    def consts2(self):
        k = self.k; t0, t1, t2, t3 = 56, 57, 58, 59; vN, vG, vG1 = 60, 61, 62
        S = lambda i: s(sT+i)
        k(f"s_lshl_b32 {S(6)}, {s(sC)}, 2"); k(f"s_add_u32 {S(6)}, {S(6)}, {s(sW)}")
        k(f"s_mul_i32 {s(sW13)}, {S(6)}, {20*3072}"); k(f"s_add_u32 {s(sW13)}, {s(sW13)}, {WS_W13}")
        k(f"s_mul_i32 {s(sCS)}, {S(6)}, 3840"); k(f"s_add_u32 {s(sCS)}, {s(sCS)}, {WS_CS}")
        k(f"v_lshrrev_b32 v{t0}, 2, v1"); k(f"v_lshlrev_b32 v{t0}, 6, v{t0}"); k(f"v_and_b32 v{t1}, 3, v1"); k(f"v_lshl_add_u32 v{t0}, v{t1}, 3, v{t0}")
        k(f"v_lshl_add_u32 v{t2}, v{vG1}, 5, v{t0}")
        for q in range(4):
            k(f"s_add_u32 {S(1)}, {s(sW)}, {q}"); k(f"s_and_b32 {S(1)}, {S(1)}, 3"); k(f"s_mul_i32 {S(1)}, {S(1)}, 10240")
            k(f"v_add_u32 v{vHB+2*q}, {S(1)}, v{t2}"); k(f"v_xor_b32 v{vHB+2*q+1}, 32, v{vHB+2*q}")
        k(f"v_mul_u32_u24 v{t2}, 49152, v{vG1}"); k(f"v_lshl_add_u32 v{t2}, v{vN}, 4, v{t2}"); k(f"v_lshrrev_b32 v{t3}, 1, v{vG}")
        k(f"v_lshl_add_u32 v{vSP}, v{t3}, 8, v{t2}"); k(f"v_lshl_add_u32 v{vSMX}, v{t3}, 3, v{t2}")
        k(f"s_and_b32 {S(1)}, {S(6)}, 15"); k(f"s_lshl_b32 {S(2)}, {S(1)}, 9"); k(f"v_add_u32 v{vSP}, {S(2)}, v{vSP}"); k(f"s_lshl_b32 {S(2)}, {S(1)}, 8"); k(f"s_add_u32 {S(2)}, {S(2)}, 8192"); k(f"v_add_u32 v{vSMX}, {S(2)}, v{vSMX}")
        k(f"s_lshl_b32 {S(1)}, {s(sW)}, 11"); k(f"s_add_u32 {S(1)}, {S(1)}, {L_GR}"); k(f"v_add_u32 v{vGW}, {S(1)}, v{vL16}")
        k(f"s_lshl_b32 {S(1)}, {s(sW)}, 9"); k(f"s_add_u32 {S(1)}, {S(1)}, {L_SM}"); k(f"v_lshlrev_b32 v{vSWR}, 2, v1"); k(f"v_add_u32 v{vSWR}, {S(1)}, v{vSWR}")
        k(f"v_lshrrev_b32 v{t2}, 2, v{vN}"); k(f"v_lshl_add_u32 v{t2}, v{t2}, 4, v{vN}"); k(f"v_lshlrev_b32 v{t2}, 4, v{t2}"); k(f"v_lshl_add_u32 v{t2}, v{t1}, 2, v{t2}")
        k(f"v_lshl_add_u32 v{t2}, v{vG1}, 10, v{t2}"); k(f"v_add_u32 v{vGR}, {L_GR}, v{t2}")
        k(f"v_lshlrev_b32 v{t2}, 2, v{vN}"); k(f"v_lshl_add_u32 v{t2}, v{vG1}, 8, v{t2}"); k(f"v_add_u32 v{vSR}, {L_SM}, v{t2}")
        for i in range(4): k(f"v_mov_b32 v{ONES+i}, 0x3f803f80")
        k(f"s_mul_i32 {s(sHS)}, {s(sR)}, {2*CST}"); k(f"s_mul_i32 {s(sHL)}, {s(sW)}, 10240"); k(f"s_add_u32 {s(sHS)}, {s(sHS)}, {s(sHL)}"); k(f"s_add_u32 {s(sHS)}, {s(sHS)}, {WS_HC}")
        k(f"s_mul_i32 {s(sHO)}, {s(sR)}, {2*98304}"); k(f"s_lshr_b32 {S(1)}, {s(sC)}, 2"); k(f"s_mul_i32 {S(1)}, {S(1)}, 12288"); k(f"s_add_u32 {s(sHO)}, {s(sHO)}, {S(1)}"); k(f"s_add_u32 {s(sHO)}, {s(sHO)}, {WS_HH}")
        k(f"s_lshl2_add_u32 {S(0)}, {s(sR)}, {s(sW)}"); k(f"s_lshl_b32 {S(0)}, {S(0)}, 11"); k(f"s_lshr_b32 {S(2)}, {s(sC)}, 2"); k(f"s_lshl_b32 {S(2)}, {S(2)}, 7")
        k(f"s_add_u32 {S(0)}, {S(0)}, {S(2)}"); k(f"s_add_u32 {S(0)}, {S(0)}, {WS_F3}"); k(f"v_bfe_u32 v{vFR}, v1, 2, 2"); k(f"v_lshlrev_b32 v{vFR}, 9, v{vFR}"); k(f"v_lshl_add_u32 v{vFR}, v{t1}, 2, v{vFR}"); k(f"v_add_u32 v{vFR}, {S(0)}, v{vFR}")
        sDT, sHf, sCK = S(3), S(4), S(5)
        k(f"s_and_b32 {sDT}, {s(sC)}, 7"); k(f"s_lshr_b32 {sHf}, {s(sC)}, 3")
        k(f"s_lshl_b32 {sCK}, {s(sR)}, 1"); k(f"s_and_b32 {S(1)}, {s(sW)}, 1"); k(f"s_add_u32 {sCK}, {sCK}, {S(1)}")
        k(f"s_lshr_b32 {S(1)}, {s(sW)}, 1"); k(f"s_lshl_b32 {S(1)}, {S(1)}, 5"); k(f"s_add_u32 {sCK}, {sCK}, {S(1)}")
        k(f"s_mul_i32 {S(1)}, {sDT}, 48"); k(f"s_mul_i32 {S(2)}, {s(sW)}, 12"); k(f"s_add_u32 {S(1)}, {S(1)}, {S(2)}"); k(f"s_mul_i32 {s(sW2)}, {S(1)}, 5120"); k(f"s_add_u32 {s(sW2)}, {s(sW2)}, {WS_W2}")
        k(f"s_mul_i32 {s(sRS)}, {sCK}, {CST}"); k(f"s_mul_i32 {S(2)}, {sDT}, 5120"); k(f"s_add_u32 {s(sRS)}, {s(sRS)}, {S(2)}"); k(f"s_add_u32 {s(sRS)}, {s(sRS)}, {WS_HC}")
        k(f"v_xor_b32 v{t2}, {sHf}, v{vG1}"); k(f"v_lshl_add_u32 v{t2}, v{t2}, 5, v{t0}"); k(f"v_add_u32 v{vRA}, {s(sHL)}, v{t2}")
        k(f"v_mul_u32_u24 v{t2}, 1280, v{vN}"); k(f"v_lshl_add_u32 v{vO4}, v{vG}, 3, v{t2}"); k(f"v_add_u32 v{vO4}, 128, v{vO4}")
        k(f"v_lshl_add_u32 v{t2}, v{vG1}, 5, v{t2}"); k(f"v_lshl_add_u32 v{vOP}, v{t3}, 4, v{t2}")
        L_RED = 40960
        k(f"s_mul_i32 {S(1)}, {s(sW)}, 5120"); k(f"s_add_u32 {S(1)}, {S(1)}, {L_RED}"); k(f"v_add_u32 v{vRW}, {S(1)}, v{vL16}"); k(f"v_add_u32 v{vRW2}, {2*20480}, v{vRW}")
        k(f"s_mul_i32 {S(1)}, {s(sW)}, 20480"); k(f"s_add_u32 {S(1)}, {S(1)}, {L_RED}"); k(f"v_add_u32 v{vRR}, {S(1)}, v{vL16}")
        k(f"s_mul_i32 {s(sW2L)}, {s(sW)}, 15360"); k(f"s_add_u32 {s(sW2L)}, {s(sW2L)}, {L_W2}"); k(f"v_add_u32 v{vW2R}, {s(sW2L)}, v{vL16}")
        k(f"s_lshl_b32 {s(sOO)}, {sCK}, 1"); k(f"s_add_u32 {s(sOO)}, {s(sOO)}, {sHf}"); k(f"s_mul_i32 {s(sOO)}, {s(sOO)}, {16*1280}"); k(f"s_mul_i32 {S(1)}, {sDT}, 160"); k(f"s_add_u32 {s(sOO)}, {s(sOO)}, {S(1)}")
        k(f"s_lshl_b32 {s(sHI)}, {s(sR)}, 2"); k(f"s_add_u32 {s(sHI)}, {s(sHI)}, {sHf}"); k(f"s_mul_i32 {s(sHI)}, {s(sHI)}, 49152"); k(f"s_mul_i32 {S(1)}, {s(sW)}, 12288")
        k(f"s_add_u32 {s(sHI)}, {s(sHI)}, {S(1)}"); k(f"s_add_u32 {s(sHI)}, {s(sHI)}, {WS_HH}")

    def ssm_loads(self, SS):
        k = self.k; NT = OPT["nt1"]
        k(f"v_subrev_u32 v2, 8, v{vT16}"); k("v_mov_b32 v3, 0x7ffffff0"); k(f"v_cndmask_b32 v2, v2, v3, {s(sX+2,2)}")
        k(f"s_lshl_b32 {s(sT+2)}, {s(sC0)}, 12")
        for j in range(3):
            k.vm(f"buffer_load_dwordx4 {v(SS+6*j+2,4)}, v{vT16}, {s(rSS,4)}, {s(sT+2)} offen {NT}", "ss")
            k.vm(f"buffer_load_dwordx2 {v(SS+6*j,2)}, v2, {s(rSS,4)}, {s(sT+2)} offen {NT}", "ss")
            if j < 2: k(f"s_add_u32 {s(sT+2)}, {s(sT+2)}, 4096")
    def rp_consts(self):
        k = self.k; S = lambda i: s(sT+i); OOB = 0x7ff00000
        k("v_lshrrev_b32 v2, 4, v1"); k("v_and_b32 v3, 15, v1")
        k("v_lshlrev_b32 v56, 1, v2"); k("v_xor_b32 v56, v56, v3"); k("v_lshlrev_b32 v56, 4, v56")
        k("v_mul_u32_u24 v57, 3072, v2"); k(f"v_add_u32 v{vRL}, v56, v57"); k(f"v_xor_b32 v{vRL+1}, 128, v{vRL}"); k(f"v_add_u32 v{vRL+1}, {4*3072 - 1024}, v{vRL+1}")
        k(f"s_and_b32 {S(0)}, {s(sW)}, 1"); k(f"s_lshl_b32 {S(0)}, {S(0)}, 7"); k(f"v_xor_b32 v56, {S(0)}, v56")
        k("v_mul_u32_u24 v57, 1280, v2"); k(f"v_add_u32 v{vRL+2}, v56, v57"); k(f"v_add_u32 v{vRL+3}, {4*1280 - 1024}, v{vRL+2}")
        k(f"s_mul_i32 {S(0)}, {s(sID)}, 171"); k(f"s_lshr_b32 {S(1)}, {S(0)}, 9"); k(f"s_lshr_b32 {S(0)}, {S(0)}, 11")
        k(f"s_mul_i32 {S(2)}, {S(1)}, 3"); k(f"s_sub_u32 {S(2)}, {s(sID)}, {S(2)}"); k(f"s_and_b32 {S(1)}, {S(1)}, 3")
        k(f"s_lshl_b32 {S(3)}, {S(0)}, 2"); k(f"s_add_u32 {S(3)}, {S(3)}, {s(sW)}"); k(f"s_mul_i32 {S(3)}, {S(3)}, {8*3072}")
        k(f"s_mul_i32 {S(4)}, {S(1)}, 768"); k(f"s_add_u32 {S(3)}, {S(3)}, {S(4)}"); k(f"s_lshl_b32 {S(4)}, {S(2)}, 8"); k(f"s_add_u32 {S(3)}, {S(3)}, {S(4)}")
        k(f"s_cmp_lt_u32 {s(sID)}, 240"); k(f"s_cselect_b32 {s(sRP)}, {S(3)}, {OOB}")
        k(f"s_mul_i32 {S(0)}, {s(sID)}, 205"); k(f"s_lshr_b32 {S(0)}, {S(0)}, 10"); k(f"s_mul_i32 {S(1)}, {S(0)}, 5"); k(f"s_sub_u32 {S(1)}, {s(sID)}, {S(1)}")
        k(f"s_lshl_b32 {S(3)}, {S(0)}, 2"); k(f"s_add_u32 {S(3)}, {S(3)}, {s(sW)}"); k(f"s_mul_i32 {S(3)}, {S(3)}, {8*1280}"); k(f"s_lshl_b32 {S(4)}, {S(1)}, 8"); k(f"s_add_u32 {S(3)}, {S(3)}, {S(4)}")
        k(f"s_cmp_lt_u32 {s(sID)}, 240"); k(f"s_cselect_b32 {s(sRP2)}, {S(3)}, {OOB}")
    def rp_consts2(self):
        k = self.k; S = lambda i: s(sT+i); OOB = 0x7ff00000
        k("v_lshrrev_b32 v2, 4, v1")
        k(f"s_mul_i32 {S(0)}, {s(sID)}, 171"); k(f"s_lshr_b32 {S(1)}, {S(0)}, 9"); k(f"s_lshr_b32 {S(0)}, {S(0)}, 11")
        k(f"s_mul_i32 {S(2)}, {S(1)}, 3"); k(f"s_sub_u32 {S(2)}, {s(sID)}, {S(2)}"); k(f"s_and_b32 {S(1)}, {S(1)}, 3")
        k(f"s_cmp_lt_u32 {s(sID)}, 240"); k(f"s_cselect_b32 {S(6)}, 0, {OOB}"); k(f"s_add_u32 {S(6)}, {S(6)}, {WS_W13}")
        k(f"s_lshl_b32 {s(sCS)}, {S(0)}, 6"); k(f"s_mul_i32 {S(3)}, {S(1)}, {16*3840}"); k(f"s_add_u32 {s(sCS)}, {s(sCS)}, {S(3)}"); k(f"s_add_u32 {s(sCS)}, {s(sCS)}, {S(6)}"); k(f"s_sub_u32 {s(sCS)}, {s(sCS)}, {WS_W13 - WS_CS}")
        k(f"s_mul_i32 {S(3)}, {S(0)}, 52"); k(f"s_lshr_b32 {S(3)}, {S(3)}, 8")
        k(f"s_mul_i32 {S(4)}, {S(3)}, 5"); k(f"s_sub_u32 {S(0)}, {S(0)}, {S(4)}"); k(f"s_mul_i32 {S(4)}, {S(1)}, 320"); k(f"s_add_u32 {S(0)}, {S(0)}, {S(4)}")
        k("v_bfe_u32 v56, v1, 2, 3"); k("v_lshlrev_b32 v56, 5, v56")
        k("v_lshrrev_b32 v57, 2, v1"); k("v_lshlrev_b32 v57, 8, v57"); k(f"v_add_u32 v57, {L_RP}, v57")
        k("v_and_b32 v58, 1, v1"); k("v_bfe_u32 v59, v1, 1, 1"); k(f"s_lshl_b32 {S(1)}, {s(sW)}, 6"); k(f"v_xor_b32 v56, {S(1)}, v56")
        def dest(x, u, t):
            k(f"s_sub_u32 {S(4)}, {S(3)}, {u}"); k(f"s_and_b32 {S(4)}, {S(4)}, 3"); k(f"s_lshl2_add_u32 {S(4)}, {u}, {S(4)}"); k(f"s_mul_i32 {S(4)}, {S(4)}, 5")
            k(f"s_add_u32 {S(4)}, {S(4)}, {S(0)}"); k(f"s_mul_i32 {S(4)}, {S(4)}, 3072"); k(f"s_add_u32 {S(4)}, {S(4)}, {S(6)}"); k(f"s_add_u32 {s(sRD+x)}, {S(4)}, {1024*t}")
            k(f"s_mul_i32 {S(4)}, {u}, 3840"); k(f"s_add_u32 {S(4)}, {S(4)}, {s(sCS)}"); k(f"s_add_u32 {s(sCD+x)}, {S(4)}, {1280*t}")
        Lm = k.newlabel("mx"); Lj = k.newlabel("j")
        k(f"s_cmp_eq_u32 {S(2)}, 2"); k(f"s_cbranch_scc1 {Lm}")
        k("v_lshl_add_u32 v56, v59, 4, v56"); k("v_lshl_add_u32 v56, v58, 3, v56")
        k(f"v_add_u32 v{vRA4}, v56, v57"); k(f"v_xor_b32 v{vRA4+2}, 32, v{vRA4}"); k(f"v_add_u32 v{vRA4+1}, 8192, v{vRA4}"); k(f"v_add_u32 v{vRA4+3}, 8192, v{vRA4+2}")
        k(f"s_lshl_b32 {S(5)}, {S(2)}, 2"); k(f"s_add_u32 {S(5)}, {S(5)}, {s(sW)}"); k(f"s_lshl_b32 {S(5)}, {S(5)}, 1")
        dest(0, S(5), 0); k(f"s_add_u32 {s(sRD+1)}, {s(sRD)}, 1024"); k(f"s_add_u32 {s(sCD+1)}, {s(sCD)}, 1280"); k(f"s_add_u32 {S(5)}, {S(5)}, 1"); dest(2, S(5), 0); k(f"s_add_u32 {s(sRD+3)}, {s(sRD+2)}, 1024"); k(f"s_add_u32 {s(sCD+3)}, {s(sCD+2)}, 1280")
        k(f"s_branch {Lj}"); k.label(Lm)
        k("v_lshl_add_u32 v56, v59, 3, v56"); k("v_lshl_add_u32 v56, v58, 13, v56"); k(f"v_add_u32 v{vRA4}, v56, v57")
        for x in range(1, 4): k(f"v_xor_b32 v{vRA4+x}, {16*x}, v{vRA4}")
        k(f"s_lshl_b32 {S(5)}, {s(sW)}, 2")
        for x in range(4):
            dest(x, S(5), 2)
            if x < 3: k(f"s_add_u32 {S(5)}, {S(5)}, 1")
        k.label(Lj)
        k(f"s_mul_i32 {S(0)}, {s(sID)}, 205"); k(f"s_lshr_b32 {S(0)}, {S(0)}, 10"); k(f"s_mul_i32 {S(1)}, {S(0)}, 5"); k(f"s_sub_u32 {S(1)}, {s(sID)}, {S(1)}")
        k(f"s_lshl_b32 {S(3)}, {S(0)}, 2"); k(f"s_add_u32 {S(3)}, {S(3)}, {s(sW)}"); k(f"s_mul_i32 {S(3)}, {S(3)}, {8*1280}"); k(f"s_lshl_b32 {S(4)}, {S(1)}, 8"); k(f"s_add_u32 {S(3)}, {S(3)}, {S(4)}")
        k(f"s_cmp_lt_u32 {s(sID)}, 240"); k(f"s_cselect_b32 {s(sRP2)}, {S(3)}, {OOB}"); k(f"s_cselect_b32 {S(6)}, 0, {OOB}"); k(f"s_add_u32 {S(6)}, {S(6)}, {WS_W2}")
        k(f"s_mul_i32 {S(0)}, {S(0)}, 5120"); k(f"s_add_u32 {S(6)}, {S(6)}, {S(0)}")
        k(f"s_lshl_b32 {S(1)}, {S(1)}, 2"); k(f"s_add_u32 {S(1)}, {S(1)}, {s(sW)}"); k(f"s_lshl_b32 {S(1)}, {S(1)}, 1")
        for x in range(2):
            k(f"s_mul_i32 {S(3)}, {S(1)}, 52"); k(f"s_lshr_b32 {S(3)}, {S(3)}, 8"); k(f"s_mul_i32 {S(3)}, {S(3)}, {47*5120}"); k(f"s_lshl_b32 {S(4)}, {S(1)}, 10")
            k(f"s_add_u32 {S(3)}, {S(3)}, {S(4)}"); k(f"s_add_u32 {s(sRD2+x)}, {S(3)}, {S(6)}")
            if x == 0: k(f"s_add_u32 {S(1)}, {S(1)}, 1")
        k("v_bfe_u32 v56, v1, 2, 3"); k("v_lshlrev_b32 v56, 5, v56"); k(f"s_lshl_b32 {S(1)}, {s(sW)}, 6"); k(f"v_xor_b32 v56, {S(1)}, v56")
        k("v_lshl_add_u32 v56, v59, 4, v56"); k("v_lshl_add_u32 v56, v58, 3, v56")
        k("v_bfe_u32 v57, v1, 2, 2"); k("v_lshl_add_u32 v57, v2, 3, v57"); k("v_lshlrev_b32 v57, 8, v57"); k(f"v_add_u32 v57, {L_RP + 16384}, v57")
        k(f"v_add_u32 v{vRA2}, v56, v57"); k(f"v_xor_b32 v{vRA2+1}, 32, v{vRA2}")
    def rp_loads(self):
        k = self.k; NT = OPT["nt1"]
        k(f"s_lshl_b32 {s(sT)}, {s(sW)}, 11")
        for mat, srd in ((0, rW1), (1, rW3)):
            k(f"s_add_u32 m0, {s(sT)}, {L_RP + 8192*mat}")
            for i in range(2): k.vm(f"buffer_load_dwordx4 v{vRL+i}, {s(srd,4)}, {s(sRP)} offen offset:{1024*i} {NT} lds", "rp")
    def rp2_loads(self):
        k = self.k; NT = OPT["nt1"]
        k(f"s_lshl_b32 {s(sT)}, {s(sW)}, 11"); k(f"s_add_u32 m0, {s(sT)}, {L_RP + 16384}")
        for i in range(2): k.vm(f"buffer_load_dwordx4 v{vRL+2+i}, {s(rW2,4)}, {s(sRP2)} offen offset:{1024*i} {NT} lds", "rp2")
    def repack(self):
        k = self.k
        for x in range(4):
            for h in range(2): k.lg(f"ds_read_b64_tr_b16 {v(208+4*x+2*h,2)}, v{vRA4+x} offset:{4096*h}", ("r", x))
    def repack_st(self, x):
        self.k.vm(f"buffer_store_dwordx4 {v(208+4*x,4)}, v{vL16}, {s(rWS,4)}, {s(sRD+x)} offen sc1", "rs")
    def toeplitz(self, SS):
        k = self.k
        k(f"s_mov_b32 {s(sT+4)}, 0xffff")
        k(f"v_sub_u32 v2, {255*16}, v{vT16}")
        for j in range(3):
            D = SS + 6*j
            k(f"v_lshlrev_b32 v3, 16, v{D+2}"); k(f"v_add_f32 v3, {s(sDV+j)}, v3"); k("v_cvt_pk_bf16_f32 v3, v3, v3")
            k(f"v_bfi_b32 v3, {s(sT+4)}, v3, v{D+2}"); k(f"v_cndmask_b32 v{D+2}, v{D+2}, v3, {s(sX+2,2)}")
            O = 128 + 16*j
            for c in range(4):
                for t in range(4):
                    hi = 5 - t - (c >> 1)
                    if c % 2 == 0: k(f"v_alignbit_b32 v{O+4*c+t}, v{D+hi}, v{D+hi}, 16")
                    else: k(f"v_bfi_b32 v{O+4*c+t}, {s(sT+4)}, v{D+hi}, v{D+hi-1}")
                k(f"ds_write_b128 v2, {v(O+4*c,4)} offset:{L_TOEP + (4*j+c)*CSTR}")

    def phase0(self):
        k = self.k
        SH = 72
        SS = 78
        vTR, vTR2 = 96, 97
        sStep = 73; S = lambda i: s(sT+i)
        k(f"v_lshlrev_b32 v{vT16}, 4, v0"); k(f"v_mov_b32 v{vONE}, 1")
        for i in range(4): k(f"v_mov_b32 v{204+i}, 0")
        self.roles()
        k(f"v_cmp_eq_u32 {s(sX+2,2)}, 0, v0")
        k(f"s_mul_i32 {S(0)}, {s(sSB)}, {BST}"); k(f"s_add_u32 {s(sXS)}, {S(0)}, {WS_XT}"); k(f"s_add_u32 {s(sKS)}, {S(0)}, {WS_KVT}")
        k(f"v_cmp_gt_u32 vcc, 90, v0"); k(f"s_and_saveexec_b64 {s(sX,2)}, vcc")
        k(f"ds_write_b128 v{vT16}, v[204:207] offset:{L_U}")
        k(f"s_mov_b64 exec, {s(sX,2)}")
        k("v_lshrrev_b32 v2, 1, v0"); k(f"v_mul_u32_u24 v2, {CSTR}, v2"); k("v_and_b32 v3, 1, v0"); k("v_lshl_add_u32 v2, v3, 4, v2")
        k(f"v_cmp_gt_u32 vcc, 24, v0"); k(f"s_and_saveexec_b64 {s(sX,2)}, vcc")
        k(f"ds_write_b128 v2, v[204:207] offset:{L_TOEP + 4096}")
        k(f"s_mov_b64 exec, {s(sX,2)}")
        Lz = k.newlabel("z")
        k(f"s_cmp_lg_u32 {s(sSB)}, 0"); k(f"s_cbranch_scc1 {Lz}")
        k(f"v_add_u32 v2, {L_P0K}, v{vT16}"); k("ds_write_b128 v2, v[204:207]"); k("ds_write_b128 v2, v[204:207] offset:1024")
        k.label(Lz)
        k("v_bfe_u32 v2, v1, 2, 2")
        k("v_lshrrev_b32 v3, 4, v1"); k("v_lshlrev_b32 v3, 1, v3")
        k("v_bfe_u32 v98, v1, 1, 1"); k("v_add_u32 v3, v3, v98")
        k("v_bfe_u32 v98, v0, 6, 1"); k("v_lshl_add_u32 v3, v98, 3, v3")
        k("v_lshlrev_b32 v98, 2, v2"); k("v_xor_b32 v3, v3, v98"); k("v_lshlrev_b32 v3, 4, v3")
        k("v_mul_u32_u24 v2, 1280, v2"); k("v_add_u32 v3, v3, v2")
        k("v_and_b32 v2, 1, v1"); k("v_lshl_add_u32 v3, v2, 3, v3")
        k("v_lshrrev_b32 v2, 7, v0"); k("v_lshl_add_u32 v3, v2, 8, v3")
        k(f"v_add_u32 v{vTR}, {L_P0}, v3")
        k(f"s_cmp_eq_u32 {s(sW)}, 2"); k(f"s_cselect_b32 {S(2)}, 128, 0"); k(f"s_movk_i32 {S(3)}, 1024"); k(f"s_cselect_b32 {S(3)}, 512, {S(3)}")
        k(f"s_movk_i32 {s(sStep)}, 0x1000"); k(f"s_cselect_b32 {S(4)}, 2560, {s(sStep)}"); k(f"s_cselect_b32 {s(sStep)}, 1024, {s(sStep)}")
        k(f"v_xor_b32 v{vTR2}, {S(2)}, v{vTR}"); k(f"v_add_u32 v{vTR2}, {S(3)}, v{vTR2}")
        k("v_lshlrev_b32 v209, 3, v0"); k(f"v_add_u32 v209, {L_P0 + 25600}, v209"); k("v_add_u32 v210, 2048, v209"); k(f"v_add_u32 v211, {S(4)}, v209")
        k(f"s_lshl_b32 {S(0)}, {s(sR)}, 4"); k(f"s_add_u32 {S(0)}, {S(0)}, {s(sC)}"); k(f"s_lshl_b32 {S(0)}, {S(0)}, 9"); k(f"s_add_u32 {S(0)}, {S(0)}, {WS_F3}")
        k(f"s_lshl2_add_u32 {S(1)}, {s(sW)}, {S(0)}"); k("v_and_b32 v2, 3, v1"); k(f"v_lshlrev_b32 v{vFW}, 7, v2"); k(f"v_add_u32 v{vFW}, {S(1)}, v{vFW}")
        k(f"s_lshl_b32 {S(1)}, {s(sW)}, 7"); k(f"s_add_u32 {S(1)}, {S(1)}, {S(0)}"); k(f"v_and_b32 v202, 0x70, v{vL16}"); k(f"v_add_u32 v202, {S(1)}, v202")
        k(f"s_lshl_b32 {S(2)}, {s(sXG)}, 8"); k(f"s_lshl_b32 {S(4)}, {s(sM)}, 10"); k(f"s_add_u32 {S(2)}, {S(2)}, {S(4)}")
        k(f"s_sub_u32 {S(3)}, {s(sXG)}, 1"); k(f"s_and_b32 {S(4)}, {s(sM)}, 16"); k(f"s_or_b32 {S(3)}, {S(3)}, {S(4)}"); k(f"s_lshl_b32 {S(4)}, {s(sW)}, 4"); k(f"s_or_b32 {S(3)}, {S(3)}, {S(4)}")
        k(f"s_cmp_lt_u32 {S(3)}, 3"); k(f"s_cselect_b32 {S(2)}, {S(2)}, 0x7ff00000")
        k("v_lshrrev_b32 v2, 3, v1"); k("v_lshlrev_b32 v98, 14, v2"); k("v_and_b32 v3, 7, v1"); k("v_lshl_add_u32 v98, v3, 4, v98"); k(f"v_add_u32 v203, {S(2)}, v98")
        k("v_mul_u32_u24 v98, 1280, v2"); k("v_lshl_add_u32 v98, v3, 4, v98"); k("v_bfe_u32 v99, v1, 4, 1"); k("v_lshl_add_u32 v98, v99, 7, v98"); k(f"v_add_u32 v98, {L_P0X}, v98"); k("v_xor_b32 v208, 128, v98")
        k(f"s_and_b32 {S(5)}, {s(sXG)}, 1"); k(f"s_xor_b32 {S(5)}, {S(5)}, {s(sSB)}"); k(f"s_bfe_u32 {S(4)}, {S(5)}, 0x20002")
        k("v_lshrrev_b32 v99, 2, v2"); k("v_lshl_add_u32 v99, v3, 1, v99"); k(f"v_xor_b32 v99, {S(4)}, v99"); k("v_lshlrev_b32 v99, 4, v99"); k("v_and_b32 v2, 3, v2"); k("v_lshl_add_u32 v99, v2, 2, v99")
        k("v_mov_b32 v2, 0x7ffff000"); k("v_cmp_gt_u32 vcc, 2, v3"); k("v_cndmask_b32 v99, v2, v99, vcc")
        k(f"s_lshl_b32 {S(5)}, {S(5)}, 6"); k(f"s_add_u32 {S(6)}, {S(5)}, {WS_STAT}")
        k.wait_lg0()
        k(f"s_lshr_b32 {S(2)}, {s(sC0)}, 1"); k(f"s_lshl_b32 {S(2)}, {S(2)}, 2"); k(f"s_load_dwordx2 {s(sDV,2)}, {s(sDP,2)}, {S(2)}")
        MODE = OPT.get("mode", "A")
        if OPT.get("rp2", "b2") == "init": self.rp_consts()
        self.f7()
        Lz = k.newlabel("z")
        k(f"s_xor_b32 {S(5)}, {s(sW)}, 3"); k(f"s_or_b32 {S(4)}, {S(5)}, {s(sM)}"); k(f"s_cbranch_scc1 {Lz}")
        k("v_mov_b32 v2, 0"); k("s_waitcnt vmcnt(5)")
        k("s_mov_b64 exec, 1"); k(f"global_atomic_add v2, v{vONE}, {s(sDBG,2)} sc1"); k("s_mov_b64 exec, -1")
        k.label(Lz)
        k.vmq = ["p0"]
        if OPT.get("rp2", "b2") == "init": self.rp2_loads()
        if OPT["ssm"] == 0: self.ssm_loads(SS)
        self.f7()
        k.wait_vm("p0"); k.wait_lg0()
        self.f7(); k("s_barrier"); self.f7()
        self.stamp()
        TB = 100
        def reads(i):
            b0 = TB + 16*i; vb = vTR2 if i == 2 else vTR; o = 0 if i == 2 else 512*i
            k.lg(f"ds_read_b64 {v(SH+2*i,2)}, v{209+i}", ("k", i))
            for b in range(3): k.lg(f"ds_read_b64_tr_b16 {v(b0+2*b,2)}, v{vb} offset:{L_P0K-L_P0 + b*5120 + o}", ("k", i))
            for b in range(2): k.lg(f"ds_read_b64_tr_b16 {v(b0+6+2*b,2)}, v{vb} offset:{L_P0V-L_P0 + b*5120 + o}", ("k", i))
            for b in range(2): k.lg(f"ds_read_b64_tr_b16 {v(b0+12+2*b,2)}, v{vb} offset:{b*5120 + o}", ("x", i))
        def task(i):
            P = TB + 16*i; Vv = P + 6; Xx = P + 12; Q = 150; W10, W32 = SH+2*i, SH+2*i+1; KS = 158; U = 212; O = 168 + 4*i
            k.wait_lg(("k", i))
            for j in range(2): k(f"v_alignbit_b32 v{W10+j}, v{W10+j}, v{W10+j}, 16")
            for j in range(5): k(f"v_alignbit_b32 v{Q+j}, v{P+j+1}, v{P+j}, 16")
            for j in range(4):
                k(f"v_dot2_f32_bf16 v{KS+2*j+1}, v{P+j+1}, v{W32}, 0"); k(f"v_dot2_f32_bf16 v{KS+2*j}, v{Q+j}, v{W32}, 0")
            for j in range(4):
                k(f"v_dot2_f32_bf16 v{KS+2*j+1}, v{P+j+2}, v{W10}, v{KS+2*j+1}"); k(f"v_dot2_f32_bf16 v{KS+2*j}, v{Q+j+1}, v{W10}, v{KS+2*j}")
            k.wait_lg(("x", i))
            k(f"buffer_store_dwordx4 {v(Xx,4)}, v{vT16}, {s(rWS,4)}, {s(sXS)} offen sc1")
            for j in range(4):
                k(f"v_lshlrev_b32 v{U+2*j}, 16, v{Vv+j}"); k(f"v_and_b32 v{U+2*j+1}, 0xffff0000, v{Vv+j}")
            for j in range(4): k(f"v_pk_mul_f32 {v(KS+2*j,2)}, {v(KS+2*j,2)}, {v(U+2*j,2)}")
            for j in range(4): k(f"v_cvt_pk_bf16_f32 v{O+j}, v{KS+2*j}, v{KS+2*j+1}")
            k(f"buffer_store_dwordx4 {v(O,4)}, v{vT16}, {s(rWS,4)}, {s(sKS)} offen sc1")
            if i == 0: k(f"s_add_u32 {s(sKS)}, {s(sKS)}, 4096"); k(f"s_add_u32 {s(sXS)}, {s(sXS)}, 4096")
            if i == 1: k(f"s_add_u32 {s(sKS)}, {s(sKS)}, {s(sStep)}"); k(f"s_add_u32 {s(sXS)}, {s(sXS)}, {s(sStep)}")
        reads(0)
        k(f"buffer_store_dwordx4 v[204:207], v202, {s(rWS,4)}, 0 offen sc1"); k(f"buffer_store_dwordx4 v[204:207], v203, {s(rWS,4)}, 0 offen sc1")
        Ls = k.newlabel("st"); Lj = k.newlabel("j")
        k(f"s_cmp_eq_u32 {s(sW)}, 3"); k(f"s_cbranch_scc1 {Ls}")
        q0 = list(k.lgq)
        reads(1); task(0); reads(2); task(1); task(2)
        k(f"s_branch {Lj}")
        k.label(Ls); k.lgq = q0
        SR = [116 + 4*j for j in range(8)] + [220, 224]
        for j in range(6): k.lg(f"ds_read_b128 {v(SR[j],4)}, v{208 if j&1 else 98} offset:{256*(j>>1)}", ("s", j))
        task(0)
        for j in range(6, 10): k.lg(f"ds_read_b128 {v(SR[j],4)}, v{208 if j&1 else 98} offset:{256*(j>>1)}", ("s", j))
        k(f"s_mov_b32 {s(sT+5)}, 0x3f803f80")
        for j in range(10):
            k.wait_lg(("s", j))
            for d in range(4):
                z = j == 0 and d == 0
                k(f"v_dot2_f32_bf16 v200, v{SR[j]+d}, {s(sT+5)}, {'0' if z else 'v200'}"); k(f"v_dot2_f32_bf16 v201, v{SR[j]+d}, v{SR[j]+d}, {'0' if z else 'v201'}")
        for m_ in ("quad_perm:[1,0,3,2]", "quad_perm:[2,3,0,1]", "row_half_mirror"):
            k(f"v_add_f32_dpp v200, v200, v200 {m_} row_mask:0xf bank_mask:0xf"); k(f"v_add_f32_dpp v201, v201, v201 {m_} row_mask:0xf bank_mask:0xf")
        k(f"v_mul_f32 v200, {1.0/640!r}, v200"); k(f"v_mul_f32 v201, {1.0/640!r}, v201")
        k("v_fma_f32 v201, -v200, v200, v201"); k("v_max_f32 v201, 0, v201"); k(f"v_add_f32 v201, {1e-5!r}, v201"); k("v_rsq_f32 v201, v201")
        k("v_and_b32 v2, 7, v1"); k("v_cmp_eq_u32 vcc, 0, v2")
        k("v_mul_f32_e64 v200, -v200, v201")
        k("v_cndmask_b32 v200, v200, v201, vcc")
        k(f"buffer_store_dword v200, v99, {s(rWS,4)}, {s(sT+6)} offen sc1")
        k.label(Lj); k.lgq = []
        self.f7()
        self.stamp()
        if MODE == "B":
            self.rp_consts2()
            k("s_waitcnt vmcnt(5)"); k("s_barrier")
            self.repack(); k.wait_lg0()
            for x in range(4): self.repack_st(x)
        k(f"global_load_dword v{vPV}, v204, {s(sDBG,2)} sc1")
        k.vmq = ["poll"]
        if OPT["ssm"] == 2: self.ssm_loads(SS)
        k(f"s_and_b32 {S(2)}, {s(sC0)}, 1"); k(f"s_lshl_b32 {S(2)}, {S(2)}, 4"); k(f"s_lshr_b64 {s(sDV,2)}, {s(sDV,2)}, {S(2)}")
        k(f"s_lshl_b32 {s(sDV+2)}, {s(sDV+1)}, 16"); k(f"s_and_b32 {s(sDV+1)}, {s(sDV)}, 0xffff0000"); k(f"s_lshl_b32 {s(sDV)}, {s(sDV)}, 16")
        if OPT.get("rp2", "b2") != "init": self.rp_consts()
        if MODE == "C": self.rp_consts2()
        self.consts1()
        self.f7()
        self.check(f"global_load_dword v{vPV}, v204, {s(sDBG,2)} sc1", f"v_cmp_gt_u32 vcc, 8, v{vPV}")
        self.f7(); k("s_barrier"); self.f7()
        self.arrive(S1)
        self.stamp()
        if MODE == "A": self.rp_loads()
        if OPT.get("rp2", "b2") == "b2": self.rp2_loads()
        if MODE == "C":
            self.repack(); k.wait_lg0()
            for x in range(4): self.repack_st(x)
        k.wait_vm("ss")
        self.toeplitz(SS)
        if MODE == "A": self.rp_consts2()
        self.stamp()
        self.poll_issue(S1); self.poll_check(S1)
        k.wait_vm0(); k("s_barrier")
        if MODE == "C": self.arrive(SW)

    def conv_stream(self, ops, FR, nslots, LQ, FQ, scal, PQ, LA=14, fs=0):
        k = self.k
        first = {}; last = {}
        for i, (_, _, A_, B_) in enumerate(ops):
            for key in (A_, B_):
                first.setdefault(key, i); last[key] = i
        freeat = [-99]*nslots; slot = {}; RQ = []; k.seen -= set(first)
        for key in sorted(first, key=lambda x: first[x]):
            sl = min(range(nslots), key=lambda x: freeat[x]); rel = max(freeat[sl], first[key] - LA); freeat[sl] = last[key]; slot[key] = sl; r = FR + 4*sl
            assert rel <= first[key] - 2, (rel, first[key])
            dl = max(rel, first[key] - 6)
            its = ([It(f"ds_read_b64 {v(r,2)}, v{key[1]} offset:{key[2]}", "lg", None), It(f"ds_read_b64 {v(r+2,2)}, v{key[1]} offset:{key[2]+8}", "lg", key)] if key[0] == "A"
                   else [It(f"ds_read_b128 {v(r,4)}, v{key[1]} offset:{key[2]}", "lg", key)])
            if dl < 0: self.run(its)
            else:
                for it in its: it.rel = max(rel, 0); it.dl = dl; RQ.append(it)
        for i in range(len(RQ) - 2, -1, -1): RQ[i].dl = min(RQ[i].dl, RQ[i+1].dl)
        mf = [dict(text=f"{MF} {v(acc,4)}, {v(FR+4*slot[A_],4)}, {v(FR+4*slot[B_],4)}, {'0' if fst else v(acc,4)}", wait=[A_, B_], scal=list(scal.get(i, [])))
              for i, (acc, fst, A_, B_) in enumerate(ops)]
        if fs:
            for i in range(0, len(mf), fs): mf[i]["scal"].append(self.fstamp)
        r_ = schedule(k, mf, RQ, LQ, FQ, PQ=PQ, pace=OPT["wrate"], boost=(OPT.get("bx1", 70), 120, OPT.get("boost", 2)))
        if os.environ.get("V"): print("conv", len(mf), "over/left", r_)

    def conv_ops(self, tiles, nr, vA, vB, acc, drs=None, tag=0):
        ops = []
        for dr in (drs or range(nr)):
            for m in range(max(tiles) + 1):
                for ti, T in reversed(list(enumerate(tiles))):
                    if T >= m:
                        ops.append((acc + 4*ti, dr == 0 and m == 0, ("A", vA, 64*(56 - 8*m + nr - 1 - dr), tag), ("B", vB, 192*(8*(T-m) + nr - 1 - dr), tag)))
        return ops

    def w13_items(self, f): return self.gload(vWA, 1024*f, a(4*f, 4), ("w", f//3))
    def w13_load(self, f):
        self.run(self.w13_items(f))

    def phase1(self):
        k = self.k
        AC1, ACH, FR, AC2 = 56, 72, 80, 224
        E = 144; X = E + 28; H = 184; AX = 200
        self.stamp()
        for i in range(3):
            k(f"s_add_u32 m0, {s(sGL)}, {L_UD + 1024*i}"); k.vm(f"buffer_load_dwordx4 v{vGO+i}, {s(rWS,4)}, {s(sGK)} offen sc1 lds", "u")
        self.repack()
        self.consts2()
        k.wait_lg0()
        for x in range(4): k(f"{MF} {v(224+4*x,4)}, {v(208+4*x,4)}, {v(ONES,4)}, 0")
        for i in range(3): k(f"v_xor_b32 v{AX+i}, {16*(i+1)}, v{vSF}")
        k(f"v_xor_b32 v{AX+3}, 32, v{vSH}")
        k(f"v_add_u32 v{vWA}, {s(sW13)}, v{vL16}"); k(f"v_add_u32 v{vWA}, 4096, v{vWA}"); self.cur[vWA] = 4096
        XE = OPT.get("xe", 3)
        for i in range(XE):
            k(f"s_add_u32 m0, {s(sGL)}, {L_XI + 1024*i}"); k.vm(f"buffer_load_dwordx4 v{vGO+i}, {s(rWS,4)}, {s(sGX)} offen sc1 lds", "x")
        RS = OPT.get("rs", 24); RD = OPT.get("rd", 9)
        k.wait_vm("u"); k("s_barrier")
        self.stamp()
        BW, B1_, B2_ = OPT.get("bw", 100), OPT.get("bx1", 70), OPT.get("bx2", 144)
        def epi(ps, rel):
            PB = 128*ps; G = []
            lg2 = lambda t, tag: G.append(It(t, "lg", tag, rel=rel)); ad2 = lambda t: G.append(It(t, rel=rel))
            fence = lambda tag: G.append(It(pre=[lambda: k.wait_lg(tag)], rel=rel, fence=True))
            lg2(f"ds_read_b128 {v(E+8,4)}, v{vXF} offset:{48*PB}", "s")
            for i in range(4): lg2(f"ds_read_b128 {v(E+12+4*i,4)}, v{vSF if i==0 else AX+i-1} offset:{64*PB}", "s")
            if ps == 0:
                for i in range(4): lg2(f"ds_read_b128 {v(AC1+4*i,4)}, v{vP1} offset:{256*(i&1) + 4096*(i>>1)}", "p")
            for w_ in range(4): lg2(f"ds_read_b64 {v(H+2*w_,2)}, v{vPH} offset:{8192*ps+2048*w_}", "hp")
            lg2(f"ds_read_b32 v{H+8}, v{vXH} offset:{48*PB}", "hp"); lg2(f"ds_read_b64 {v(H+10,2)}, v{vSH} offset:{64*PB}", "hp"); lg2(f"ds_read_b64 {v(H+12,2)}, v{AX+3} offset:{64*PB}", "hp")
            fence("s")
            for i in range(4): ad2(f"v_lshlrev_b32 v{X+2*i}, 16, v{E+8+i}"); ad2(f"v_and_b32 v{X+2*i+1}, 0xffff0000, v{E+8+i}")
            for i in range(8): ad2(f"v_fma_f32 v{E+12+i}, v{X+i}, v{E+12+i}, v{E+20+i}")
            fence("hp")
            if ps == 0:
                for i in range(8): ad2(f"v_add_f32 v{AC1+i}, v{AC1+i}, v{AC1+8+i}")
                for i in range(8): ad2(f"v_fmac_f32 v{X+i}, v{E+12+i}, v{AC1+i}")
                for i in range(4): ad2(f"v_cvt_pk_bf16_f32 v{E+i}, v{X+2*i}, v{X+2*i+1}")
                G.append(It(f"buffer_store_dwordx4 {v(E,4)}, v{vGF}, {s(rWS,4)}, {s(sHF)} offen sc1", "vm", "h", rel=rel))
            for r in range(2): ad2(f"v_add_f32 v{H+r}, v{H+r}, v{H+2+r}"); ad2(f"v_add_f32 v{H+4+r}, v{H+4+r}, v{H+6+r}")
            ad2(f"v_lshlrev_b32 v{H+14}, 16, v{H+8}"); ad2(f"v_and_b32 v{H+15}, 0xffff0000, v{H+8}")
            for r in range(2): ad2(f"v_add_f32 v{H+r}, v{H+r}, v{H+4+r}"); ad2(f"v_fma_f32 v{H+10+r}, v{H+14+r}, v{H+10+r}, v{H+12+r}")
            for r in range(2): ad2(f"v_fmac_f32 v{H+14+r}, v{H+10+r}, v{H+r}")
            ad2(f"v_cvt_pk_bf16_f32 v{H+8}, v{H+14}, v{H+15}")
            G.append(It(f"buffer_store_dword v{H+8}, v{vGH}, {s(rWS,4)}, {s(sHH)} offen sc1", "vm", "h%d" % ps, rel=rel))
            return G
        def mk():
            ev = lambda fn, cost: [It(fn=fn, cost=cost)]; evs = []
            scal = {B1_: [lambda: k.wait_vm("x"), lambda: k.wait_lg("aw"), "s_barrier"],
                    B2_: [lambda: k.wait_vm(["h0", "r2"]), lambda: k.wait_lg("aw"), "s_barrier"],
                    B2_ + 2: [f"s_add_u32 {s(sHF)}, {s(sHF)}, {32*CST}"], B2_ + 3: [f"s_add_u32 {s(sHH)}, {s(sHH)}, {32*CST}"]}
            for i in range(XE, 3): evs.append((2 + OPT.get('xs', 8)*(i-XE), [It(f"buffer_load_dwordx4 v{vGO+i}, {s(rWS,4)}, {s(sGX)} offen sc1 lds", "vm", "x", pre=[f"s_add_u32 m0, {s(sGL)}, {L_XI + 1024*i}"])]))
            for i in range(4): evs.append(((3-XE)*OPT.get('xs', 8) + 2 + 3*i, [It(f"buffer_load_dwordx4 v{vL16}, {s(rWS,4)}, {s(sSTS)} offen offset:{1024*i} sc1 lds", "vm", "x", pre=[f"s_mov_b32 m0, {s(sSTL)}"] if i == 0 else [])]))
            for x in range(4):
                evs.append((RS + x, [It(f"buffer_store_dwordx4 {v(224+4*x,4)}, v{vP1+4}, {s(rWS,4)}, {s(sCD+x)} offen sc1", "vm", "rs")]))
                evs.append((RS + 5 + RD*x, [It(f"buffer_store_dwordx4 {v(208+4*x,4)}, v{vL16}, {s(rWS,4)}, {s(sRD+x)} offen sc1", "vm", "rs")]))
            if BW:
                scal[BW] = [lambda: k.wait_vm("rs"), "s_barrier"]; evs.append((BW + 1, ev(lambda: self.arrive(SW), 2)))
            for x in range(2):
                for h in range(2): evs.append((62 + 2*x + h, [It(f"ds_read_b64_tr_b16 {v(208+4*x+2*h,2)}, v{vRA2+x} offset:{1024*h}", "lg", "aw")]))
                evs.append((OPT.get("r2s", 104) + 6*x, [It(f"buffer_store_dwordx4 {v(208+4*x,4)}, v{vL16}, {s(rWS,4)}, {s(sRD2+x)} offen sc1", "vm", "r2")]))
            for i in range(2): evs.append((30 + 4*i, [It(f"ds_write_b128 v{vPWH}, {v(ACH+4*i,4)} offset:{16384+1024*i}", "lg", "aw")]))
            for i in range(4): evs.append((52 + 3*i, [It(f"ds_write_b128 v{vP1+3}, {v(AC1+4*i,4)} offset:{1024*i}", "lg", "aw")]))
            for i in range(2): evs.append((129 + 3*i, [It(f"ds_write_b128 v{vPWH}, {v(ACH+4*i,4)} offset:{24576+1024*i}", "lg", "aw")]))
            PSW, W0 = OPT.get("psw", 150), OPT.get("w0", 180)
            evs.append((PSW, ev(lambda: self.poll_issue(SW), 2)))
            if W0 < 176: scal[W0] = [lambda: self.poll_check(SW), "s_barrier"]
            evs.append((B2_ + 1, ev(lambda: self.arrive(S2A), 2)))
            LQ = []
            for pos, its in sorted(evs, key=lambda x: x[0]):
                for it in its: it.rel = pos; it.dl = pos + 2; LQ.append(it)
            NW = max(0, (178 - W0 - 1) // OPT["wrate"]); self.wf_next = NW
            PQ = [(W0 + 1 + OPT["wrate"]*f, W0 + 3 + OPT["wrate"]*f, lambda f=f: self.w13_items(f)) for f in range(NW)]
            return LQ, epi(0, B1_) + epi(1, B2_ + 3), scal, PQ
        Le = k.newlabel("e"); Lj = k.newlabel("j")
        k(f"s_cmp_lg_u32 {s(sE)}, 0"); k(f"s_cbranch_scc1 {Le}")
        fs = 10 if self.fine == 5 else 0
        vq = list(k.vmq); ends = []
        for e in range(2):
            if e: k(f"s_branch {Lj}"); k.label(Le); k.lgq = []; k.vmq = list(vq); self.cur[vWA] = 4096; self.nf = 0 if fs else self.nf; k.seen -= {"h", "h0", "h1", "aw", "rs", "r2"}
            ht = lambda ps: [4*ps+1, 4*ps+2] if e else [4*ps, 4*ps+3]
            ops = (self.conv_ops(ht(0), 2, vAH, vBH, ACH) + self.conv_ops([0, 1, 2, 3], 4, vAF, vBF, AC1) + self.conv_ops([4, 5, 6, 7], 4, vAF, vBF, AC2, [0, 1], 1)
                   + self.conv_ops(ht(1), 2, vAH, vBH, ACH, None, 1) + self.conv_ops([4, 5, 6, 7], 4, vAF, vBF, AC2, [2, 3], 1))
            self.conv_stream(ops, FR, 16, *mk(), fs=fs)
            ends.append(list(k.vmq))
        if ends[0] != ends[1]:
            n = max(len(ends[0]), len(ends[1])); tags = set(ends[0]) | set(ends[1])
            pos = {t: min(len(q) - 1 - max(i for i, x in enumerate(q) if x == t) for q in ends if t in q) for t in tags}
            assert len(set(pos.values())) == len(pos), (ends, pos)
            k.vmq = [None]*n
            for t, d in pos.items(): k.vmq[n - 1 - d] = t
        k.label(Lj); k.lgq = []
        if fs: self.fstamp()
        self.stamp()
        if OPT.get("w0", 180) >= 176: self.poll_check(SW)
        Lo = k.newlabel("o"); Lj = k.newlabel("j")
        k(f"s_bitcmp1_b32 {s(sW)}, 0"); k(f"s_cbranch_scc1 {Lo}")
        k(f"ds_write_b128 v{vPW}, {v(AC2+8,4)}"); k(f"ds_write_b128 v{vPW}, {v(AC2+12,4)} offset:1024")
        k("s_waitcnt lgkmcnt(0)"); k("s_barrier")
        k(f"ds_read_b128 {v(AC2+8,4)}, v{vPR}"); k(f"ds_read_b128 {v(AC2+12,4)}, v{vPR} offset:1024")
        k(f"s_branch {Lj}"); k.label(Lo)
        k(f"ds_write_b128 v{vPW}, {v(AC2,4)}"); k(f"ds_write_b128 v{vPW}, {v(AC2+4,4)} offset:1024")
        k("s_waitcnt lgkmcnt(0)"); k("s_barrier")
        k(f"ds_read_b128 {v(AC2,4)}, v{vPR}"); k(f"ds_read_b128 {v(AC2+4,4)}, v{vPR} offset:1024")
        k.label(Lj)
        if not BW: self.poll_issue(S2A)
        else:
            for f in range(3): self.run(self.w13_items(self.wf_next)); self.wf_next += 1
        if fs: self.fstamp()
        k("s_waitcnt lgkmcnt(0)")
        for i in range(4): k(f"v_pk_add_f32 {v(AC2+2*i,2)}, {v(AC2+2*i,2)}, {v(AC2+8+2*i,2)}")
        for i in range(4): k(f"v_permlane16_swap_b32 v{AC2+i}, v{AC2+4+i}")
        for i in range(4): k(f"v_pk_fma_f32 {v(X+2*i,2)}, {v(E+12+2*i,2)}, {v(AC2+2*i,2)}, {v(X+2*i,2)}")
        for i in range(4): k(f"v_cvt_pk_bf16_f32 v{E+i}, v{X+2*i}, v{X+2*i+1}")
        k.vm(f"buffer_store_dwordx4 {v(E,4)}, v{vGF}, {s(rWS,4)}, {s(sHF)} offen sc1", "h")
        if fs: self.fstamp()
        self.stamp()

    def gload(self, vA, off, dst, tag, m0=None):
        out = []; lo = 0 if m0 else -4096
        imm = off - self.cur[vA]
        if not lo <= imm <= 3072:
            d = imm - lo; out.append(It(f"v_add_u32 v{vA}, {d & 0xffffffff}, v{vA}")); self.cur[vA] += d; imm = lo
        if m0:
            pre = []
            want = (m0[0], m0[1] - imm)
            if self.m0 != want: pre = [f"s_add_u32 m0, {s(m0[0])}, {m0[1] - imm}"]; self.m0 = want
            out.append(It(f"global_load_lds_dwordx4 v{vA}, {s(rWS,2)} offset:{imm} sc1", "vm", tag, pre=pre))
        else:
            out.append(It(f"global_load_dwordx4 {dst}, v{vA}, {s(rWS,2)} offset:{imm} sc1", "vm", tag))
        return out
    def run(self, items):
        for it in items: it.emit_pre(self.k); it.emit(self.k)

    def g1_epilogue(self, AC, idx):
        P = []
        C1, C3, CG, CU = 56, 60, 64, 68
        ST = {"m": 9, 0: 12, 1: 15}; O4, O2 = 18, 54
        add = lambda t: P.append(It(t, rel=idx))
        def swi(G, U, cg, cu, st):
            nm, nl, ve = st, st+1, st+2
            for r in range(4): add(f"v_fmac_f32 v{G+r}, v{nm}, v{cg+r}")
            for r in range(4): add(f"v_fmac_f32 v{U+r}, v{nm}, v{cu+r}")
            for r in range(4): add(f"v_mul_f32 v{U+r}, v{G+r}, v{U+r}")
            for r in range(4): add(f"v_mul_f32 v{G+r}, v{G+r}, v{nl}")
            for r in range(4): add(f"v_exp_f32 v{G+r}, v{G+r}")
            for r in range(4): add(f"v_fma_f32 v{G+r}, v{G+r}, v{ve}, v{ve}")
            for r in range(4): add(f"v_rcp_f32 v{G+r}, v{G+r}")
            for r in range(4): add(f"v_mul_f32 v{U+r}, v{U+r}, v{G+r}")
        for a_ in range(2):
            swi(AC+12*a_, AC+12*a_+4, C1, C3, ST[a_])
            add(f"v_cvt_pk_bf16_f32 v{O4+2*a_}, v{AC+12*a_+4}, v{AC+12*a_+5}"); add(f"v_cvt_pk_bf16_f32 v{O4+2*a_+1}, v{AC+12*a_+6}, v{AC+12*a_+7}")
        for r in range(4): add(f"v_permlane16_swap_b32 v{AC+8+r}, v{AC+20+r}")
        add(f"v_permlane16_swap_b32 v{O4}, v{O4+2}"); add(f"v_permlane16_swap_b32 v{O4+1}, v{O4+3}")
        P.append(It(f"buffer_store_dwordx4 {v(O4,4)}, v{vSP}, {s(rWS,4)}, {s(sHO)} offen sc1", "vm", "hh", rel=idx))
        swi(AC+8, AC+20, CG, CU, ST["m"])
        add(f"v_cvt_pk_bf16_f32 v{O2}, v{AC+20}, v{AC+21}"); add(f"v_cvt_pk_bf16_f32 v{O2+1}, v{AC+22}, v{AC+23}")
        P.append(It(f"buffer_store_dwordx2 {v(O2,2)}, v{vSMX}, {s(rWS,4)}, {s(sHO)} offen sc1", "vm", "hh", rel=idx))
        return P
    def g1_stats(self, idx, o=0):
        T = 18
        return [It(f"ds_read2st64_b32 {v(T,2)}, v{vSR} offset0:{o} offset1:{o+2}", "lg", "st", rel=idx), It(f"ds_read2st64_b32 {v(T+2,2)}, v{vSR} offset0:{o+4} offset1:{o+6}", "lg", "st", rel=idx),
                It(f"ds_read2st64_b32 {v(T+4,2)}, v{vGR} offset0:{o} offset1:{o+8}", "lg", "st", rel=idx), It(f"ds_read2st64_b32 {v(T+6,2)}, v{vGR} offset0:{o+16} offset1:{o+24}", "lg", "st", rel=idx)]
    def g1_stats2(self, idx, extra=()):
        k = self.k; T = 18
        P = [It(pre=[lambda: k.wait_lg("st")] + list(extra), rel=idx, fence=True)]
        add = lambda t: P.append(It(t, rel=idx))
        for i in range(4): add(f"v_add_f32 v{T+2*i}, v{T+2*i}, v{T+2*i+1}")
        add(f"v_add_f32 v{T}, v{T}, v{T+2}"); add(f"v_add_f32 v{T+4}, v{T+4}, v{T+6}")
        add(f"v_mul_f32 v9, {-1.0/640!r}, v{T}"); add(f"v_mul_f32 v11, {1.0/640!r}, v{T+4}")
        add(f"v_fma_f32 v11, -v9, v9, v11"); add("v_max_f32 v11, 0, v11"); add(f"v_add_f32 v11, {1e-5!r}, v11")
        add("v_rsq_f32 v10, v11"); add("v_mov_b32 v12, v9"); add(f"v_mul_f32 v10, {-1.4426950408889634!r}, v10")
        add("v_mov_b32 v15, v9"); add("v_mov_b32 v14, v11"); add("v_mov_b32 v17, v11"); add("v_mov_b32 v13, v10"); add("v_mov_b32 v16, v10")
        add("v_permlane16_swap_b32 v12, v15"); add("v_permlane16_swap_b32 v14, v17"); add("v_permlane16_swap_b32 v13, v16")
        return P
    def flag_set(self, n):
        k = self.k
        k.wait_vm("hh"); k.vm(f"buffer_store_dword v3, v{vFW}, {s(rWS,4)}, 0 offen sc1", "flag")

    def phase23(self):
        k = self.k
        SA = 72; AC0 = 88; HF = 136; CS = 56
        NV, NL = 28, 15
        def w2reg(f):
            if f < 24: return v(160+4*((f+7) % 24), 4)
            if f < NV: return a(240+4*(f-24), 4)
            if f < NV+NL: return a(164+4*(f-NV), 4)
            return a(96+4*(f-NV-NL), 4)
        CH = [0, CST, 32*CST, 33*CST]; HO_STEP = [98304, 31*98304, 98304]; HI = [0, 98304, 32*98304, 33*98304]
        w2_load = lambda f: self.gload(vWA, 1024*f, None, ("w2", f), (sW2L, 1024*(f-NV))) if NV <= f < NV+NL else self.gload(vWA, 1024*f, w2reg(f), ("w2", f))
        dma = lambda c, i: self.gload(vHA, CH[c] + 1024*i, None, ("h", c, i//2), (sHL, (c&1)*40960 + 1024*i))
        hh_load = lambda i, kb: self.gload(vIA, HI[i] + 1024*kb, a(48*(i&1)+4*kb, 4), ("hi", i, kb))
        def colsum(j): return [dict(text=f"{MF} {v(CS+4*t,4)}, {a(12*j+4*t,4)}, {v(ONES,4)}, {'0' if j==0 else v(CS+4*t,4)}", vwait=[("w", j)]) for t in range(3)]
        ev = lambda fn, cost: [It(fn=fn, cost=cost)]
        self.m0 = None; self.cur[vHA] = 0; self.cur[vIA] = 0
        k(f"v_add_u32 v{vHA}, {s(sHS)}, v{vL16}"); k(f"v_add_u32 v{vIA}, {s(sHI)}, v{vL16}")
        if OPT.get("bw", 56):
            for f in range(OPT.get("hw", 10)): self.run(self.w13_items(self.wf_next)); self.wf_next += 1
            self.poll_issue(S2A)
            for f in range(OPT.get("hw2", 4)): self.run(self.w13_items(self.wf_next)); self.wf_next += 1
        self.poll_check(S2A); k("s_barrier")
        self.stamp()
        for i in range(10): self.run(dma(0, i))
        wn = self.wf_next
        H1 = OPT.get("h1", 4)
        for i in range(H1): self.run(dma(1, i))
        PF = 2
        NS = OPT.get("ns", 5); NB = 20 + NS
        steps = [(0, j) for j in range(5)] + [(1, j) for j in range(NS)] + [(0, j) for j in range(5, 20)] + [(1, j) for j in range(NS, 20)]
        steps += [(c, j) for c in (2, 3) for j in range(20)]
        AT = [0]
        for c, j in steps: AT.append(AT[-1] + (10 if j < 5 else 6))
        G2 = AT[80]
        nof = {st: n for n, st in enumerate(steps)}
        def rd(n, a_, h, rel=0, dl=0):
            c, j = steps[n]; q, jj = divmod(j, 5); r = HF + 8*(n % 3) + 4*a_ + 2*h
            return It(f"ds_read_b64_tr_b16 {v(r,2)}, v{vHB+2*q+a_} offset:{(c&1)*40960 + jj*2048 + 1024*h}", "lg", ("f", n, a_), rel=rel, dl=dl)
        for n in range(PF):
            k.wait_vm(("h", 0, n))
            self.run([rd(n, a_, h) for a_ in range(2) for h in range(2)])
        self.stamp()
        LEAD = OPT.get("lead", 30); PQ = []; CSN = OPT.get("csn", 8)
        hdl = lambda c, i: AT[nof[(c, i//2)] - PF] - LEAD
        for f in range(wn, 15): PQ.append((0, AT[f//3] - LEAD, lambda f=f: self.w13_items(f)))
        for i in range(H1, 10): PQ.append((0, hdl(1, i), lambda i=i: dma(1, i)))
        for f in range(max(wn, 15), 60): PQ.append((0, AT[nof[(0, f//3)]] - LEAD, lambda f=f: self.w13_items(f)))
        for t in range(3):
            PQ.append((0, AT[CSN] - LEAD, lambda t=t: [It(f"buffer_load_dwordx4 {v(CS+4*t,4)}, v{vCS1}, {s(rWS,4)}, {s(sCS)} offen offset:{1280*t} sc1", "vm", "cs")]))
            PQ.append((0, AT[CSN] - LEAD, lambda t=t: [It(f"buffer_load_dwordx4 {v(176+4*t,4)}, v{vCS2}, {s(rWS,4)}, {s(sCS)} offen offset:{1280*t+1024} sc1", "vm", "cs")]))
        PQ.sort(key=lambda x: x[1])
        def w2first():
            self.cur[vWA] = 0
            return [It(f"v_add_u32 v{vWA}, {s(sW2)}, v{vL16}")] + w2_load(0)
        N1 = OPT.get("n1", 6); N2 = OPT.get("n2", 22)
        for f in range(N1): PQ.append((0, 10**6, w2first if f == 0 else (lambda f=f: w2_load(f))))
        for i in range(10): PQ.append((AT[NB] + 1, hdl(2, i), lambda i=i: dma(2, i)))
        for f in range(N1, N2): PQ.append((AT[NB] if f < 15 else AT[38], 10**6, w2first if f == 0 else (lambda f=f: w2_load(f))))
        for i in range(10): PQ.append((AT[43] + 1, hdl(3, i), lambda i=i: dma(3, i)))
        for f in range(N2, NV + NL): PQ.append((AT[43], G2 - LEAD, lambda f=f: w2_load(f)))
        KA = OPT.get("ka", 8)
        order = [(0, kb) for kb in range(KA)] + [(1, kb) for kb in range(KA)] + [(0, kb) for kb in range(KA, 12)] + [(1, kb) for kb in range(KA, 12)]
        order += [(i, kb) for i in (2, 3) for kb in range(12)]
        pos = {x: 5*n for n, x in enumerate(order)}
        EP = 40
        for kb in range(KA): PQ.append((AT[64] + 1, G2 + EP + pos[(0, kb)] - LEAD, lambda kb=kb: hh_load(0, kb)))
        NE = OPT.get("ne", 8)
        for f in range(NV + NL, NV + NL + NE): PQ.append((AT[69 + (f-NV-NL)//3], 10**6, lambda f=f: w2_load(f)))
        need_ = [(pos[(0, kb)], lambda kb=kb: hh_load(0, kb)) for kb in range(KA, 12)] + [(pos[(1, kb)], lambda kb=kb: hh_load(1, kb)) for kb in range(12)]
        need_ += [(pos[(0, f//5)] + f % 5, lambda f=f: w2_load(f)) for f in range(NV + NL + NE, 60)]
        PQ += [(G2, G2 + EP + p - LEAD, mk_) for p, mk_ in sorted(need_, key=lambda x: x[0])]
        for i in range(len(PQ) - 2, -1, -1): PQ[i] = (PQ[i][0], min(PQ[i][1], PQ[i+1][1]), PQ[i][2])
        for x in PQ: assert x[0] <= max(x[1], 0), x
        plast = -99
        for blk, (n0, n1) in enumerate(((0, 40), (40, 60), (60, 80))):
            mf = []; RQ = []; LQ = []; at = lambda n: AT[n] - AT[n0]
            for n in range(n0, n1):
                c, j = steps[n]; AC = AC0 + 24*(c & 1); SAc = 160 if c == 1 else SA; grp = []; b = len(mf)
                for a_ in range(2):
                    hf = v(HF + 8*(n % 3) + 4*a_, 4)
                    if j < 5:
                        grp.append(dict(text=f"{MF} {v(SAc+4*a_,4)}, {v(ONES,4)}, {hf}, {'0' if j==0 else v(SAc+4*a_,4)}", wait=[("f", n, a_)]))
                        grp.append(dict(text=f"{MF} {v(SAc+8+4*a_,4)}, {hf}, {hf}, {'0' if j==0 else v(SAc+8+4*a_,4)}"))
                    for t in range(3):
                        grp.append(dict(text=f"{MF} {v(AC+12*a_+4*t,4)}, {a(12*j+4*t,4)}, {hf}, {'0' if j==0 else v(AC+12*a_+4*t,4)}", wait=[("f", n, a_)]))
                if c == 0: grp[2 if j < 5 else 0]["vwait"] = [("w", j)]
                e_ = b + len(grp) - 1
                scal = lambda x, fn: grp[x].setdefault("scal", []).append(fn)
                def L(items, x=0, slack=3):
                    for it in items: it.rel = b + x; it.dl = b + x + slack; LQ.append(it)
                if n + PF < 80:
                    nc, nj = steps[n + PF]
                    if nj < 5: scal(0, lambda nc=nc, nj=nj: k.wait_vm(("h", nc, nj)))
                    if nj == 5 and (nc != 1 or NS < 5):
                        scal(0, "s_barrier")
                        if nc == 0: L(ev(lambda: self.arrive(S2B), 2), 1)
                    RQ += [rd(n + PF, a_, h, b, e_) for a_ in range(2) for h in range(2)]
                def stat_wr(SAx, o, a_):
                    L([It(f"ds_write_b64 v{vGW}, {v(SAx+8+4*a_,2)} offset:{o+1024*a_}", "lg", "sw")], 0); L([It(f"ds_write_b64 v{vGW}, {v(SAx+10+4*a_,2)} offset:{o+1024*a_+8}", "lg", "sw")], 2)
                    L([It(f"ds_write_b32 v{vSWR}, v{SAx+4*a_} offset:{o+256*a_}", "lg", "sw")], 4)
                if blk == 0:
                    n1 = nof[(1, 4)]
                    if n in (NS+5, NS+6): stat_wr(SA, 0, n - NS - 5)
                    w1 = NS + 7 if NS == 5 else n1 + 2
                    if n in (w1, w1 + 1): stat_wr(160, 10240, n - w1)
                    if n == NS + 11 or (NS < 5 and n == w1 + 4): scal(3, lambda: k.wait_lg("sw")); scal(4, "s_barrier")
                    if n == NB - OPT.get("pb", 8): L(ev(lambda: self.poll_issue(S2B), 2), 3)
                    if n == NB: scal(0, lambda: self.poll_check(S2B)); scal(0, "s_barrier")
                else:
                    if j in (6, 7): stat_wr(SA, 0, j - 6)
                    if j == 10: scal(3, lambda: k.wait_lg("sw")); scal(4, "s_barrier")
                    if j == OPT.get("fs", 5): L([It(f"v_mov_b32 v3, {c-1}")] + ev(lambda c=c: self.flag_set(c-1), 2), 0)
                if c == 2 and j == 15: L(ev(self.flag_issue, 2), 4)
                if c == 3 and j == 4: L(ev(lambda: self.flag_check(1), 2), 0, 0)
                if c == 3 and j == OPT.get("p2", 13): L(ev(self.flag_issue, 2), 4)
                if self.fine == (0 if n < 20 else 1 if n < 40 else c): scal(0, self.fstamp)
                if self.prof and n == NB: scal(0, self.stamp)
                mf += grp
            def with_stats(fill, idx, o, c):
                cut = max(0, len(fill) - 16)
                return fill[:cut] + self.g1_stats(idx, o) + fill[cut:] + self.g1_stats2(idx + 8, [f"s_add_u32 {s(sHO)}, {s(sHO)}, {HO_STEP[c]}"] if c >= 0 else [])
            if blk == 0:
                FQ = []
                FQ.append(It(pre=[lambda: k.wait_vm("cs")], rel=at(CSN), fence=True))
                FQ += [It(f"v_add_f32 v{CS+r}, v{CS+r}, v{176+r}") for r in range(12)]
                for rot in (8, 4, 2, 1): FQ += [It(f"v_add_f32_dpp v{CS+r}, v{CS+r}, v{CS+r} row_ror:{rot} row_mask:0xf bank_mask:0xf") for r in range(12)]
                FQ += [It(f"v_mov_b32 v{68+r}, v{64+r}") for r in range(4)] + [It(f"v_permlane16_swap_b32 v{64+r}, v{68+r}") for r in range(4)]
                FQ += with_stats([], at(NS + 12), 0, -1)
                FQ += with_stats(self.g1_epilogue(AC0, at(NB) + 3), at(NB if NS == 5 else nof[(1, 4)] + 7), 40, 0)
            else:
                FQ = with_stats(self.g1_epilogue(AC0 + 24*(blk & 1), 3), at(n0 + 11), 0, blk)
            r_ = schedule(k, mf, RQ, LQ, FQ, PQ=PQ, pace=OPT.get("pace", 45)/10, base=AT[n0], plast=plast); plast = r_[2]
            if os.environ.get("V"): print("blk", blk, "mfma", len(mf), "over/left", r_, "PQ left", len(PQ))
            if self.fine == (1, 2, 3)[blk]: self.fstamp()
            self.stamp()
        ACC = [88, 136, 88, 136]
        mf = []
        for i, kb in order:
            for t in range(5):
                f = 5*kb + t
                d = dict(text=f"{MF} {v(ACC[i]+4*t,4)}, {w2reg(f)}, {a(48*(i&1)+4*kb,4)}, {'0' if kb==0 else v(ACC[i]+4*t,4)}")
                vw = [("hi", i, kb)] if t == 0 else []
                if i == 0:
                    if NV <= f < NV+NL: d["wait"] = [("w2l", f)]
                    else: vw.append(("w2", f))
                if vw: d["vwait"] = vw
                mf.append(d)
        scal = lambda x, fn: mf[x].setdefault("scal", []).append(fn)
        F4 = OPT.get("f4", 55); P3 = OPT.get("p3", 75); P4 = OPT.get("p4", 150); L3 = OPT.get("l3", 45); L4 = OPT.get("l4", 50)
        PQ = [(-99, d_ - G2 - EP, mk_) for _, d_, mk_ in PQ]
        if self.fine == 4: self.fstamp()
        self.flag_check(2)
        k("v_mov_b32 v3, 3")
        for n, it in enumerate(self.g1_epilogue(AC0 + 24, 0)):
            self.run([it])
            if n % OPT.get("ep", 14) == 0: self.run(PQ.pop(0)[2]())
            if n == OPT.get("f3", 50): self.flag_set(3)
        k.wait_vm(("w2", NV+NL-1))
        for kb in range(12): PQ.append((max(P3 + 1, pos[(0, kb)] + 5), max(P3 + 1, pos[(0, kb)] + 5, pos[(2, kb)] - LEAD), lambda kb=kb: hh_load(2, kb)))
        def res(i):
            its = []
            if i == 0: its = [It(f"v_add_u32 v{vHA}, {s(sRS)}, v{vL16}")]; self.cur[vHA] = 0
            return its + self.gload(vHA, 1024*i, None, "res", (sHL, 1024*i))
        for i in range(5): PQ.append((0, P4, lambda i=i: res(i)))
        for kb in range(12): PQ.append((P4 + 1, P4 + 1 + 2*kb, lambda kb=kb: hh_load(3, kb)))
        LQ = []
        for p, its in sorted([(P3 - L3, ev(self.flag_issue, 2)), (F4, [It("v_mov_b32 v3, 4")] + ev(lambda: self.flag_set(4), 2)), (P3, ev(lambda: self.flag_check(3), 2)),
                              (P4 - L4, ev(self.flag_issue, 2)), (P4, ev(lambda: self.flag_check(4), 2))], key=lambda x: x[0]):
            for it in its: it.rel = p; it.dl = p; LQ.append(it)
        RQ = [It(f"ds_read_b128 {w2reg(f)}, v{vW2R} offset:{1024*(f-NV)}", "lg", ("w2l", f), rel=f-NV+2, dl=f-NV+6) for f in range(NV, NV+NL)]
        done = [pos[(0, 11)] + 5, 120, 180]
        for i in range(3):
            RQ += [It(f"ds_write_b128 v{vRW if i<2 else vRW2}, {v(ACC[i]+4*t,4)} offset:{(i%2)*20480 + 1024*t}", "lg", "red", rel=done[i]+3+3*t, dl=done[i]+4+3*t) for t in range(5)]
        R = 10
        RQ += [It(f"ds_read_b64_tr_b16 {v(R+2*t,2)}, v{vRA} offset:{1024*t}", "lg", "red", rel=222+2*t, dl=226+2*t) for t in range(5)]
        if self.prof:
            for x in (59, 119, 179): scal(x, self.stamp)
        if self.fine == 4:
            for x in list(range(0, 240, 12)) + [239]: scal(x, self.fstamp)
        scal(59, "s_barrier")
        r_ = schedule(k, mf, RQ, LQ, [], PQ=PQ, pace=OPT.get("pace", 45)/10)
        assert not PQ
        for t in range(5): k(f"ds_write_b128 v{vRW2}, {v(ACC[3]+4*t,4)} offset:{20480 + 1024*t}")
        self.stamp()
        k.wait_lg0(); k("s_barrier")
        AC = 56
        for t in range(5):
            for w_ in range(4): k.lg(f"ds_read_b128 {v(AC+16*t+4*w_,4)}, v{vRR} offset:{5120*w_ + 1024*t}", t)
        O = 20; U = 140
        for t in range(5):
            for h in range(2): k(f"v_lshlrev_b32 v{U+4*t+2*h}, 16, v{R+2*t+h}"); k(f"v_and_b32 v{U+4*t+2*h+1}, 0xffff0000, v{R+2*t+h}")
        for t in range(5):
            k.wait_lg(t); B = AC + 16*t
            for h in range(2): k(f"v_pk_add_f32 {v(B+2*h,2)}, {v(B+2*h,2)}, {v(B+4+2*h,2)}"); k(f"v_pk_add_f32 {v(B+8+2*h,2)}, {v(B+8+2*h,2)}, {v(B+12+2*h,2)}")
            for h in range(2): k(f"v_pk_add_f32 {v(B+2*h,2)}, {v(B+2*h,2)}, {v(U+4*t+2*h,2)}")
            for h in range(2): k(f"v_pk_add_f32 {v(B+2*h,2)}, {v(B+2*h,2)}, {v(B+8+2*h,2)}")
            k(f"v_cvt_pk_bf16_f32 v{O+2*t}, v{B}, v{B+1}"); k(f"v_cvt_pk_bf16_f32 v{O+2*t+1}, v{B+2}, v{B+3}")
            if t in (1, 3):
                b = O + 2*(t-1)
                k(f"v_permlane16_swap_b32 v{b}, v{b+2}"); k(f"v_permlane16_swap_b32 v{b+1}, v{b+3}")
                k(f"buffer_store_dwordx4 {v(b,4)}, v{vOP}, {s(rOUT,4)}, {s(sOO)} offen offset:{32*(t-1)}")
        k(f"buffer_store_dwordx2 {v(O+8,2)}, v{vO4}, {s(rOUT,4)}, {s(sOO)} offen")

    def finish(self):
        k = self.k
        if self.prof:
            self.stamp()
            k("s_memtime s[100:101]"); k.wait_lg0(); k(f"s_sub_u32 {s(sSTAMP+self.nst)}, s100, s98"); self.nst += 1
            assert self.nst <= 22
            L = k.newlabel("pf")
            k(f"s_cmp_lg_u32 {s(sW)}, 0"); k(f"s_cbranch_scc1 {L}")
            k(f"s_lshl_b32 {s(sT)}, {s(sID)}, 7"); k(f"s_add_u32 {s(sT)}, {s(sT)}, {WS_PROF}")
            k("s_mov_b64 exec, 1")
            for i in range(self.nst):
                k(f"v_mov_b32 v2, {4*i}"); k(f"v_mov_b32 v3, {s(sSTAMP+i)}")
                k(f"buffer_store_dword v3, v2, {s(rWS,4)}, {s(sT)} offen")
            k("s_mov_b64 exec, -1")
            k.label(L)
        if self.fine >= 0:
            pool = list(range(76, 100, 2)) + [24, 26, 32, 34, 36, 38, 64, 66, 70, 4]
            k("s_waitcnt lgkmcnt(0)")
            k(f"s_lshl_b32 {s(sT)}, {s(sID)}, 2"); k(f"s_add_u32 {s(sT)}, {s(sT)}, {s(sW)}"); k(f"s_lshl_b32 {s(sT)}, {s(sT)}, 7"); k(f"s_add_u32 {s(sT)}, {s(sT)}, {WS_FINE}")
            for i in range(self.nf):
                k(f"v_mov_b32 v2, {4*i}"); k(f"v_mov_b32 v3, {s(pool[i])}")
                k(f"buffer_store_dword v3, v2, {s(rWS,4)}, {s(sT)} offen")
        if self.prof and os.environ.get("SPIN"):
            b_, i_, m_ = [int(x) for x in os.environ["SPIN"].split(",")]
            k(f"s_sub_u32 {s(sT+1)}, {s(sSTAMP+i_)}, {s(sSTAMP)}"); k(f"s_mul_i32 {s(sT+1)}, {s(sT+1)}, {m_}"); k(f"s_add_u32 {s(sT+1)}, {s(sT+1)}, {b_}")
            k("L_SPIN:"); k("s_memrealtime s[100:101]"); k("s_waitcnt lgkmcnt(0)"); k(f"s_sub_u32 {s(sT)}, s100, {s(sSTAMP)}")
            k(f"s_cmp_lt_u32 {s(sT)}, {s(sT+1)}"); k("s_cbranch_scc1 L_SPIN")
        k("s_endpgm")
        k.label("L_LAST")
        self.emit_slow()
        k.label("L_END"); k("s_endpgm")

    def build(self):
        self.prologue()
        self.phase0()
        if self.stop >= 1: self.phase1()
        if self.stop >= 2: self.phase23()
        self.finish()
        self.k.pad()
        hdr = open(os.path.join(os.path.dirname(os.path.abspath(__file__)), "header.txt")).read()
        return (hdr + f"; @launch grid=(256,1,1) block=(256,1,1) lds={LDS_BYTES}\n"
            + '.amdgcn_target "amdgcn-amd-amdhsa--gfx950"\n.text\n'
            + f".globl {KNAME}\n.p2align 8\n.type {KNAME},@function\n{KNAME}:\n" + self.k.text()
            + f""".section .rodata,"a"
.p2align 6
.amdhsa_kernel {KNAME}
  .amdhsa_next_free_vgpr 512
  .amdhsa_next_free_sgpr 102
  .amdhsa_accum_offset 256
  .amdhsa_group_segment_fixed_size 0
  .amdhsa_kernarg_size 104
  .amdhsa_user_sgpr_count 2
  .amdhsa_user_sgpr_kernarg_segment_ptr 1
  .amdhsa_system_sgpr_workgroup_id_x 1
  .amdhsa_float_denorm_mode_32 3
.end_amdhsa_kernel
""")

if __name__ == "__main__":
    import argparse
    ap = argparse.ArgumentParser(); ap.add_argument("-o", default="k.s"); ap.add_argument("--stop", type=int, default=99); ap.add_argument("--prof", action="store_true")
    A = ap.parse_args()
    open(A.o, "w").write(Gen(A.stop, A.prof).build())
```
